```python
import torch

def _softmax(x, axis=-1):
    return torch.softmax(x, dim=axis)
def _gelu(x):
    return torch.nn.functional.gelu(x, approximate="tanh")
def _silu(x):
    return torch.nn.functional.silu(x)
def _sigmoid(x):
    return torch.sigmoid(x)
def _layernorm(x, axis=-1, eps=1e-5):
    m = x.mean(dim=axis, keepdim=True)
    v = x.var(dim=axis, keepdim=True, unbiased=False)
    return (x - m) / torch.sqrt(v + eps)
def _scatter_add(tgt, idx, src, axis=0):
    return tgt.clone().index_add_(axis, idx, src)
def _segment_sum(src, seg, n):
    out = torch.zeros((n,) + src.shape[1:], dtype=src.dtype)
    return out.index_add_(0, seg, src)
def _pad(x, pw):
    flat = tuple(v for pair in reversed(pw) for v in pair)
    return torch.nn.functional.pad(x, flat)

kernel_name = 'concat_heads__grouped_kv_mqa__compressed_kv_cla__prompt'

def setup_inputs():

    _w = (lambda a: (lambda t: t.to(torch.bfloat16) if t.is_floating_point() else t)(torch.as_tensor(a)))
    def _A_setup():
        B, S, D, H = 1, 2048, 1024, 32
        Dh = D // H
        return {
            "x": _w((lambda *s: torch.randn(*s, dtype=torch.bfloat16) * 0.05)(B, S, D)),
            "wq": _w((lambda *s: torch.randn(*s, dtype=torch.bfloat16) * 0.8)(D, H * Dh)),
            "wk": _w((lambda *s: torch.randn(*s, dtype=torch.bfloat16) * 0.8)(D, Dh)),
            "wv": _w((lambda *s: torch.randn(*s, dtype=torch.bfloat16) * 0.05)(D, Dh)),
            "wo": _w((lambda *s: torch.randn(*s, dtype=torch.bfloat16) * 0.05)(H * Dh, D)),
        }
    _A_in = _A_setup()

    def _B_setup():
        B, H, Sq, Sk, D, M = 1, 32, 2048, 2048, 128, 1024
        Dc = 4 * D
        return {
            "x": _w((lambda *s: torch.randn(*s, dtype=torch.bfloat16) * 1.6)(B, Sq, M)),
            "c_kv": _w((lambda *s: torch.randn(*s, dtype=torch.bfloat16) * 0.2)(B, Sk, Dc)),
            "w_q": _w((lambda *s: torch.randn(*s, dtype=torch.bfloat16) * 6.4)(M, H, D) * (M ** -0.5)),
            "w_uk": _w((lambda *s: torch.randn(*s, dtype=torch.bfloat16) * 6.4)(Dc, H, D) * (Dc ** -0.5)),
            "w_uv": _w((lambda *s: torch.randn(*s, dtype=torch.bfloat16) * 0.2)(Dc, H, D) * (Dc ** -0.5)),
            "w_o": _w((lambda *s: torch.randn(*s, dtype=torch.bfloat16) * 0.2)(H, D, M) * ((H * D) ** -0.5)),
        }
    _B_in = _B_setup()

    return {
        "A_x": _A_in["x"],
        "A_wq": _A_in["wq"],
        "A_wk": _A_in["wk"],
        "A_wv": _A_in["wv"],
        "A_wo": _A_in["wo"],
        "B_x": _B_in["x"],
        "B_c_kv": _B_in["c_kv"],
        "B_w_q": _B_in["w_q"],
        "B_w_uk": _B_in["w_uk"],
        "B_w_uv": _B_in["w_uv"],
        "B_w_o": _B_in["w_o"],
    }

def reference(A_x, A_wq, A_wk, A_wv, A_wo, B_x, B_c_kv, B_w_q, B_w_uk, B_w_uv, B_w_o):
    def _A_ref(x, wq, wk, wv, wo):
        B, S, D = x.shape
        H = 32
        Dh = D // H
        q = (lambda x, *d: x.permute(*d))((x @ wq).reshape(B, S, H, Dh), 0, 2, 1, 3)
        k = x @ wk
        v = x @ wv
        scores = torch.einsum("bhqd,bkd->bhqk", q, k) * (Dh ** -0.5)
        p = _softmax(scores, axis=-1)
        o = torch.einsum("bhqk,bkd->bhqd", p, v)
        return (lambda x, *d: x.permute(*d))(o, 0, 2, 1, 3).reshape(B, S, H * Dh) @ wo

    def _B_ref(x, c_kv, w_q, w_uk, w_uv, w_o):
        B, Sq, M = x.shape[0], x.shape[1], x.shape[2]
        Sk = c_kv.shape[1]
        H, D = w_q.shape[1], w_q.shape[2]
        q = torch.einsum("bqm,mhd->bhqd", x, w_q)
        k = torch.einsum("bkc,chd->bhkd", c_kv, w_uk)
        v = torch.einsum("bkc,chd->bhkd", c_kv, w_uv)
        scores = torch.einsum("bhqd,bhkd->bhqk", q, k) * (D ** -0.5)
        off = Sk - Sq
        qi = torch.arange(Sq)[:, None]
        kj = torch.arange(Sk)[None, :]
        cmask = kj <= (qi + off)
        scores = torch.where(cmask[None, None], scores, -1e9)
        p = _softmax(scores, axis=-1)
        ctx = torch.einsum("bhqk,bhkd->bhqd", p, v)
        return torch.einsum("bhqd,hdm->bqm", ctx, w_o)

    a = _A_ref(A_x, A_wq, A_wk, A_wv, A_wo)
    b = _B_ref(B_x, B_c_kv, B_w_q, B_w_uk, B_w_uv, B_w_o)
    return torch.concatenate([a, b], axis=-1)
```

```python
import math
import sys

NAME = "concat_heads__grouped_kv_mqa__compressed_kv_cla__prompt"

KA_AX, KA_AWQ, KA_AWK, KA_AWV, KA_AWO = 0, 8, 16, 24, 32
KA_BX, KA_CKV, KA_BWQ, KA_WUK, KA_WUV, KA_BWO = 40, 48, 56, 64, 72, 80
KA_OUT, KA_DBG, KA_WS = 88, 96, 104

MB = 1 << 20
WS_QB, WS_KB, WS_VB, WS_CTX = 0, 16 * MB, 32 * MB, 48 * MB
WS_QA, WS_OA, WS_KA, WS_VA = 64 * MB, 68 * MB, 72 * MB, 73 * MB


def log2(x):
    r = int(math.log2(x))
    assert 1 << r == x, x
    return r


class K:
    def __init__(self, name):
        self.name = name
        self.lines = []
        self.vn = 1
        self.sn = 3
        self.maxv = 1
        self.uid = 0

    def v(self, n=1, align=1):
        if n > 1 and align == 1:
            align = 2
        self.vn = (self.vn + align - 1) // align * align
        r = self.vn
        self.vn += n
        self.maxv = max(self.maxv, self.vn)
        assert self.vn <= 256, "out of vgprs"
        return r

    def s(self, n=1, align=1):
        if n == 2:
            align = max(align, 2)
        if n == 4:
            align = max(align, 4)
        self.sn = (self.sn + align - 1) // align * align
        r = self.sn
        self.sn += n
        assert self.sn <= 100, "out of sgprs"
        return r

    def e(self, t):
        self.lines.append("    " + t)

    def c(self, t):
        self.lines.append("    ; " + t)

    def label(self, base):
        self.uid += 1
        return f"L_{self.name}_{base}_{self.uid}"

    def place(self, lab):
        self.lines.append(lab + ":")

    def text(self):
        return "\n".join(self.lines)


def vr(b, n):
    return f"v[{b}:{b + n - 1}]"


def sr(b, n):
    return f"s[{b}:{b + n - 1}]"


def load_ptr(k, sdst, off):
    k.e(f"s_load_dwordx2 {sr(sdst, 2)}, s[0:1], {off}")


def make_srd(k, srd, sptr, off, size):
    if off:
        k.e(f"s_add_u32 s{srd}, s{sptr}, {off:#x}")
        k.e(f"s_addc_u32 s{srd + 1}, s{sptr + 1}, 0")
        k.e(f"s_and_b32 s{srd + 1}, s{srd + 1}, 0xffff")
    else:
        k.e(f"s_mov_b32 s{srd}, s{sptr}")
        k.e(f"s_and_b32 s{srd + 1}, s{sptr + 1}, 0xffff")
    k.e(f"s_mov_b32 s{srd + 2}, {size:#x}")
    k.e(f"s_mov_b32 s{srd + 3}, 0x20000")


class GemmRegs:
    def __init__(self, k):
        self.sX = k.s(4)
        self.sW = k.s(4)
        self.sO = k.s(4)
        self.ldx = k.s()
        self.ldw = k.s()
        self.nt = k.s()
        self.tm_off = k.s()
        self.tn_off = k.s()
        self.obase = k.s()
        self.ldo = k.s()


def gemm_core(k, G, WM, WN, TM, TN, BK, NSTAGE, ACROSS, form, epi):
    NW = WM * WN
    BM, BN = WM * TM * 32, WN * TN * 32
    RX, RW = BK * 2, BN * 2
    CX = RX // 16
    SX = {64: 2, 128: 1}[RX]
    XB, WB = BM * RX, BK * RW
    STAGE = XB + WB
    KS = BK // 16
    NXI = XB // 1024 // NW
    NWI = WB // 1024 // NW
    assert NXI * 1024 * NW == XB and NWI * 1024 * NW == WB
    D = NXI + NWI
    LEAD = NSTAGE - 1
    CERT = 2 if ACROSS else 1

    save_vn = k.vn
    v_lane = k.v()
    v_t0, v_t1, v_t2, v_t3 = k.v(), k.v(), k.v(), k.v()
    s_wave, s_wm, s_wn = k.s(), k.s(), k.s()
    s_t0, s_t1 = k.s(), k.s()
    k.c("---- gemm core prologue")
    k.e(f"v_and_b32 v{v_lane}, 63, v0")
    k.e(f"v_lshrrev_b32 v{v_t0}, 6, v0")
    k.e("s_nop 0")
    k.e(f"v_readfirstlane_b32 s{s_wave}, v{v_t0}")
    k.e("s_nop 3")
    k.e(f"s_and_b32 s{s_wm}, s{s_wave}, {WM - 1}")
    k.e(f"s_lshr_b32 s{s_wn}, s{s_wave}, {log2(WM)}")

    vox = [k.v() for _ in range(NXI)]
    vow = [k.v() for _ in range(NWI)]
    LPR = RX // 16
    RPI = 1024 // RX
    for j in range(NXI):
        k.e(f"s_mul_i32 s{s_t0}, s{s_wave}, {NXI * RPI}")
        k.e(f"s_add_u32 s{s_t0}, s{s_t0}, {j * RPI}")
        k.e(f"v_lshrrev_b32 v{v_t0}, {log2(LPR)}, v{v_lane}")
        k.e(f"v_add_u32 v{v_t0}, s{s_t0}, v{v_t0}")
        k.e(f"v_lshrrev_b32 v{v_t1}, {SX}, v{v_t0}")
        k.e(f"v_and_b32 v{v_t1}, {CX - 1}, v{v_t1}")
        k.e(f"v_and_b32 v{v_t2}, {LPR - 1}, v{v_lane}")
        k.e(f"v_xor_b32 v{v_t1}, v{v_t1}, v{v_t2}")
        k.e(f"v_mul_lo_u32 v{v_t0}, v{v_t0}, s{G.ldx}")
        k.e(f"v_lshl_add_u32 v{v_t0}, v{v_t1}, 4, v{v_t0}")
        k.e(f"v_add_u32 v{vox[j]}, s{G.tm_off}, v{v_t0}")
    LPRW = RW // 16
    RPIW = 1024 // RW

    def emit_wswz(vdst, vkrow):
        if RW >= 256:
            k.e(f"v_and_b32 v{vdst}, 3, v{vkrow}")
        elif RW == 128:
            k.e(f"v_lshrrev_b32 v{vdst}, 1, v{vkrow}")
            k.e(f"v_and_b32 v{vdst}, 1, v{vdst}")
        else:
            k.e(f"v_mov_b32 v{vdst}, 0")

    for j in range(NWI):
        k.e(f"s_mul_i32 s{s_t0}, s{s_wave}, {NWI * RPIW}")
        k.e(f"s_add_u32 s{s_t0}, s{s_t0}, {j * RPIW}")
        k.e(f"v_lshrrev_b32 v{v_t0}, {log2(LPRW)}, v{v_lane}")
        k.e(f"v_add_u32 v{v_t0}, s{s_t0}, v{v_t0}")
        emit_wswz(v_t1, v_t0)
        k.e(f"v_lshlrev_b32 v{v_t1}, 2, v{v_t1}")
        k.e(f"v_and_b32 v{v_t2}, {LPRW - 1}, v{v_lane}")
        k.e(f"v_xor_b32 v{v_t1}, v{v_t1}, v{v_t2}")
        k.e(f"v_mul_lo_u32 v{v_t0}, v{v_t0}, s{G.ldw}")
        k.e(f"v_lshl_add_u32 v{v_t0}, v{v_t1}, 4, v{v_t0}")
        k.e(f"v_add_u32 v{vow[j]}, s{G.tn_off}, v{v_t0}")

    bx = [k.v() for _ in range(KS)]
    bw = [k.v() for _ in range(TN)]
    k.e(f"s_mul_i32 s{s_t0}, s{s_wm}, {TM * 32}")
    k.e(f"v_and_b32 v{v_t0}, 31, v{v_lane}")
    k.e(f"v_add_u32 v{v_t0}, s{s_t0}, v{v_t0}")
    k.e(f"v_lshrrev_b32 v{v_t1}, {SX}, v{v_t0}")
    k.e(f"v_and_b32 v{v_t1}, {CX - 1}, v{v_t1}")
    k.e(f"v_lshrrev_b32 v{v_t2}, 5, v{v_lane}")
    k.e(f"v_xor_b32 v{v_t1}, v{v_t1}, v{v_t2}")
    k.e(f"v_lshlrev_b32 v{v_t0}, {log2(RX)}, v{v_t0}")
    for ks in range(KS):
        k.e(f"v_xor_b32 v{v_t2}, {2 * ks}, v{v_t1}")
        k.e(f"v_lshl_add_u32 v{bx[ks]}, v{v_t2}, 4, v{v_t0}")
    k.e(f"v_lshrrev_b32 v{v_t0}, 5, v{v_lane}")
    k.e(f"v_lshlrev_b32 v{v_t0}, 3, v{v_t0}")
    k.e(f"v_bfe_u32 v{v_t1}, v{v_lane}, 2, 2")
    k.e(f"v_add_u32 v{v_t0}, v{v_t0}, v{v_t1}")
    emit_wswz(v_t1, v_t0)
    k.e(f"v_lshlrev_b32 v{v_t1}, 2, v{v_t1}")
    k.e(f"v_lshlrev_b32 v{v_t0}, {log2(RW)}, v{v_t0}")
    for f in range(TN):
        k.e(f"s_mul_i32 s{s_t0}, s{s_wn}, {TN * 4}")
        k.e(f"s_add_u32 s{s_t0}, s{s_t0}, {4 * f}")
        k.e(f"v_bfe_u32 v{v_t2}, v{v_lane}, 4, 1")
        k.e(f"v_lshlrev_b32 v{v_t2}, 1, v{v_t2}")
        k.e(f"v_bfe_u32 v{v_t3}, v{v_lane}, 1, 1")
        k.e(f"v_add3_u32 v{v_t2}, v{v_t2}, v{v_t3}, s{s_t0}")
        k.e(f"v_xor_b32 v{v_t2}, v{v_t2}, v{v_t1}")
        k.e(f"v_lshl_add_u32 v{v_t2}, v{v_t2}, 4, v{v_t0}")
        k.e(f"v_and_b32 v{v_t3}, 1, v{v_lane}")
        k.e(f"v_lshl_add_u32 v{v_t2}, v{v_t3}, 3, v{v_t2}")
        k.e(f"v_add_u32 v{bw[f]}, {XB}, v{v_t2}")

    acc = [[k.v(16, 4) for f in range(TN)] for i in range(TM)]
    NSET = 2 if ACROSS else KS
    fx = [[k.v(4, 4) for i in range(TM)] for s_ in range(NSET)]
    fw = [[k.v(4, 4) for f in range(TN)] for s_ in range(NSET)]
    ax = [k.v() for _ in range(KS)]
    aw_c = [k.v() for _ in range(TN)]
    aw_n = [k.v() for _ in range(TN)] if ACROSS else None
    for i in range(TM):
        for f in range(TN):
            for r in range(16):
                k.e(f"v_mov_b32 v{acc[i][f] + r}, 0")

    s_kx, s_kw, s_dst, s_cur, s_nxt, s_cnt = k.s(), k.s(), k.s(), k.s(), k.s(), k.s()
    s_xdst, s_wdst, s_kwstep = k.s(), k.s(), k.s()
    k.e(f"s_mov_b32 s{s_kx}, 0")
    k.e(f"s_mov_b32 s{s_kw}, 0")
    k.e(f"s_mov_b32 s{s_dst}, 0")
    k.e(f"s_mov_b32 s{s_cur}, 0")
    k.e(f"s_mov_b32 s{s_nxt}, {STAGE}")
    k.e(f"s_mul_i32 s{s_xdst}, s{s_wave}, {NXI * 1024}")
    k.e(f"s_mul_i32 s{s_wdst}, s{s_wave}, {NWI * 1024}")
    k.e(f"s_add_u32 s{s_wdst}, s{s_wdst}, {XB}")
    k.e(f"s_mul_i32 s{s_kwstep}, s{G.ldw}, {BK}")

    def dma_list():
        out = []
        for j in range(NXI):
            g = []
            if j == 0:
                g.append(f"s_add_u32 s{s_t0}, s{s_dst}, s{s_xdst}")
            g.append(f"s_add_u32 m0, s{s_t0}, {j * 1024}")
            g.append("s_nop 0")
            g.append(f"buffer_load_dwordx4 v{vox[j]}, {sr(G.sX, 4)}, s{s_kx} offen lds")
            out.append(g)
        for j in range(NWI):
            g = []
            if j == 0:
                g.append(f"s_add_u32 s{s_t1}, s{s_dst}, s{s_wdst}")
            g.append(f"s_add_u32 m0, s{s_t1}, {j * 1024}")
            g.append("s_nop 0")
            g.append(f"buffer_load_dwordx4 v{vow[j]}, {sr(G.sW, 4)}, s{s_kw} offen lds")
            out.append(g)
        g = [
            f"s_add_u32 s{s_kx}, s{s_kx}, {BK * 2}",
            f"s_add_u32 s{s_kw}, s{s_kw}, s{s_kwstep}",
            f"s_add_u32 s{s_dst}, s{s_dst}, {STAGE}",
            f"s_cmp_eq_u32 s{s_dst}, {NSTAGE * STAGE}",
            f"s_cselect_b32 s{s_dst}, 0, s{s_dst}",
        ]
        out.append(g)
        return out

    def reads(ks, st, axr, awr):
        out = []
        for i in range(TM):
            out.append(f"ds_read_b128 {vr(fx[st][i], 4)}, v{axr} offset:{i * 32 * RX}")
        for f in range(TN):
            for p in range(2):
                out.append(
                    f"ds_read_b64_tr_b16 {vr(fw[st][f] + 2 * p, 2)}, v{awr[f]} offset:{(16 * ks + 4 * p) * RW}"
                )
        return out

    def mfmas(st):
        out = []
        for i in range(TM):
            for f in range(TN):
                a, b = (fw[st][f], fx[st][i]) if form == "T" else (fx[st][i], fw[st][f])
                out.append(
                    f"v_mfma_f32_32x32x16_bf16 {vr(acc[i][f], 16)}, {vr(a, 4)}, {vr(b, 4)}, {vr(acc[i][f], 16)}"
                )
        return out

    for t in range(LEAD):
        for g in dma_list():
            for ln in g:
                k.e(ln)
    k.e(f"s_waitcnt vmcnt({(LEAD - CERT) * D})")
    k.e("s_barrier")
    if ACROSS:
        for f in range(TN):
            k.e(f"v_mov_b32 v{aw_c[f]}, v{bw[f]}")
        k.e(f"v_mov_b32 v{ax[0]}, v{bx[0]}")
        for ln in reads(0, 0, ax[0], aw_c):
            k.e(ln)

    def interleave(main, fill, per=1, start=0):
        fill = list(fill)
        for idx, m in enumerate(main):
            k.e(m)
            if idx >= start:
                for _ in range(per):
                    if fill:
                        it = fill.pop(0)
                        for ln in it if isinstance(it, list) else [it]:
                            k.e(ln)
        for it in fill:
            for ln in it if isinstance(it, list) else [it]:
                k.e(ln)

    def body(with_dma):
        dm = dma_list() if with_dma else []
        if ACROSS:
            assert KS == 2
            k.e(f"v_add_u32 v{ax[1]}, s{s_cur}, v{bx[1]}")
            for f in range(TN):
                k.e(f"v_add_u32 v{aw_c[f]}, s{s_cur}, v{bw[f]}")
            k.e(f"v_add_u32 v{ax[0]}, s{s_nxt}, v{bx[0]}")
            for f in range(TN):
                k.e(f"v_add_u32 v{aw_n[f]}, s{s_nxt}, v{bw[f]}")
            k.e("s_waitcnt lgkmcnt(0)")
            interleave(mfmas(0), reads(1, 1, ax[1], aw_c), per=2)
            k.e("s_waitcnt lgkmcnt(0)")
            interleave(mfmas(1), reads(0, 0, ax[0], aw_n) + dm, per=2)
        else:
            for ks in range(KS):
                k.e(f"v_add_u32 v{ax[ks]}, s{s_cur}, v{bx[ks]}")
            for f in range(TN):
                k.e(f"v_add_u32 v{aw_c[f]}, s{s_cur}, v{bw[f]}")
            nr = TM + 2 * TN
            for ks in range(KS):
                for ln in reads(ks, ks, ax[ks], aw_c):
                    k.e(ln)
            for g in dm:
                for ln in g:
                    k.e(ln)
            for ks in range(KS):
                k.e(f"s_waitcnt lgkmcnt({min(15, (KS - 1 - ks) * nr)})")
                for ln in mfmas(ks):
                    k.e(ln)
        k.e(f"s_mov_b32 s{s_cur}, s{s_nxt}")
        k.e(f"s_add_u32 s{s_nxt}, s{s_nxt}, {STAGE}")
        k.e(f"s_cmp_eq_u32 s{s_nxt}, {NSTAGE * STAGE}")
        k.e(f"s_cselect_b32 s{s_nxt}, 0, s{s_nxt}")
        if with_dma:
            k.e(f"s_waitcnt vmcnt({(LEAD - CERT) * D})")
        else:
            k.e("s_waitcnt vmcnt(0)")
        k.e("s_barrier")

    k.e(f"s_sub_u32 s{s_cnt}, s{G.nt}, {LEAD}")
    L1 = k.label("main")
    k.place(L1)
    body(True)
    k.e(f"s_sub_u32 s{s_cnt}, s{s_cnt}, 1")
    k.e(f"s_cmp_lg_u32 s{s_cnt}, 0")
    k.e(f"s_cbranch_scc1 {L1}")
    k.e(f"s_mov_b32 s{s_cnt}, {LEAD}")
    L2 = k.label("tail")
    k.place(L2)
    body(False)
    k.e(f"s_sub_u32 s{s_cnt}, s{s_cnt}, 1")
    k.e(f"s_cmp_lg_u32 s{s_cnt}, 0")
    k.e(f"s_cbranch_scc1 {L2}")
    k.e("s_waitcnt lgkmcnt(0)")
    k.e("s_nop 15")
    info = dict(acc=acc, TM=TM, TN=TN, v_lane=v_lane, s_wm=s_wm, s_wn=s_wn, tmp=fx[0][0], s_t0=s_t0, s_t1=s_t1,
                ntmp=4 * (TM + TN))
    epi(k, G, info)
    k.vn = save_vn


def epi_rowmajor(k, G, info):
    TM, TN = info["TM"], info["TN"]
    acc, vl = info["acc"], info["v_lane"]
    s0, s1 = info["s_t0"], info["s_t1"]
    vo = k.v()
    vt = k.v()
    t = k.v(8, 4)
    k.c("---- epilogue row-major")
    k.e(f"v_and_b32 v{vo}, 31, v{vl}")
    k.e(f"v_mul_lo_u32 v{vo}, v{vo}, s{G.ldo}")
    k.e(f"v_lshrrev_b32 v{vt}, 5, v{vl}")
    k.e(f"v_lshl_add_u32 v{vo}, v{vt}, 4, v{vo}")
    k.e(f"s_mul_i32 s{s0}, s{info['s_wm']}, {TM * 32}")
    k.e(f"s_mul_i32 s{s0}, s{s0}, s{G.ldo}")
    k.e(f"s_add_u32 s{s0}, s{s0}, s{G.obase}")
    k.e(f"s_mul_i32 s{s1}, s{info['s_wn']}, {TN * 64}")
    k.e(f"s_add_u32 s{s0}, s{s0}, s{s1}")
    k.e(f"s_lshl_b32 s{s1}, s{G.ldo}, 5")
    for i in range(TM):
        for f in range(TN):
            a = acc[i][f]
            for j in range(4):
                k.e(f"v_cvt_pk_bf16_f32 v{t + 2 * j}, v{a + 4 * j}, v{a + 4 * j + 1}")
                k.e(f"v_cvt_pk_bf16_f32 v{t + 2 * j + 1}, v{a + 4 * j + 2}, v{a + 4 * j + 3}")
            k.e("s_nop 1")
            k.e(f"v_permlane32_swap_b32 v{t}, v{t + 2}")
            k.e(f"v_permlane32_swap_b32 v{t + 1}, v{t + 3}")
            k.e(f"v_permlane32_swap_b32 v{t + 4}, v{t + 6}")
            k.e(f"v_permlane32_swap_b32 v{t + 5}, v{t + 7}")
            k.e("s_nop 1")
            k.e(f"buffer_store_dwordx4 {vr(t, 4)}, v{vo}, {sr(G.sO, 4)}, s{s0} offen offset:{f * 64}")
            k.e(f"buffer_store_dwordx4 {vr(t + 4, 4)}, v{vo}, {sr(G.sO, 4)}, s{s0} offen offset:{f * 64 + 32}")
            k.e("s_waitcnt vmcnt(0)")
        if i != TM - 1:
            k.e(f"s_add_u32 s{s0}, s{s0}, s{s1}")


def make_epi_vt(KPB, FS, BS):
    def epi(k, G, info):
        TM, TN = info["TM"], info["TN"]
        acc, vl = info["acc"], info["v_lane"]
        s0, s1 = info["s_t0"], info["s_t1"]
        vo = k.v()
        vt = k.v()
        t = k.v(8, 4)
        k.c("---- epilogue V^T")
        k.e(f"v_and_b32 v{vo}, 31, v{vl}")
        k.e(f"v_lshlrev_b32 v{vo}, {log2(FS)}, v{vo}")
        k.e(f"v_lshrrev_b32 v{vt}, 5, v{vl}")
        k.e(f"v_lshl_add_u32 v{vo}, v{vt}, 4, v{vo}")
        assert (TM * 32) % KPB == 0 or KPB % (TM * 32) == 0
        assert (TM * 32) % KPB == 0
        k.e(f"s_mul_i32 s{s0}, s{info['s_wm']}, {TM * 32 // KPB * BS}")
        k.e(f"s_add_u32 s{s0}, s{s0}, s{G.obase}")
        k.e(f"s_mul_i32 s{s1}, s{info['s_wn']}, {TN * 32 * FS}")
        k.e(f"s_add_u32 s{s0}, s{s0}, s{s1}")
        for i in range(TM):
            for f in range(TN):
                a = acc[i][f]
                off = (i * 32 // KPB) * BS + ((i * 32) % KPB) * 2 + f * 32 * FS
                k.e(f"s_add_u32 s{s1}, s{s0}, {off}")
                for j in range(8):
                    k.e(f"v_cvt_pk_bf16_f32 v{t + j}, v{a + 2 * j}, v{a + 2 * j + 1}")
                k.e("s_nop 1")
                k.e(f"buffer_store_dwordx4 {vr(t, 4)}, v{vo}, {sr(G.sO, 4)}, s{s1} offen")
                k.e(f"buffer_store_dwordx4 {vr(t + 4, 4)}, v{vo}, {sr(G.sO, 4)}, s{s1} offen offset:32")
                k.e("s_waitcnt vmcnt(0)")

    return epi


def kern_big():
    k = K("projb_kernel")
    G = GemmRegs(k)
    p0, p1, p2 = k.s(2), k.s(2), k.s(2)
    s_id, s_tm, s_tn, s_t = k.s(), k.s(), k.s(), k.s()
    Lend = k.label("end")
    Lk, Lv, Lq_go = k.label("k"), k.label("v"), k.label("go")
    k.e("s_cmp_ge_u32 s2, 384")
    k.e(f"s_cbranch_scc1 {Lend}")
    k.e(f"s_and_b32 s{s_id}, s2, 127")
    k.e(f"s_and_b32 s{s_tm}, s{s_id}, 7")
    k.e(f"s_lshr_b32 s{s_tn}, s{s_id}, 3")
    load_ptr(k, p2, KA_WS)
    k.e(f"s_mov_b32 s{G.ldw}, 8192")
    k.e(f"s_lshl_b32 s{G.tn_off}, s{s_tn}, 9")
    k.e("s_cmp_ge_u32 s2, 256")
    k.e(f"s_cbranch_scc1 {Lv}")
    k.e("s_cmp_ge_u32 s2, 128")
    k.e(f"s_cbranch_scc1 {Lk}")
    load_ptr(k, p0, KA_BX)
    load_ptr(k, p1, KA_BWQ)
    k.e("s_waitcnt lgkmcnt(0)")
    make_srd(k, G.sX, p0, 0, 2048 * 1024 * 2)
    make_srd(k, G.sW, p1, 0, 1024 * 4096 * 2)
    make_srd(k, G.sO, p2, WS_QB, 16 * MB)
    k.e(f"s_mov_b32 s{G.ldx}, 2048")
    k.e(f"s_mov_b32 s{G.nt}, 32")
    k.e(f"s_lshl_b32 s{G.tm_off}, s{s_tm}, 19")
    k.e(f"s_branch {Lq_go}")
    k.place(Lk)
    load_ptr(k, p0, KA_CKV)
    load_ptr(k, p1, KA_WUK)
    k.e("s_waitcnt lgkmcnt(0)")
    make_srd(k, G.sX, p0, 0, 2048 * 512 * 2)
    make_srd(k, G.sW, p1, 0, 512 * 4096 * 2)
    make_srd(k, G.sO, p2, WS_KB, 16 * MB)
    k.e(f"s_mov_b32 s{G.ldx}, 1024")
    k.e(f"s_mov_b32 s{G.nt}, 16")
    k.e(f"s_lshl_b32 s{G.tm_off}, s{s_tm}, 18")
    k.place(Lq_go)
    k.e(f"s_mov_b32 s{G.ldo}, 256")
    k.e(f"s_lshl_b32 s{G.obase}, s{s_tn}, 20")
    k.e(f"s_lshl_b32 s{s_t}, s{s_tm}, 16")
    k.e(f"s_add_u32 s{G.obase}, s{G.obase}, s{s_t}")

    def epi_head(k, G, info):
        st = info["s_t0"]
        k.e(f"s_lshr_b32 s{st}, s{info['s_wn']}, 1")
        k.e(f"s_mul_i32 s{st}, s{st}, {524288 - 256}")
        k.e(f"s_add_u32 s{G.obase}, s{G.obase}, s{st}")
        epi_rowmajor(k, G, info)

    gemm_core(k, G, 2, 4, 4, 2, 32, 4, True, "T", epi_head)
    k.e(f"s_branch {Lend}")
    k.place(Lv)
    load_ptr(k, p0, KA_CKV)
    load_ptr(k, p1, KA_WUV)
    k.e("s_waitcnt lgkmcnt(0)")
    make_srd(k, G.sX, p0, 0, 2048 * 512 * 2)
    make_srd(k, G.sW, p1, 0, 512 * 4096 * 2)
    make_srd(k, G.sO, p2, WS_VB, 16 * MB)
    k.e(f"s_mov_b32 s{G.ldx}, 1024")
    k.e(f"s_mov_b32 s{G.nt}, 16")
    k.e(f"s_lshl_b32 s{G.tm_off}, s{s_tm}, 18")
    k.e(f"s_lshl_b32 s{G.obase}, s{s_tn}, 20")
    k.e(f"s_lshl_b32 s{s_t}, s{s_tm}, 16")
    k.e(f"s_add_u32 s{G.obase}, s{G.obase}, s{s_t}")
    k.e(f"s_mov_b32 s{G.ldo}, 0")

    def epi_v(k, G, info):
        st = info["s_t0"]
        k.e(f"s_lshr_b32 s{st}, s{info['s_wn']}, 1")
        k.e(f"s_mul_i32 s{st}, s{st}, {524288 - 16384}")
        k.e(f"s_add_u32 s{G.obase}, s{G.obase}, s{st}")
        make_epi_vt(64, 128, 16384)(k, G, info)

    gemm_core(k, G, 2, 4, 4, 2, 32, 4, True, "N", epi_v)
    k.place(Lend)
    k.e("s_endpgm")
    return k


def kern_proja():
    k = K("proja_kernel")
    G = GemmRegs(k)
    p0, p1, p2 = k.s(2), k.s(2), k.s(2)
    s_tm, s_tn, s_t = k.s(), k.s(), k.s()
    Lend, Lk, Lv = k.label("end"), k.label("k"), k.label("v")
    k.e("s_cmp_ge_u32 s2, 288")
    k.e(f"s_cbranch_scc1 {Lend}")
    load_ptr(k, p2, KA_WS)
    load_ptr(k, p0, KA_AX)
    k.e(f"s_and_b32 s{s_tm}, s2, 15")
    k.e(f"s_mov_b32 s{G.ldx}, 2048")
    k.e(f"s_mov_b32 s{G.nt}, 16")
    k.e(f"s_lshl_b32 s{G.tm_off}, s{s_tm}, 18")
    k.e("s_cmp_ge_u32 s2, 272")
    k.e(f"s_cbranch_scc1 {Lv}")
    k.e("s_cmp_ge_u32 s2, 256")
    k.e(f"s_cbranch_scc1 {Lk}")
    load_ptr(k, p1, KA_AWQ)
    k.e("s_waitcnt lgkmcnt(0)")
    make_srd(k, G.sX, p0, 0, 2048 * 1024 * 2)
    make_srd(k, G.sW, p1, 0, 1024 * 1024 * 2)
    make_srd(k, G.sO, p2, WS_QA, 4 * MB)
    k.e(f"s_lshr_b32 s{s_tn}, s2, 4")
    k.e(f"s_mov_b32 s{G.ldw}, 2048")
    k.e(f"s_lshl_b32 s{G.tn_off}, s{s_tn}, 7")
    k.e(f"s_mov_b32 s{G.ldo}, 2048")
    k.e(f"s_add_u32 s{G.obase}, s{G.tm_off}, s{G.tn_off}")
    gemm_core(k, G, 2, 2, 2, 1, 64, 3, False, "T", epi_rowmajor)
    k.e(f"s_branch {Lend}")
    k.place(Lk)
    load_ptr(k, p1, KA_AWK)
    k.e("s_waitcnt lgkmcnt(0)")
    make_srd(k, G.sX, p0, 0, 2048 * 1024 * 2)
    make_srd(k, G.sW, p1, 0, 1024 * 32 * 2)
    make_srd(k, G.sO, p2, WS_KA, 2048 * 64)
    k.e(f"s_mov_b32 s{G.ldw}, 64")
    k.e(f"s_mov_b32 s{G.tn_off}, 0")
    k.e(f"s_mov_b32 s{G.ldo}, 64")
    k.e(f"s_lshl_b32 s{G.obase}, s{s_tm}, 13")
    gemm_core(k, G, 4, 1, 1, 1, 64, 3, False, "T", epi_rowmajor)
    k.e(f"s_branch {Lend}")
    k.place(Lv)
    load_ptr(k, p1, KA_AWV)
    k.e("s_waitcnt lgkmcnt(0)")
    make_srd(k, G.sX, p0, 0, 2048 * 1024 * 2)
    make_srd(k, G.sW, p1, 0, 1024 * 32 * 2)
    make_srd(k, G.sO, p2, WS_VA, 2048 * 64)
    k.e(f"s_mov_b32 s{G.ldw}, 64")
    k.e(f"s_mov_b32 s{G.tn_off}, 0")
    k.e(f"s_mov_b32 s{G.ldo}, 0")
    k.e(f"s_lshl_b32 s{G.obase}, s{s_tm}, 13")
    gemm_core(k, G, 4, 1, 1, 1, 64, 3, False, "N", make_epi_vt(32, 64, 2048))
    k.place(Lend)
    k.e("s_endpgm")
    return k


def kern_out():
    k = K("outp_kernel")
    G = GemmRegs(k)
    p0, p1, p2 = k.s(2), k.s(2), k.s(2)
    s_tm, s_tn, s_t, s_id = k.s(), k.s(), k.s(), k.s()
    Lend, La, Lgo = k.label("end"), k.label("a"), k.label("go")
    k.e("s_cmp_ge_u32 s2, 512")
    k.e(f"s_cbranch_scc1 {Lend}")
    load_ptr(k, p2, KA_WS)
    load_ptr(k, p0, KA_OUT)
    k.e(f"s_and_b32 s{s_id}, s2, 255")
    k.e(f"s_and_b32 s{s_tm}, s{s_id}, 15")
    k.e(f"s_lshr_b32 s{s_tn}, s{s_id}, 4")
    k.e(f"s_mov_b32 s{G.ldw}, 2048")
    k.e(f"s_lshl_b32 s{G.tn_off}, s{s_tn}, 7")
    k.e(f"s_mov_b32 s{G.ldo}, 4096")
    k.e(f"s_lshl_b32 s{G.obase}, s{s_tm}, 19")
    k.e(f"s_add_u32 s{G.obase}, s{G.obase}, s{G.tn_off}")
    k.e("s_cmp_ge_u32 s2, 256")
    k.e(f"s_cbranch_scc1 {La}")
    load_ptr(k, p1, KA_BWO)
    k.e("s_waitcnt lgkmcnt(0)")
    make_srd(k, G.sX, p2, WS_CTX, 16 * MB)
    make_srd(k, G.sW, p1, 0, 4096 * 1024 * 2)
    k.e(f"s_mov_b32 s{G.ldx}, 8192")
    k.e(f"s_mov_b32 s{G.nt}, 64")
    k.e(f"s_lshl_b32 s{G.tm_off}, s{s_tm}, 20")
    k.e(f"s_add_u32 s{G.obase}, s{G.obase}, 2048")
    k.e(f"s_branch {Lgo}")
    k.place(La)
    load_ptr(k, p1, KA_AWO)
    k.e("s_waitcnt lgkmcnt(0)")
    make_srd(k, G.sX, p2, WS_OA, 4 * MB)
    make_srd(k, G.sW, p1, 0, 1024 * 1024 * 2)
    k.e(f"s_mov_b32 s{G.ldx}, 2048")
    k.e(f"s_mov_b32 s{G.nt}, 16")
    k.e(f"s_lshl_b32 s{G.tm_off}, s{s_tm}, 18")
    k.place(Lgo)
    make_srd(k, G.sO, p0, 0, 2048 * 2048 * 2)
    gemm_core(k, G, 2, 2, 2, 1, 64, 3, False, "T", epi_rowmajor)
    k.place(Lend)
    k.e("s_endpgm")
    return k


NEG_INF = "0xff800000"
NH_A = 4
NWG_A = 16 * (32 // NH_A)


def f32hex(x):
    import struct

    return "0x%08x" % struct.unpack("<I", struct.pack("<f", x))[0]


def softmax_tile(k, S, nS, P, m, l, O, nO, s_c, s_thr, vt0, vt1, vt2, mask=None):
    if mask is not None:
        mask(k)
    k.e(f"v_max3_f32 v{vt0}, v{S}, v{S + 1}, v{S + 2}")
    i = 3
    while i + 1 < nS:
        k.e(f"v_max3_f32 v{vt0}, v{vt0}, v{S + i}, v{S + i + 1}")
        i += 2
    if i < nS:
        k.e(f"v_max_f32 v{vt0}, v{vt0}, v{S + i}")
    k.e(f"v_mov_b32 v{vt1}, v{vt0}")
    k.e("s_nop 1")
    k.e(f"v_permlane32_swap_b32 v{vt0}, v{vt1}")
    k.e("s_nop 1")
    k.e(f"v_max_f32 v{vt0}, v{vt0}, v{vt1}")
    k.e(f"v_sub_f32 v{vt1}, v{vt0}, v{m}")
    k.e(f"v_cmp_lt_f32 vcc, s{s_thr}, v{vt1}")
    Lskip = k.label("nors")
    k.e(f"s_cbranch_vccz {Lskip}")
    k.e(f"v_max_f32 v{vt0}, v{vt0}, v{m}")
    k.e(f"v_sub_f32 v{vt1}, v{m}, v{vt0}")
    k.e(f"v_mul_f32 v{vt1}, s{s_c}, v{vt1}")
    k.e(f"v_exp_f32 v{vt1}, v{vt1}")
    k.e(f"v_mov_b32 v{m}, v{vt0}")
    k.e(f"v_mul_f32 v{l}, v{l}, v{vt1}")
    for r in range(nO):
        k.e(f"v_mul_f32 v{O + r}, v{O + r}, v{vt1}")
    k.place(Lskip)
    k.e(f"v_mul_f32 v{vt2}, s{s_c}, v{m}")
    for r in range(nS):
        k.e(f"v_fma_f32 v{S + r}, v{S + r}, s{s_c}, -v{vt2}")
    for r in range(nS):
        k.e(f"v_exp_f32 v{S + r}, v{S + r}")
    k.e("s_nop 0")
    for r in range(0, nS, 2):
        k.e(f"v_add_f32 v{vt0}, v{S + r}, v{S + r + 1}")
        k.e(f"v_cvt_pk_bf16_f32 v{P + r // 2}, v{S + r}, v{S + r + 1}")
        k.e(f"v_add_f32 v{l}, v{l}, v{vt0}")


def finish_store(k, O, ntile, l, vt0, vt1, t, vo, srd, soff, col_stride_bytes=64):
    k.e(f"v_mov_b32 v{vt0}, v{l}")
    k.e(f"v_mov_b32 v{vt1}, v{l}")
    k.e("s_nop 1")
    k.e(f"v_permlane32_swap_b32 v{vt0}, v{vt1}")
    k.e("s_nop 1")
    k.e(f"v_add_f32 v{vt0}, v{vt0}, v{vt1}")
    k.e(f"v_rcp_f32 v{vt0}, v{vt0}")
    k.e("s_nop 0")
    for dt in range(ntile):
        a = O + 16 * dt
        for r in range(16):
            k.e(f"v_mul_f32 v{a + r}, v{a + r}, v{vt0}")
        for j in range(4):
            k.e(f"v_cvt_pk_bf16_f32 v{t + 2 * j}, v{a + 4 * j}, v{a + 4 * j + 1}")
            k.e(f"v_cvt_pk_bf16_f32 v{t + 2 * j + 1}, v{a + 4 * j + 2}, v{a + 4 * j + 3}")
        k.e("s_nop 1")
        k.e(f"v_permlane32_swap_b32 v{t}, v{t + 2}")
        k.e(f"v_permlane32_swap_b32 v{t + 1}, v{t + 3}")
        k.e(f"v_permlane32_swap_b32 v{t + 4}, v{t + 6}")
        k.e(f"v_permlane32_swap_b32 v{t + 5}, v{t + 7}")
        k.e("s_nop 1")
        k.e(f"buffer_store_dwordx4 {vr(t, 4)}, v{vo}, {sr(srd, 4)}, s{soff} offen offset:{dt * col_stride_bytes}")
        k.e(f"buffer_store_dwordx4 {vr(t + 4, 4)}, v{vo}, {sr(srd, 4)}, s{soff} offen offset:{dt * col_stride_bytes + 32}")
        k.e("s_waitcnt vmcnt(0)")


def kern_attn():
    k = K("attn_kernel")
    Lend, LA = k.label("end"), k.label("attnA")
    k.e(f"s_cmp_ge_u32 s2, {512 + NWG_A}")
    k.e(f"s_cbranch_scc1 {Lend}")
    pw = k.s(2)
    load_ptr(k, pw, KA_WS)
    sQ, sK, sV, sO = k.s(4), k.s(4), k.s(4), k.s(4)
    s_wave, s_c, s_thr = k.s(), k.s(), k.s()
    s_t0, s_t1 = k.s(), k.s()
    v_lane, vt0, vt1, vt2 = k.v(), k.v(), k.v(), k.v()
    k.e(f"v_and_b32 v{v_lane}, 63, v0")
    k.e(f"v_lshrrev_b32 v{vt0}, 6, v0")
    k.e("s_nop 0")
    k.e(f"v_readfirstlane_b32 s{s_wave}, v{vt0}")
    k.e("s_waitcnt lgkmcnt(0)")
    k.e("s_cmp_ge_u32 s2, 512")
    k.e(f"s_cbranch_scc1 {LA}")
    save_v, save_s = k.vn, k.sn

    cB = math.log2(math.e) / math.sqrt(128.0)
    make_srd(k, sQ, pw, WS_QB, 16 * MB)
    make_srd(k, sK, pw, WS_KB, 16 * MB)
    make_srd(k, sV, pw, WS_VB, 16 * MB)
    make_srd(k, sO, pw, WS_CTX, 16 * MB)
    k.e(f"s_mov_b32 s{s_c}, {f32hex(cB)}")
    k.e(f"s_mov_b32 s{s_thr}, {f32hex(8.0 / cB)}")
    s_head, s_qb, s_q0, s_nt, s_kt, s_koff, s_stage, s_dstage = [k.s() for _ in range(8)]
    k.e(f"s_and_b32 s{s_head}, s2, 31")
    k.e(f"s_lshr_b32 s{s_qb}, s2, 5")
    k.e(f"s_sub_u32 s{s_qb}, 15, s{s_qb}")
    k.e(f"s_lshl_b32 s{s_q0}, s{s_qb}, 7")
    k.e(f"s_lshl_b32 s{s_t0}, s{s_wave}, 5")
    k.e(f"s_add_u32 s{s_q0}, s{s_q0}, s{s_t0}")
    k.e(f"s_lshl_b32 s{s_nt}, s{s_qb}, 1")
    k.e(f"s_add_u32 s{s_nt}, s{s_nt}, 2")
    k.e(f"s_lshl_b32 s{s_koff}, s{s_head}, 19")
    Q = k.v(32, 4)
    O = k.v(64, 4)
    S = k.v(32, 4)
    P = k.v(16, 4)
    F = [k.v(4, 4) for _ in range(8)]
    vm, vl_ = k.v(), k.v()
    vq = k.v()
    vdk = [k.v() for _ in range(4)]
    vdv = [k.v() for _ in range(4)]
    ak = [k.v() for _ in range(8)]
    av = [k.v() for _ in range(4)]
    vdiff = k.v()
    vh4 = k.v()
    k.e(f"v_and_b32 v{vt0}, 31, v{v_lane}")
    k.e(f"v_add_u32 v{vq}, s{s_q0}, v{vt0}")
    k.e(f"v_lshlrev_b32 v{vt1}, 8, v{vq}")
    k.e(f"v_lshrrev_b32 v{vt2}, 5, v{v_lane}")
    k.e(f"v_lshl_add_u32 v{vt1}, v{vt2}, 4, v{vt1}")
    k.e(f"v_lshlrev_b32 v{vh4}, 2, v{vt2}")
    for ds in range(8):
        k.e(f"buffer_load_dwordx4 {vr(Q + 4 * ds, 4)}, v{vt1}, {sr(sQ, 4)}, s{s_koff} offen offset:{ds * 32}")
    for j in range(4):
        k.e(f"s_lshl_b32 s{s_t0}, s{s_wave}, 4")
        k.e(f"s_add_u32 s{s_t0}, s{s_t0}, {4 * j}")
        k.e(f"v_lshrrev_b32 v{vt0}, 4, v{v_lane}")
        k.e(f"v_add_u32 v{vt0}, s{s_t0}, v{vt0}")
        k.e(f"v_xor_b32 v{vt1}, v{vt0}, v{v_lane}")
        k.e(f"v_and_b32 v{vt1}, 15, v{vt1}")
        k.e(f"v_lshlrev_b32 v{vt0}, 8, v{vt0}")
        k.e(f"v_lshl_add_u32 v{vdk[j]}, v{vt1}, 4, v{vt0}")
    for j in range(4):
        k.e(f"s_lshl_b32 s{s_t0}, s{s_wave}, 5")
        k.e(f"s_add_u32 s{s_t0}, s{s_t0}, {8 * j}")
        k.e(f"v_lshrrev_b32 v{vt0}, 3, v{v_lane}")
        k.e(f"v_add_u32 v{vt0}, s{s_t0}, v{vt0}")
        k.e(f"v_lshrrev_b32 v{vt1}, 1, v{vt0}")
        k.e(f"v_xor_b32 v{vt1}, v{vt1}, v{v_lane}")
        k.e(f"v_and_b32 v{vt1}, 7, v{vt1}")
        k.e(f"v_lshlrev_b32 v{vt0}, 7, v{vt0}")
        k.e(f"v_lshl_add_u32 v{vdv[j]}, v{vt1}, 4, v{vt0}")
    k.e(f"v_and_b32 v{vt0}, 31, v{v_lane}")
    k.e(f"v_lshrrev_b32 v{vt2}, 5, v{v_lane}")
    k.e(f"v_and_b32 v{vt1}, 15, v{v_lane}")
    k.e(f"v_xor_b32 v{vt1}, v{vt1}, v{vt2}")
    k.e(f"v_lshlrev_b32 v{vt0}, 8, v{vt0}")
    for ds in range(8):
        k.e(f"v_xor_b32 v{vt2}, {2 * ds}, v{vt1}")
        k.e(f"v_lshl_add_u32 v{ak[ds]}, v{vt2}, 4, v{vt0}")
    k.e(f"v_and_b32 v{vt0}, 31, v{v_lane}")
    k.e(f"v_lshrrev_b32 v{vt2}, 5, v{v_lane}")
    k.e(f"v_bfe_u32 v{vt1}, v{v_lane}, 1, 3")
    k.e(f"v_xor_b32 v{vt1}, v{vt1}, v{vt2}")
    k.e(f"v_lshlrev_b32 v{vt0}, 7, v{vt0}")
    k.e(f"v_add_u32 v{vt0}, 16384, v{vt0}")
    for g in range(4):
        k.e(f"v_xor_b32 v{vt2}, {2 * g}, v{vt1}")
        k.e(f"v_lshl_add_u32 v{av[g]}, v{vt2}, 4, v{vt0}")
    for r in range(64):
        k.e(f"v_mov_b32 v{O + r}, 0")
    k.e(f"v_mov_b32 v{vm}, {f32hex(-1e30)}")
    k.e(f"v_mov_b32 v{vl_}, 0")
    k.e(f"s_mov_b32 s{s_kt}, 0")
    k.e(f"s_lshl_b32 s{s_dstage}, s{s_wave}, 12")

    def dma():
        for j in range(4):
            k.e(f"s_add_u32 m0, s{s_dstage}, {j * 1024}")
            k.e("s_nop 0")
            k.e(f"buffer_load_dwordx4 v{vdk[j]}, {sr(sK, 4)}, s{s_koff} offen lds")
        for j in range(4):
            k.e(f"s_add_u32 m0, s{s_dstage}, {16384 + j * 1024}")
            k.e("s_nop 0")
            k.e(f"buffer_load_dwordx4 v{vdv[j]}, {sr(sV, 4)}, s{s_koff} offen lds")
        k.e(f"s_add_u32 s{s_koff}, s{s_koff}, 16384")
        k.e(f"s_xor_b32 s{s_dstage}, s{s_dstage}, 32768")

    dma()
    k.e("s_waitcnt vmcnt(0)")
    k.e("s_barrier")
    Lloop = k.label("bloop")
    Lnodma = k.label("nodma")
    k.place(Lloop)
    k.e(f"s_add_u32 s{s_t0}, s{s_kt}, 1")
    k.e(f"s_cmp_ge_u32 s{s_t0}, s{s_nt}")
    k.e(f"s_cbranch_scc1 {Lnodma}")
    dma()
    k.place(Lnodma)
    seq = [(kk, ds) for kk in range(2) for ds in range(8)]
    for n in range(4):
        kk, ds = seq[n]
        k.e(f"ds_read_b128 {vr(F[n % 8], 4)}, v{ak[ds]} offset:{kk * 8192}")
    for n, (kk, ds) in enumerate(seq):
        if n + 4 < 16:
            k2, d2 = seq[n + 4]
            k.e(f"ds_read_b128 {vr(F[(n + 4) % 8], 4)}, v{ak[d2]} offset:{k2 * 8192}")
            k.e("s_waitcnt lgkmcnt(4)")
        else:
            k.e(f"s_waitcnt lgkmcnt({15 - n})")
        cin = "0" if ds == 0 else vr(S + 16 * kk, 16)
        k.e(f"v_mfma_f32_32x32x16_bf16 {vr(S + 16 * kk, 16)}, {vr(F[n % 8], 4)}, {vr(Q + 4 * ds, 4)}, {cin}")
    vseq = [(dt, g) for g in range(4) for dt in range(4)]
    k.e("s_nop 7")
    for n in range(4):
        dt, g = vseq[n]
        k.e(f"ds_read_b128 {vr(F[n % 8], 4)}, v{av[g]} offset:{dt * 4096}")
    k.e("s_nop 7")

    Lnomask = k.label("nomask")
    k.e(f"s_add_u32 s{s_t0}, s{s_kt}, 2")
    k.e(f"s_cmp_lt_u32 s{s_t0}, s{s_nt}")
    k.e(f"s_cbranch_scc1 {Lnomask}")
    k.e(f"s_lshl_b32 s{s_t0}, s{s_kt}, 6")
    k.e(f"v_subrev_u32 v{vdiff}, s{s_t0}, v{vq}")
    k.e(f"v_sub_u32 v{vdiff}, v{vdiff}, v{vh4}")
    k.e(f"v_mov_b32 v{vt0}, {NEG_INF}")
    for kk in range(2):
        for r in range(16):
            cst = 32 * kk + 8 * (r >> 2) + (r & 3)
            k.e(f"v_cmp_gt_i32 vcc, {cst}, v{vdiff}")
            k.e("s_nop 1")
            k.e(f"v_cndmask_b32 v{S + 16 * kk + r}, v{S + 16 * kk + r}, v{vt0}, vcc")
    k.place(Lnomask)
    softmax_tile(k, S, 32, P, vm, vl_, O, 64, s_c, s_thr, vt0, vt1, vt2)
    for n, (dt, g) in enumerate(vseq):
        if n + 4 < 16:
            d2, g2 = vseq[n + 4]
            k.e(f"ds_read_b128 {vr(F[(n + 4) % 8], 4)}, v{av[g2]} offset:{d2 * 4096}")
            k.e("s_waitcnt lgkmcnt(4)")
        else:
            k.e(f"s_waitcnt lgkmcnt({15 - n})")
        k.e(f"v_mfma_f32_32x32x16_bf16 {vr(O + 16 * dt, 16)}, {vr(F[n % 8], 4)}, {vr(P + 4 * g, 4)}, {vr(O + 16 * dt, 16)}")
    for a in ak + av:
        k.e(f"v_xor_b32 v{a}, 0x8000, v{a}")
    k.e(f"s_add_u32 s{s_kt}, s{s_kt}, 1")
    k.e("s_waitcnt vmcnt(0)")
    k.e("s_barrier")
    k.e(f"s_cmp_lt_u32 s{s_kt}, s{s_nt}")
    k.e(f"s_cbranch_scc1 {Lloop}")
    k.e("s_nop 15")
    k.e(f"v_lshlrev_b32 v{vdiff}, 13, v{vq}")
    k.e(f"v_lshl_add_u32 v{vdiff}, v{vh4}, 2, v{vdiff}")
    k.e(f"s_lshl_b32 s{s_t0}, s{s_head}, 8")
    finish_store(k, O, 4, vl_, vt0, vt1, S, vdiff, sO, s_t0)
    k.e(f"s_branch {Lend}")

    k.vn, k.sn = save_v, save_s
    k.place(LA)
    NH = NH_A
    cA = math.log2(math.e) / math.sqrt(32.0)
    make_srd(k, sQ, pw, WS_QA, 4 * MB)
    make_srd(k, sK, pw, WS_KA, 2048 * 64)
    make_srd(k, sV, pw, WS_VA, 2048 * 64)
    make_srd(k, sO, pw, WS_OA, 4 * MB)
    k.e(f"s_mov_b32 s{s_c}, {f32hex(cA)}")
    k.e(f"s_mov_b32 s{s_thr}, {f32hex(8.0 / cA)}")
    s_id, s_hg, s_q0, s_kb, s_ko, s_ho = [k.s() for _ in range(6)]
    k.e(f"s_sub_u32 s{s_id}, s2, 512")
    k.e(f"s_and_b32 s{s_q0}, s{s_id}, 15")
    k.e(f"s_lshr_b32 s{s_hg}, s{s_id}, 4")
    k.e(f"s_lshl_b32 s{s_q0}, s{s_q0}, 7")
    k.e(f"s_lshl_b32 s{s_t0}, s{s_wave}, 5")
    k.e(f"s_add_u32 s{s_q0}, s{s_q0}, s{s_t0}")
    k.e(f"s_mul_i32 s{s_ho}, s{s_hg}, {NH * 64}")
    Q = [k.v(8, 4) for _ in range(NH)]
    O = [k.v(16, 4) for _ in range(NH)]
    S2 = [k.v(32, 4) for _ in range(2)]
    P = k.v(16, 4)
    KF = k.v(16, 4)
    VF = k.v(16, 4)
    vm = [k.v() for _ in range(NH)]
    vl_ = [k.v() for _ in range(NH)]
    vqo, vko, vvo = k.v(), k.v(), k.v()
    k.e(f"v_and_b32 v{vt0}, 31, v{v_lane}")
    k.e(f"v_lshrrev_b32 v{vt2}, 5, v{v_lane}")
    k.e(f"v_add_u32 v{vt1}, s{s_q0}, v{vt0}")
    k.e(f"v_lshlrev_b32 v{vt1}, 11, v{vt1}")
    k.e(f"v_lshl_add_u32 v{vqo}, v{vt2}, 4, v{vt1}")
    for j in range(NH):
        for ks in range(2):
            k.e(f"buffer_load_dwordx4 {vr(Q[j] + 4 * ks, 4)}, v{vqo}, {sr(sQ, 4)}, s{s_ho} offen offset:{j * 64 + ks * 32}")
    k.e(f"v_lshlrev_b32 v{vt1}, 6, v{vt0}")
    k.e(f"v_lshl_add_u32 v{vko}, v{vt2}, 4, v{vt1}")
    k.e(f"v_mov_b32 v{vvo}, v{vko}")
    for j in range(NH):
        for r in range(16):
            k.e(f"v_mov_b32 v{O[j] + r}, 0")
        k.e(f"v_mov_b32 v{vm[j]}, {f32hex(-1e30)}")
        k.e(f"v_mov_b32 v{vl_[j]}, 0")
    k.e(f"s_mov_b32 s{s_kb}, 0")
    k.e(f"s_mov_b32 s{s_ko}, 0")

    def loadK():
        for kk in range(2):
            for ks in range(2):
                k.e(f"buffer_load_dwordx4 {vr(KF + 8 * kk + 4 * ks, 4)}, v{vko}, {sr(sK, 4)}, s{s_ko} offen offset:{kk * 2048 + ks * 32}")

    def loadV():
        for g in range(4):
            k.e(f"buffer_load_dwordx4 {vr(VF + 4 * g, 4)}, v{vvo}, {sr(sV, 4)}, s{s_ko} offen offset:{(g >> 1) * 2048 + (g & 1) * 32}")

    def qk(j, Sb):
        for kk in range(2):
            for ks in range(2):
                cin = "0" if ks == 0 else vr(Sb + 16 * kk, 16)
                k.e(f"v_mfma_f32_32x32x16_bf16 {vr(Sb + 16 * kk, 16)}, {vr(KF + 8 * kk + 4 * ks, 4)}, {vr(Q[j] + 4 * ks, 4)}, {cin}")

    loadK()
    loadV()
    k.e("s_waitcnt vmcnt(0)")
    qk(0, S2[0])
    Lloop = k.label("aloop")
    k.place(Lloop)
    for j in range(NH):
        if j == NH - 1:
            k.e("s_waitcnt vmcnt(0)")
            qk(0, S2[(j + 1) & 1])
        else:
            qk(j + 1, S2[(j + 1) & 1])
            if j == NH - 2:
                k.e(f"s_add_u32 s{s_ko}, s{s_ko}, 4096")
                loadK()
        if j == 0:
            k.e("s_nop 7")
        k.e("s_nop 3")
        softmax_tile(k, S2[j & 1], 32, P, vm[j], vl_[j], O[j], 16, s_c, s_thr, vt0, vt1, vt2)
        if j == 0:
            k.e("s_waitcnt vmcnt(0)")
        k.e("s_nop 1")
        for g in range(4):
            k.e(f"v_mfma_f32_32x32x16_bf16 {vr(O[j], 16)}, {vr(VF + 4 * g, 4)}, {vr(P + 4 * g, 4)}, {vr(O[j], 16)}")
    loadV()
    k.e(f"s_add_u32 s{s_kb}, s{s_kb}, 1")
    k.e(f"s_cmp_lt_u32 s{s_kb}, 32")
    k.e(f"s_cbranch_scc1 {Lloop}")
    k.e("s_nop 15")
    k.e("s_waitcnt vmcnt(0)")
    for j in range(NH):
        k.e(f"s_add_u32 s{s_t0}, s{s_ho}, {j * 64}")
        finish_store(k, O[j], 1, vl_[j], vt0, vt1, S2[0], vqo, sO, s_t0)
    k.place(Lend)
    k.e("s_endpgm")
    return k


def main():
    kernels = [
        (kern_proja(), 288, 256, 72 * 1024),
        (kern_big(), 384, 512, 128 * 1024),
        (kern_attn(), 512 + NWG_A, 256, 64 * 1024),
        (kern_out(), 512, 256, 72 * 1024),
    ]
    out = []
    for kk, g, b, lds in kernels:
        out.append(f"; @launch kernel={kk.name} grid=({g},1,1) block=({b},1,1) lds={lds}")
    out.append('.amdgcn_target "amdgcn-amd-amdhsa--gfx950"')
    out.append(".text")
    for kk, g, b, lds in kernels:
        out.append(f".globl {kk.name}")
        out.append(".p2align 8")
        out.append(f".type {kk.name},@function")
        out.append(f"{kk.name}:")
        out.append(kk.text())
    out.append('.section .rodata,"a"')
    for kk, g, b, lds in kernels:
        nv = (kk.maxv + 7) // 8 * 8
        out.append(".p2align 6")
        out.append(f".amdhsa_kernel {kk.name}")
        out.append(f"  .amdhsa_next_free_vgpr {nv}")
        out.append("  .amdhsa_next_free_sgpr 102")
        out.append(f"  .amdhsa_accum_offset {nv}")
        out.append("  .amdhsa_group_segment_fixed_size 0")
        out.append("  .amdhsa_kernarg_size 112")
        out.append("  .amdhsa_user_sgpr_count 2")
        out.append("  .amdhsa_user_sgpr_kernarg_segment_ptr 1")
        out.append("  .amdhsa_system_sgpr_workgroup_id_x 1")
        out.append(".end_amdhsa_kernel")
    path = sys.argv[1] if len(sys.argv) > 1 else f"cdna_kernels/{NAME}.s"
    open(path, "w").write("\n".join(out) + "\n")
    for kk, g, b, lds in kernels:
        print(kk.name, "vgprs", kk.maxv, "lines", len(kk.lines))


if __name__ == "__main__":
    main()
```

```python
import math
import os
import sys

PROF = int(os.environ.get("PROF", "0"))
PRIO = int(os.environ.get("PRIO", "0"))

NAME = "concat_heads__grouped_kv_mqa__compressed_kv_cla__prompt"

KA_AX, KA_AWQ, KA_AWK, KA_AWV, KA_AWO = 0, 8, 16, 24, 32
KA_BX, KA_CKV, KA_BWQ, KA_WUK, KA_WUV, KA_BWO = 40, 48, 56, 64, 72, 80
KA_OUT, KA_DBG, KA_WS = 88, 96, 104

MB = 1 << 20
WS_QB, WS_KB, WS_VB, WS_CTX = 0, 16 * MB, 32 * MB, 48 * MB
WS_QA, WS_OA, WS_KA, WS_VA = 64 * MB, 68 * MB, 72 * MB, 73 * MB


def log2(x):
    r = int(math.log2(x))
    assert 1 << r == x, x
    return r


class K:
    def __init__(self, name):
        self.name = name
        self.lines = []
        self.vn = 1
        self.sn = 3
        self.maxv = 1
        self.uid = 0

    def v(self, n=1, align=1):
        if n > 1 and align == 1:
            align = 2
        self.vn = (self.vn + align - 1) // align * align
        r = self.vn
        self.vn += n
        self.maxv = max(self.maxv, self.vn)
        assert self.vn <= 256, "out of vgprs"
        return r

    def s(self, n=1, align=1):
        if n == 2:
            align = max(align, 2)
        if n == 4:
            align = max(align, 4)
        self.sn = (self.sn + align - 1) // align * align
        r = self.sn
        self.sn += n
        assert self.sn <= 100, "out of sgprs"
        return r

    def e(self, t):
        self.lines.append("    " + t)

    def c(self, t):
        self.lines.append("    ; " + t)

    def label(self, base):
        self.uid += 1
        return f"L_{self.name}_{base}_{self.uid}"

    def place(self, lab):
        self.lines.append(lab + ":")

    def text(self):
        return "\n".join(self.lines)


def vr(b, n):
    return f"v[{b}:{b + n - 1}]"


def sr(b, n):
    return f"s[{b}:{b + n - 1}]"


class Prof:
    def __init__(self, k, n):
        self.k = k
        self.n = n
        if not PROF:
            return
        self.t = k.s(2)
        self.prev = k.s()
        self.acc = [k.s() for _ in range(n)]
        for a in self.acc:
            k.e(f"s_mov_b32 s{a}, 0")

    def tot_start(self):
        if PROF != 2:
            return
        k = self.k
        k.e(f"s_memtime {sr(self.t, 2)}")
        k.e("s_waitcnt lgkmcnt(0)")
        k.e(f"s_mov_b32 s{self.acc[0]}, s{self.t}")
        k.e(f"s_memrealtime {sr(self.t, 2)}")
        k.e("s_waitcnt lgkmcnt(0)")
        k.e(f"s_mov_b32 s{self.acc[1]}, s{self.t}")

    def tot_end(self):
        if PROF != 2:
            return
        k = self.k
        k.e(f"s_memtime {sr(self.t, 2)}")
        k.e("s_waitcnt lgkmcnt(0)")
        k.e(f"s_sub_u32 s{self.acc[0]}, s{self.t}, s{self.acc[0]}")
        k.e(f"s_memrealtime {sr(self.t, 2)}")
        k.e("s_waitcnt lgkmcnt(0)")
        k.e(f"s_sub_u32 s{self.acc[1]}, s{self.t}, s{self.acc[1]}")

    def start(self):
        if PROF != 1:
            return
        k = self.k
        k.e(f"s_memtime {sr(self.t, 2)}")
        k.e("s_waitcnt lgkmcnt(0)")
        k.e(f"s_mov_b32 s{self.prev}, s{self.t}")

    def stamp(self, i):
        if PROF != 1:
            return
        k = self.k
        k.e(f"s_memtime {sr(self.t, 2)}")
        k.e("s_waitcnt lgkmcnt(0)")
        k.e(f"s_sub_u32 s{self.prev}, s{self.t}, s{self.prev}")
        k.e(f"s_add_u32 s{self.acc[i]}, s{self.acc[i]}, s{self.prev}")
        k.e(f"s_mov_b32 s{self.prev}, s{self.t}")

    def dump(self, pw, srd, vtmp, vtmp2):
        if not PROF or self.k.name != os.environ.get("PROFK", "attn_kernel"):
            return
        k = self.k
        make_srd(k, srd, pw, 80 * MB, 4 * MB)
        k.e(f"v_lshrrev_b32 v{vtmp}, 6, v0")
        k.e(f"v_lshlrev_b32 v{vtmp}, 6, v{vtmp}")
        k.e(f"s_lshl_b32 s{self.prev}, s2, 9")
        for i, a in enumerate(self.acc):
            k.e(f"v_mov_b32 v{vtmp2}, s{a}")
            k.e(f"buffer_store_dword v{vtmp2}, v{vtmp}, {sr(srd, 4)}, s{self.prev} offen offset:{4 * i}")
        k.e("s_waitcnt vmcnt(0)")


def load_ptr(k, sdst, off):
    k.e(f"s_load_dwordx2 {sr(sdst, 2)}, s[0:1], {off}")


def make_srd(k, srd, sptr, off, size):
    if off:
        k.e(f"s_add_u32 s{srd}, s{sptr}, {off:#x}")
        k.e(f"s_addc_u32 s{srd + 1}, s{sptr + 1}, 0")
        k.e(f"s_and_b32 s{srd + 1}, s{srd + 1}, 0xffff")
    else:
        k.e(f"s_mov_b32 s{srd}, s{sptr}")
        k.e(f"s_and_b32 s{srd + 1}, s{sptr + 1}, 0xffff")
    k.e(f"s_mov_b32 s{srd + 2}, {size:#x}")
    k.e(f"s_mov_b32 s{srd + 3}, 0x20000")


class GemmCtx:
    def __init__(self, k):
        self.k = k
        self.sX = k.s(4)
        self.sW = k.s(4)
        self.sO = k.s(4)
        self.ldx, self.ldw, self.nt, self.tm_off, self.tn_off = [k.s() for _ in range(5)]
        self.obase, self.ldo, self.scale = [k.s() for _ in range(3)]
        self.s_wave = k.s()
        self.s_t0, self.s_t1 = k.s(), k.s()
        self.v_lane = k.v()
        self.vt = [k.v() for _ in range(4)]
        self.voff = [[k.v() for _ in range(6)] for _ in range(2)]
        self.sset = [[k.s() for _ in range(14)] for _ in range(2)]
        self.shared_v = None
        self.flip = 0

    def init_ids(self):
        k = self.k
        k.e(f"v_and_b32 v{self.v_lane}, 63, v0")
        k.e(f"v_lshrrev_b32 v{self.vt[0]}, 6, v0")
        k.e("s_nop 0")
        k.e(f"v_readfirstlane_b32 s{self.s_wave}, v{self.vt[0]}")
        k.e("s_nop 3")
        self.shared_v = k.vn


class Gemm:
    def __init__(self, G, WM, WN, TM, TN, BK, NSTAGE, ACROSS, form, epi):
        self.G, self.k = G, G.k
        self.WM, self.WN, self.TM, self.TN, self.BK, self.NSTAGE, self.ACROSS = WM, WN, TM, TN, BK, NSTAGE, ACROSS
        self.form, self.epi = form, epi
        self.NW = WM * WN
        self.BM, self.BN = WM * TM * 32, WN * TN * 32
        self.RX, self.RW = BK * 2, self.BN * 2
        self.CX = self.RX // 16
        self.SX = {64: 2, 128: 1}[self.RX]
        self.XB, self.WB = self.BM * self.RX, BK * self.RW
        self.STAGE = self.XB + self.WB
        self.KS = BK // 16
        self.NXI = self.XB // 1024 // self.NW
        self.NWI = self.WB // 1024 // self.NW
        assert self.NXI * 1024 * self.NW == self.XB and self.NWI * 1024 * self.NW == self.WB
        self.D = self.NXI + self.NWI
        assert self.D <= 6
        self.LEAD = NSTAGE - 1
        self.CERT = 2 if ACROSS else 1
        self.FULL = ACROSS == 2
        self.nstores = 2 * TM * TN

    def _wswz(self, vdst, vkrow):
        k = self.k
        if self.RW >= 256:
            k.e(f"v_and_b32 v{vdst}, 3, v{vkrow}")
        elif self.RW == 128:
            k.e(f"v_lshrrev_b32 v{vdst}, 1, v{vkrow}")
            k.e(f"v_and_b32 v{vdst}, 1, v{vdst}")
        else:
            k.e(f"v_mov_b32 v{vdst}, 0")

    def setup_dma(self):
        k, G = self.k, self.G
        v_lane = G.v_lane
        v_t0, v_t1, v_t2, v_t3 = G.vt
        s_t0, s_wave = G.s_t0, G.s_wave
        regs = G.voff[G.flip]
        sregs = G.sset[G.flip]
        G.flip ^= 1
        self.vox = regs[:self.NXI]
        self.vow = regs[self.NXI:self.NXI + self.NWI]
        LPR, RPI = self.RX // 16, 1024 // self.RX
        for j in range(self.NXI):
            k.e(f"s_mul_i32 s{s_t0}, s{s_wave}, {self.NXI * RPI}")
            k.e(f"s_add_u32 s{s_t0}, s{s_t0}, {j * RPI}")
            k.e(f"v_lshrrev_b32 v{v_t0}, {log2(LPR)}, v{v_lane}")
            k.e(f"v_add_u32 v{v_t0}, s{s_t0}, v{v_t0}")
            k.e(f"v_lshrrev_b32 v{v_t1}, {self.SX}, v{v_t0}")
            k.e(f"v_and_b32 v{v_t1}, {self.CX - 1}, v{v_t1}")
            k.e(f"v_and_b32 v{v_t2}, {LPR - 1}, v{v_lane}")
            k.e(f"v_xor_b32 v{v_t1}, v{v_t1}, v{v_t2}")
            k.e(f"v_mul_lo_u32 v{v_t0}, v{v_t0}, s{G.ldx}")
            k.e(f"v_lshl_add_u32 v{v_t0}, v{v_t1}, 4, v{v_t0}")
            k.e(f"v_add_u32 v{self.vox[j]}, s{G.tm_off}, v{v_t0}")
        LPRW, RPIW = self.RW // 16, 1024 // self.RW
        for j in range(self.NWI):
            k.e(f"s_mul_i32 s{s_t0}, s{s_wave}, {self.NWI * RPIW}")
            k.e(f"s_add_u32 s{s_t0}, s{s_t0}, {j * RPIW}")
            k.e(f"v_lshrrev_b32 v{v_t0}, {log2(LPRW)}, v{v_lane}")
            k.e(f"v_add_u32 v{v_t0}, s{s_t0}, v{v_t0}")
            self._wswz(v_t1, v_t0)
            k.e(f"v_lshlrev_b32 v{v_t1}, 2, v{v_t1}")
            k.e(f"v_and_b32 v{v_t2}, {LPRW - 1}, v{v_lane}")
            k.e(f"v_xor_b32 v{v_t1}, v{v_t1}, v{v_t2}")
            k.e(f"v_mul_lo_u32 v{v_t0}, v{v_t0}, s{G.ldw}")
            k.e(f"v_lshl_add_u32 v{v_t0}, v{v_t1}, 4, v{v_t0}")
            k.e(f"v_add_u32 v{self.vow[j]}, s{G.tn_off}, v{v_t0}")
        (self.s_kx, self.s_kw, self.s_dst, self.s_cur, self.s_nxt, self.s_cnt, self.s_xdst, self.s_wdst,
         self.s_kwstep, self.s_d0, self.s_d1, self.s_nt, self.s_wm, self.s_wn) = sregs
        k.e(f"s_mov_b32 s{self.s_kx}, 0")
        k.e(f"s_mov_b32 s{self.s_kw}, 0")
        k.e(f"s_mov_b32 s{self.s_dst}, 0")
        k.e(f"s_mov_b32 s{self.s_cur}, 0")
        k.e(f"s_mov_b32 s{self.s_nxt}, {self.STAGE}")
        k.e(f"s_mul_i32 s{self.s_xdst}, s{s_wave}, {self.NXI * 1024}")
        k.e(f"s_mul_i32 s{self.s_wdst}, s{s_wave}, {self.NWI * 1024}")
        k.e(f"s_add_u32 s{self.s_wdst}, s{self.s_wdst}, {self.XB}")
        k.e(f"s_mul_i32 s{self.s_kwstep}, s{G.ldw}, {self.BK}")
        k.e(f"s_mov_b32 s{self.s_nt}, s{G.nt}")

    def dma_list(self):
        G = self.G
        out = []
        for j in range(self.NXI):
            g = []
            if j == 0:
                g.append(f"s_add_u32 s{self.s_d0}, s{self.s_dst}, s{self.s_xdst}")
            g.append(f"s_add_u32 m0, s{self.s_d0}, {j * 1024}")
            g.append("s_nop 0")
            g.append(f"buffer_load_dwordx4 v{self.vox[j]}, {sr(G.sX, 4)}, s{self.s_kx} offen lds")
            out.append(g)
        for j in range(self.NWI):
            g = []
            if j == 0:
                g.append(f"s_add_u32 s{self.s_d1}, s{self.s_dst}, s{self.s_wdst}")
            g.append(f"s_add_u32 m0, s{self.s_d1}, {j * 1024}")
            g.append("s_nop 0")
            g.append(f"buffer_load_dwordx4 v{self.vow[j]}, {sr(G.sW, 4)}, s{self.s_kw} offen lds")
            out.append(g)
        out.append([
            f"s_add_u32 s{self.s_kx}, s{self.s_kx}, {self.BK * 2}",
            f"s_add_u32 s{self.s_kw}, s{self.s_kw}, s{self.s_kwstep}",
            f"s_add_u32 s{self.s_dst}, s{self.s_dst}, {self.STAGE}",
            f"s_cmp_eq_u32 s{self.s_dst}, {self.NSTAGE * self.STAGE}",
            f"s_cselect_b32 s{self.s_dst}, 0, s{self.s_dst}",
        ])
        return out

    def issue_prologue(self):
        for t in range(self.LEAD):
            for g in self.dma_list():
                for ln in g:
                    self.k.e(ln)

    def setup_rest(self):
        k, G = self.k, self.G
        k.vn = G.shared_v
        v_lane = G.v_lane
        v_t0, v_t1, v_t2, v_t3 = G.vt
        s_t0 = G.s_t0
        TM, TN, KS, RX, RW = self.TM, self.TN, self.KS, self.RX, self.RW
        k.e(f"s_and_b32 s{self.s_wm}, s{G.s_wave}, {self.WM - 1}")
        k.e(f"s_lshr_b32 s{self.s_wn}, s{G.s_wave}, {log2(self.WM)}")
        self.bx = [k.v() for _ in range(KS)]
        self.bw = [k.v() for _ in range(TN)]
        k.e(f"s_mul_i32 s{s_t0}, s{self.s_wm}, {TM * 32}")
        k.e(f"v_and_b32 v{v_t0}, 31, v{v_lane}")
        k.e(f"v_add_u32 v{v_t0}, s{s_t0}, v{v_t0}")
        k.e(f"v_lshrrev_b32 v{v_t1}, {self.SX}, v{v_t0}")
        k.e(f"v_and_b32 v{v_t1}, {self.CX - 1}, v{v_t1}")
        k.e(f"v_lshrrev_b32 v{v_t2}, 5, v{v_lane}")
        k.e(f"v_xor_b32 v{v_t1}, v{v_t1}, v{v_t2}")
        k.e(f"v_lshlrev_b32 v{v_t0}, {log2(RX)}, v{v_t0}")
        for ks in range(KS):
            k.e(f"v_xor_b32 v{v_t2}, {2 * ks}, v{v_t1}")
            k.e(f"v_lshl_add_u32 v{self.bx[ks]}, v{v_t2}, 4, v{v_t0}")
        k.e(f"v_lshrrev_b32 v{v_t0}, 5, v{v_lane}")
        k.e(f"v_lshlrev_b32 v{v_t0}, 3, v{v_t0}")
        k.e(f"v_bfe_u32 v{v_t1}, v{v_lane}, 2, 2")
        k.e(f"v_add_u32 v{v_t0}, v{v_t0}, v{v_t1}")
        self._wswz(v_t1, v_t0)
        k.e(f"v_lshlrev_b32 v{v_t1}, 2, v{v_t1}")
        k.e(f"v_lshlrev_b32 v{v_t0}, {log2(RW)}, v{v_t0}")
        for f in range(TN):
            k.e(f"s_mul_i32 s{s_t0}, s{self.s_wn}, {TN * 4}")
            k.e(f"s_add_u32 s{s_t0}, s{s_t0}, {4 * f}")
            k.e(f"v_bfe_u32 v{v_t2}, v{v_lane}, 4, 1")
            k.e(f"v_lshlrev_b32 v{v_t2}, 1, v{v_t2}")
            k.e(f"v_bfe_u32 v{v_t3}, v{v_lane}, 1, 1")
            k.e(f"v_add3_u32 v{v_t2}, v{v_t2}, v{v_t3}, s{s_t0}")
            k.e(f"v_xor_b32 v{v_t2}, v{v_t2}, v{v_t1}")
            k.e(f"v_lshl_add_u32 v{v_t2}, v{v_t2}, 4, v{v_t0}")
            k.e(f"v_and_b32 v{v_t3}, 1, v{v_lane}")
            k.e(f"v_lshl_add_u32 v{v_t2}, v{v_t3}, 3, v{v_t2}")
            k.e(f"v_add_u32 v{self.bw[f]}, {self.XB}, v{v_t2}")
        self.acc = [[k.v(16, 4) for f in range(TN)] for i in range(TM)]
        NSET = 2 * KS if self.FULL else (2 if self.ACROSS else KS)
        self.fx = [[k.v(4, 4) for i in range(TM)] for s_ in range(NSET)]
        self.fw = [[k.v(4, 4) for f in range(TN)] for s_ in range(NSET)]
        self.ax = [k.v() for _ in range(KS)]
        self.aw_c = [k.v() for _ in range(TN)]
        self.aw_n = [k.v() for _ in range(TN)] if self.ACROSS else None
        self.end_vn = k.vn
        for i in range(TM):
            for f in range(TN):
                for r in range(16):
                    k.e(f"v_mov_b32 v{self.acc[i][f] + r}, 0")

    def reads(self, ks, st, axr, awr):
        out = []
        for i in range(self.TM):
            out.append(f"ds_read_b128 {vr(self.fx[st][i], 4)}, v{axr} offset:{i * 32 * self.RX}")
        for f in range(self.TN):
            for p in range(2):
                out.append(f"ds_read_b64_tr_b16 {vr(self.fw[st][f] + 2 * p, 2)}, v{awr[f]} offset:{(16 * ks + 4 * p) * self.RW}")
        return out

    def mfmas(self, st):
        out = []
        for i in range(self.TM):
            for f in range(self.TN):
                a, b = (self.fw[st][f], self.fx[st][i]) if self.form == "T" else (self.fx[st][i], self.fw[st][f])
                out.append(f"v_mfma_f32_32x32x16_bf16 {vr(self.acc[i][f], 16)}, {vr(a, 4)}, {vr(b, 4)}, {vr(self.acc[i][f], 16)}")
        return out

    def wait_prologue(self, extra=0):
        k = self.k
        k.e(f"s_waitcnt vmcnt({min(63, extra + (self.LEAD - self.CERT) * self.D)})")
        k.e("s_barrier")
        if self.FULL:
            for ks in range(self.KS):
                for ln in self.reads(ks, ks, self.bx[ks], self.bw):
                    k.e(ln)
        elif self.ACROSS:
            for f in range(self.TN):
                k.e(f"v_mov_b32 v{self.aw_c[f]}, v{self.bw[f]}")
            k.e(f"v_mov_b32 v{self.ax[0]}, v{self.bx[0]}")
            for ln in self.reads(0, 0, self.ax[0], self.aw_c):
                k.e(ln)

    def _interleave(self, main, fill, per=1):
        k = self.k
        fill = list(fill)
        for m in main:
            k.e(m)
            for _ in range(per):
                if fill:
                    it = fill.pop(0)
                    for ln in it if isinstance(it, list) else [it]:
                        k.e(ln)
        for it in fill:
            for ln in it if isinstance(it, list) else [it]:
                k.e(ln)

    def _body(self, with_dma):
        k = self.k
        TN, KS = self.TN, self.KS
        dm = self.dma_list() if with_dma else []
        if self.ACROSS:
            assert KS == 2
            k.e(f"v_add_u32 v{self.ax[1]}, s{self.s_cur}, v{self.bx[1]}")
            for f in range(TN):
                k.e(f"v_add_u32 v{self.aw_c[f]}, s{self.s_cur}, v{self.bw[f]}")
            k.e(f"v_add_u32 v{self.ax[0]}, s{self.s_nxt}, v{self.bx[0]}")
            for f in range(TN):
                k.e(f"v_add_u32 v{self.aw_n[f]}, s{self.s_nxt}, v{self.bw[f]}")
            k.e("s_waitcnt lgkmcnt(0)")
            self._interleave(self.mfmas(0), self.reads(1, 1, self.ax[1], self.aw_c), per=2)
            k.e("s_waitcnt lgkmcnt(0)")
            self._interleave(self.mfmas(1), self.reads(0, 0, self.ax[0], self.aw_n) + dm, per=2)
        else:
            for ks in range(KS):
                k.e(f"v_add_u32 v{self.ax[ks]}, s{self.s_cur}, v{self.bx[ks]}")
            for f in range(TN):
                k.e(f"v_add_u32 v{self.aw_c[f]}, s{self.s_cur}, v{self.bw[f]}")
            nr = self.TM + 2 * TN
            for ks in range(KS):
                for ln in self.reads(ks, ks, self.ax[ks], self.aw_c):
                    k.e(ln)
            for g in dm:
                for ln in g:
                    k.e(ln)
            for ks in range(KS):
                k.e(f"s_waitcnt lgkmcnt({min(15, (KS - 1 - ks) * nr)})")
                for ln in self.mfmas(ks):
                    k.e(ln)
        k.e(f"s_mov_b32 s{self.s_cur}, s{self.s_nxt}")
        k.e(f"s_add_u32 s{self.s_nxt}, s{self.s_nxt}, {self.STAGE}")
        k.e(f"s_cmp_eq_u32 s{self.s_nxt}, {self.NSTAGE * self.STAGE}")
        k.e(f"s_cselect_b32 s{self.s_nxt}, 0, s{self.s_nxt}")
        if with_dma:
            k.e(f"s_waitcnt vmcnt({(self.LEAD - self.CERT) * self.D})")
        else:
            k.e("s_waitcnt vmcnt(0)")
        k.e("s_barrier")

    def _body_full(self, par):
        k = self.k
        TN, KS = self.TN, self.KS
        for ks in range(KS):
            k.e(f"v_add_u32 v{self.ax[ks]}, s{self.s_nxt}, v{self.bx[ks]}")
        for f in range(TN):
            k.e(f"v_add_u32 v{self.aw_c[f]}, s{self.s_nxt}, v{self.bw[f]}")
        k.e("s_waitcnt lgkmcnt(0)")
        rd = []
        for ks in range(KS):
            rd += self.reads(ks, (par ^ 1) * KS + ks, self.ax[ks], self.aw_c)
        mf = []
        for ks in range(KS):
            mf += self.mfmas(par * KS + ks)
        per = (len(rd) + len(mf) - 1) // len(mf)
        self._interleave(mf, rd, per=per)
        Ls, Lj = k.label("nd"), k.label("jn")
        k.e(f"s_add_u32 s{self.s_nxt}, s{self.s_nxt}, {self.STAGE}")
        k.e(f"s_cmp_eq_u32 s{self.s_nxt}, {self.NSTAGE * self.STAGE}")
        k.e(f"s_cselect_b32 s{self.s_nxt}, 0, s{self.s_nxt}")
        k.e(f"s_cmp_le_u32 s{self.s_cnt}, {self.LEAD}")
        k.e(f"s_cbranch_scc1 {Ls}")
        for g in self.dma_list():
            for ln in g:
                k.e(ln)
        k.e(f"s_waitcnt vmcnt({(self.LEAD - self.CERT) * self.D})")
        k.e(f"s_branch {Lj}")
        k.place(Ls)
        k.e("s_waitcnt vmcnt(0)")
        k.place(Lj)
        k.e(f"s_sub_u32 s{self.s_cnt}, s{self.s_cnt}, 1")
        k.e("s_barrier")

    def loop(self):
        k = self.k
        if self.FULL:
            k.e(f"s_mov_b32 s{self.s_cnt}, s{self.s_nt}")
            L1 = k.label("main")
            k.place(L1)
            self._body_full(0)
            self._body_full(1)
            k.e(f"s_cmp_lg_u32 s{self.s_cnt}, 0")
            k.e(f"s_cbranch_scc1 {L1}")
            k.e("s_waitcnt lgkmcnt(0)")
            k.e("s_nop 15")
            return
        k.e(f"s_sub_u32 s{self.s_cnt}, s{self.s_nt}, {self.LEAD}")
        L1 = k.label("main")
        k.place(L1)
        self._body(True)
        k.e(f"s_sub_u32 s{self.s_cnt}, s{self.s_cnt}, 1")
        k.e(f"s_cmp_lg_u32 s{self.s_cnt}, 0")
        k.e(f"s_cbranch_scc1 {L1}")
        k.e(f"s_mov_b32 s{self.s_cnt}, {self.LEAD}")
        L2 = k.label("tail")
        k.place(L2)
        self._body(False)
        k.e(f"s_sub_u32 s{self.s_cnt}, s{self.s_cnt}, 1")
        k.e(f"s_cmp_lg_u32 s{self.s_cnt}, 0")
        k.e(f"s_cbranch_scc1 {L2}")
        k.e("s_waitcnt lgkmcnt(0)")
        k.e("s_nop 15")

    def epilogue(self):
        k = self.k
        save = k.vn
        k.vn = self.end_vn
        self.epi(k, self.G, self)
        k.vn = max(save, self.G.shared_v)


def run_chain(k, G, jobs):
    prev = None
    pg = getattr(G, "prof", None)
    for ji, (set_in, set_out, g) in enumerate(jobs):
        set_in()
        g.setup_dma()
        g.issue_prologue()
        extra = 0
        if prev is not None:
            prev.epilogue()
            extra = prev.nstores
        set_out()
        g.setup_rest()
        g.wait_prologue(extra)
        if pg:
            pg.stamp(2 * ji)
        g.loop()
        if pg:
            pg.stamp(2 * ji + 1)
        prev = g
    return prev


def lds_epi_setup(k, G, RB, row_stride_sreg=None, row_stride_shift=None):
    vl = G.v_lane
    vw, vrd, vgo, vt = k.v(), k.v(), k.v(), k.v()
    CPR = RB // 16
    RPI = 64 // CPR
    s0 = G.s_t0
    k.e(f"s_lshl_b32 s{s0}, s{G.s_wave}, 12")
    k.e(f"s_add_u32 s{s0}, s{s0}, {G.epi_base}")
    k.e(f"v_and_b32 v{vt}, 31, v{vl}")
    k.e(f"v_lshlrev_b32 v{vw}, {log2(RB)}, v{vt}")
    k.e(f"v_add_u32 v{vw}, s{s0}, v{vw}")
    k.e(f"v_and_b32 v{vt}, {CPR - 1}, v{vt}")
    k.e(f"v_lshrrev_b32 v{vrd}, 5, v{vl}")
    k.e(f"v_xor_b32 v{vt}, v{vt}, v{vrd}")
    k.e(f"v_lshl_add_u32 v{vw}, v{vt}, 4, v{vw}")
    k.e(f"v_lshrrev_b32 v{vt}, {log2(CPR)}, v{vl}")
    k.e(f"v_xor_b32 v{vrd}, v{vt}, v{vl}")
    k.e(f"v_and_b32 v{vrd}, {CPR - 1}, v{vrd}")
    k.e(f"v_lshlrev_b32 v{vrd}, 4, v{vrd}")
    k.e(f"v_lshl_add_u32 v{vrd}, v{vt}, {log2(RB)}, v{vrd}")
    k.e(f"v_add_u32 v{vrd}, s{s0}, v{vrd}")
    if row_stride_sreg is not None:
        k.e(f"v_mul_lo_u32 v{vgo}, v{vt}, s{row_stride_sreg}")
    else:
        k.e(f"v_lshlrev_b32 v{vgo}, {row_stride_shift}, v{vt}")
    k.e(f"v_and_b32 v{vt}, {CPR - 1}, v{vl}")
    k.e(f"v_lshl_add_u32 v{vgo}, v{vt}, 4, v{vgo}")
    return vw, vrd, vgo, vt


def epi_rowmajor(k, G, g):
    TM, TN = g.TM, g.TN
    acc = g.acc
    s0, s1 = G.s_t0, G.s_t1
    RB = TN * 64
    CPR = RB // 16
    RPI = 64 // CPR
    NQ = 32 // RPI
    k.c("---- epilogue row-major")
    vw, vrd, vgo, vt = lds_epi_setup(k, G, RB, row_stride_sreg=G.ldo)
    s2_ = k.s()
    k.e(f"s_mul_i32 s{s0}, s{g.s_wm}, {TM * 32}")
    k.e(f"s_mul_i32 s{s0}, s{s0}, s{G.ldo}")
    k.e(f"s_add_u32 s{s0}, s{s0}, s{G.obase}")
    k.e(f"s_mul_i32 s{s1}, s{g.s_wn}, {TN * 64}")
    k.e(f"s_add_u32 s{s0}, s{s0}, s{s1}")
    k.e(f"s_mul_i32 s{s1}, s{G.ldo}, {RPI}")
    for i in range(TM):
        for f in range(TN):
            a = acc[i][f]
            t = a
            for r in range(16):
                k.e(f"v_mul_f32 v{a + r}, s{G.scale}, v{a + r}")
            for j in range(8):
                k.e(f"v_cvt_pk_bf16_f32 v{t + j}, v{a + 2 * j}, v{a + 2 * j + 1}")
            k.e("s_nop 1")
            k.e(f"v_permlane32_swap_b32 v{t}, v{t + 2}")
            k.e(f"v_permlane32_swap_b32 v{t + 1}, v{t + 3}")
            k.e(f"v_permlane32_swap_b32 v{t + 4}, v{t + 6}")
            k.e(f"v_permlane32_swap_b32 v{t + 5}, v{t + 7}")
            for jj in range(2):
                c2 = 4 * f + 2 * jj
                if c2:
                    k.e(f"v_xor_b32 v{vt}, {c2 << 4}, v{vw}")
                    k.e(f"ds_write_b128 v{vt}, {vr(t + 4 * jj, 4)}")
                else:
                    k.e("s_nop 0")
                    k.e(f"ds_write_b128 v{vw}, {vr(t + 4 * jj, 4)}")
        k.e("s_waitcnt lgkmcnt(0)")
        dst = [acc[i][q // 2] + 8 + 4 * (q % 2) for q in range(NQ)]
        for q in range(NQ):
            k.e(f"ds_read_b128 {vr(dst[q], 4)}, v{vrd} offset:{q * RPI * RB}")
        for q in range(NQ):
            k.e(f"s_waitcnt lgkmcnt({NQ - 1 - q})")
            k.e(f"buffer_store_dwordx4 {vr(dst[q], 4)}, v{vgo}, {sr(G.sO, 4)}, s{s0} offen")
            k.e(f"s_add_u32 s{s0}, s{s0}, s{s1}")
    k.e("s_nop 1")
    k.sn -= 1


def make_epi_vt(KPB, FS, BS):
    def epi(k, G, g):
        TM, TN = g.TM, g.TN
        acc = g.acc
        s0, s1 = G.s_t0, G.s_t1
        RB = KPB * 2
        assert RB == FS
        CPR = RB // 16
        RPI = 64 // CPR
        NQ = 32 // RPI
        IPB = KPB // 32
        k.c("---- epilogue V^T")
        vw, vrd, vgo, vt = lds_epi_setup(k, G, RB, row_stride_shift=log2(FS))
        assert (TM * 32) % KPB == 0
        k.e(f"s_mul_i32 s{s0}, s{g.s_wm}, {TM * 32 // KPB * BS}")
        k.e(f"s_add_u32 s{s0}, s{s0}, s{G.obase}")
        k.e(f"s_mul_i32 s{s1}, s{g.s_wn}, {TN * 32 * FS}")
        k.e(f"s_add_u32 s{s0}, s{s0}, s{s1}")
        for f in range(TN):
            for blk in range(TM // IPB):
                for ii in range(IPB):
                    a = acc[blk * IPB + ii][f]
                    t = a
                    for j in range(8):
                        k.e(f"v_cvt_pk_bf16_f32 v{t + j}, v{a + 2 * j}, v{a + 2 * j + 1}")
                    for jj in range(2):
                        c2 = 4 * ii + 2 * jj
                        if c2:
                            k.e(f"v_xor_b32 v{vt}, {c2 << 4}, v{vw}")
                            k.e(f"ds_write_b128 v{vt}, {vr(t + 4 * jj, 4)}")
                        else:
                            k.e("s_nop 0")
                            k.e(f"ds_write_b128 v{vw}, {vr(t + 4 * jj, 4)}")
                k.e("s_waitcnt lgkmcnt(0)")
                dst = [acc[blk * IPB + q // 2][f] + 8 + 4 * (q % 2) for q in range(NQ)]
                for q in range(NQ):
                    k.e(f"ds_read_b128 {vr(dst[q], 4)}, v{vrd} offset:{q * RPI * RB}")
                for q in range(NQ):
                    k.e(f"s_add_u32 s{s1}, s{s0}, {blk * BS + f * 32 * FS + q * RPI * FS}")
                    k.e(f"s_waitcnt lgkmcnt({NQ - 1 - q})")
                    k.e(f"buffer_store_dwordx4 {vr(dst[q], 4)}, v{vgo}, {sr(G.sO, 4)}, s{s1} offen")
        k.e("s_nop 1")

    return epi


def kern_proj():
    k = K("proj_kernel")
    G = GemmCtx(k)
    G.epi_base = 128 * 1024
    pBX, pBWQ, pCKV, pWUK, pWUV, pAX, pAWQ, pAWK, pAWV, pWS = [k.s(2) for _ in range(10)]
    s_id, s_tm, s_tn, s_t = k.s(), k.s(), k.s(), k.s()
    Lend, Lkv = k.label("end"), k.label("kv")
    k.e("s_cmp_ge_u32 s2, 256")
    k.e(f"s_cbranch_scc1 {Lend}")
    for p, off in ((pBX, KA_BX), (pBWQ, KA_BWQ), (pCKV, KA_CKV), (pWUK, KA_WUK), (pWUV, KA_WUV), (pAX, KA_AX),
                   (pAWQ, KA_AWQ), (pAWK, KA_AWK), (pAWV, KA_AWV), (pWS, KA_WS)):
        load_ptr(k, p, off)
    G.init_ids()
    k.e(f"s_and_b32 s{s_id}, s2, 127")
    k.e(f"s_and_b32 s{s_tm}, s{s_id}, 7")
    k.e(f"s_lshr_b32 s{s_tn}, s{s_id}, 3")
    k.e("s_waitcnt lgkmcnt(0)")
    G.prof = Prof(k, 6)
    G.prof.start()

    def big_in(px, xsz, pw_, wsz, ldx, nt, tmshift):
        def f():
            make_srd(k, G.sX, px, 0, xsz)
            make_srd(k, G.sW, pw_, 0, wsz)
            k.e(f"s_mov_b32 s{G.ldx}, {ldx}")
            k.e(f"s_mov_b32 s{G.ldw}, 8192")
            k.e(f"s_mov_b32 s{G.nt}, {nt}")
            k.e(f"s_lshl_b32 s{G.tm_off}, s{s_tm}, {tmshift}")
            k.e(f"s_lshl_b32 s{G.tn_off}, s{s_tn}, 9")
        return f

    def big_out(wsoff, scale, fix):
        def f():
            make_srd(k, G.sO, pWS, wsoff, 16 * MB)
            k.e(f"s_mov_b32 s{G.scale}, {scale}")
            k.e(f"s_mov_b32 s{G.ldo}, 256")
            k.e(f"s_lshl_b32 s{G.obase}, s{s_tn}, 20")
            k.e(f"s_lshl_b32 s{s_t}, s{s_tm}, 16")
            k.e(f"s_add_u32 s{G.obase}, s{G.obase}, s{s_t}")
            k.e(f"s_lshr_b32 s{s_t}, s{G.s_wave}, 2")
            k.e(f"s_mul_i32 s{s_t}, s{s_t}, {fix}")
            k.e(f"s_add_u32 s{G.obase}, s{G.obase}, s{s_t}")
        return f

    def qa_in():
        make_srd(k, G.sX, pAX, 0, 2048 * 1024 * 2)
        make_srd(k, G.sW, pAWQ, 0, 1024 * 1024 * 2)
        k.e(f"s_mov_b32 s{G.ldx}, 2048")
        k.e(f"s_mov_b32 s{G.ldw}, 2048")
        k.e(f"s_mov_b32 s{G.nt}, 16")
        k.e(f"s_and_b32 s{s_t}, s2, 15")
        k.e(f"s_lshl_b32 s{G.tm_off}, s{s_t}, 18")
        k.e(f"s_lshr_b32 s{s_t}, s2, 4")
        k.e(f"s_lshl_b32 s{G.tn_off}, s{s_t}, 7")

    def qa_out():
        make_srd(k, G.sO, pWS, WS_QA, 4 * MB)
        k.e(f"s_mov_b32 s{G.scale}, {f32hex(CA)}")
        k.e(f"s_mov_b32 s{G.ldo}, 2048")
        k.e(f"s_add_u32 s{G.obase}, s{G.tm_off}, s{G.tn_off}")

    def kva_in(pw_):
        def f():
            make_srd(k, G.sX, pAX, 0, 2048 * 1024 * 2)
            make_srd(k, G.sW, pw_, 0, 1024 * 32 * 2)
            k.e(f"s_mov_b32 s{G.ldx}, 2048")
            k.e(f"s_mov_b32 s{G.ldw}, 64")
            k.e(f"s_mov_b32 s{G.nt}, 16")
            k.e(f"s_and_b32 s{s_t}, s2, 15")
            k.e(f"s_lshl_b32 s{G.tm_off}, s{s_t}, 18")
            k.e(f"s_mov_b32 s{G.tn_off}, 0")
        return f

    def kva_out(wsoff):
        def f():
            make_srd(k, G.sO, pWS, wsoff, 2048 * 64)
            k.e(f"s_mov_b32 s{G.scale}, 1.0")
            k.e(f"s_mov_b32 s{G.ldo}, 64")
            k.e(f"s_and_b32 s{s_t}, s2, 15")
            k.e(f"s_lshl_b32 s{G.obase}, s{s_t}, 13")
        return f

    BIG = (2, 4, 4, 2, 32, 4, True)
    MINI = (4, 2, 1, 1, 64, 5, 2)
    KVA = (4, 1, 1, 1, 64, 5, False)
    save_s = k.sn

    def tail_jobs(first_jobs):
        last = run_chain(k, G, first_jobs + [(qa_in, qa_out, Gemm(G, *MINI, "T", epi_rowmajor))])
        last.epilogue()
        G.prof.dump(pWS, G.sX, G.vt[0], G.vt[1])
        G.prof_saved, G.prof = G.prof, None

    k.e("s_cmp_ge_u32 s2, 128")
    k.e(f"s_cbranch_scc1 {Lkv}")
    tail_jobs([(big_in(pBX, 2048 * 1024 * 2, pBWQ, 1024 * 4096 * 2, 2048, 32, 19),
                big_out(WS_QB, f32hex(CB), 524288 - 256), Gemm(G, *BIG, "T", epi_rowmajor))])
    Lidle, Lv = k.label("idle"), k.label("va")
    k.e("s_cmp_ge_u32 s2, 32")
    k.e(f"s_cbranch_scc1 {Lend}")
    k.e(f"s_cmp_ge_u32 s{G.s_wave}, 4")
    k.e(f"s_cbranch_scc1 {Lidle}")
    k.e("s_cmp_ge_u32 s2, 16")
    k.e(f"s_cbranch_scc1 {Lv}")
    k.sn = save_s
    run_chain(k, G, [(kva_in(pAWK), kva_out(WS_KA), Gemm(G, *KVA, "T", epi_rowmajor))]).epilogue()
    k.e(f"s_branch {Lend}")
    k.place(Lv)
    k.sn = save_s
    run_chain(k, G, [(kva_in(pAWV), kva_out(WS_VA), Gemm(G, *KVA, "N", make_epi_vt(32, 64, 2048)))]).epilogue()
    k.e(f"s_branch {Lend}")
    k.place(Lidle)
    k.e(f"s_mov_b32 s{s_t}, 17")
    Lb = k.label("idlel")
    k.place(Lb)
    k.e("s_barrier")
    k.e(f"s_sub_u32 s{s_t}, s{s_t}, 1")
    k.e(f"s_cmp_lg_u32 s{s_t}, 0")
    k.e(f"s_cbranch_scc1 {Lb}")
    k.e(f"s_branch {Lend}")
    k.place(Lkv)
    k.sn = save_s
    G.prof = G.prof_saved

    def v_out():
        make_srd(k, G.sO, pWS, WS_VB, 16 * MB)
        k.e(f"s_lshl_b32 s{G.obase}, s{s_tn}, 20")
        k.e(f"s_lshl_b32 s{s_t}, s{s_tm}, 16")
        k.e(f"s_add_u32 s{G.obase}, s{G.obase}, s{s_t}")
        k.e(f"s_lshr_b32 s{s_t}, s{G.s_wave}, 2")
        k.e(f"s_mul_i32 s{s_t}, s{s_t}, {524288 - 16384}")
        k.e(f"s_add_u32 s{G.obase}, s{G.obase}, s{s_t}")

    tail_jobs([(big_in(pCKV, 2048 * 512 * 2, pWUK, 512 * 4096 * 2, 1024, 16, 18),
                big_out(WS_KB, "1.0", 524288 - 256), Gemm(G, *BIG, "T", epi_rowmajor)),
               (big_in(pCKV, 2048 * 512 * 2, pWUV, 512 * 4096 * 2, 1024, 16, 18),
                v_out, Gemm(G, *BIG, "N", make_epi_vt(64, 128, 16384)))])
    k.place(Lend)
    k.e("s_endpgm")
    return k


def kern_out():
    k = K("outp_kernel")
    G = GemmCtx(k)
    G.epi_base = 120 * 1024
    pWS, pOUT, pBWO, pAWO = [k.s(2) for _ in range(4)]
    s_tm, s_tn, s_t = k.s(), k.s(), k.s()
    Lend = k.label("end")
    k.e("s_cmp_ge_u32 s2, 256")
    k.e(f"s_cbranch_scc1 {Lend}")
    for p, off in ((pWS, KA_WS), (pOUT, KA_OUT), (pBWO, KA_BWO), (pAWO, KA_AWO)):
        load_ptr(k, p, off)
    G.init_ids()
    k.e(f"s_and_b32 s{s_tm}, s2, 15")
    k.e(f"s_lshr_b32 s{s_tn}, s2, 4")
    k.e("s_waitcnt lgkmcnt(0)")
    G.prof = Prof(k, 6)
    G.prof.start()

    def j_in(wsoff, xsz, pw_, wsz, ldx, nt, sh):
        def f():
            make_srd(k, G.sX, pWS, wsoff, xsz)
            make_srd(k, G.sW, pw_, 0, wsz)
            k.e(f"s_mov_b32 s{G.ldx}, {ldx}")
            k.e(f"s_mov_b32 s{G.ldw}, 2048")
            k.e(f"s_mov_b32 s{G.nt}, {nt}")
            k.e(f"s_lshl_b32 s{G.tm_off}, s{s_tm}, {sh}")
            k.e(f"s_lshl_b32 s{G.tn_off}, s{s_tn}, 7")
        return f

    def j_out(col):
        def f():
            make_srd(k, G.sO, pOUT, 0, 2048 * 2048 * 2)
            k.e(f"s_mov_b32 s{G.scale}, 1.0")
            k.e(f"s_mov_b32 s{G.ldo}, 4096")
            k.e(f"s_lshl_b32 s{G.obase}, s{s_tm}, 19")
            k.e(f"s_lshl_b32 s{s_t}, s{s_tn}, 7")
            k.e(f"s_add_u32 s{G.obase}, s{G.obase}, s{s_t}")
            if col:
                k.e(f"s_add_u32 s{G.obase}, s{G.obase}, {col}")
        return f

    CFG = (4, 2, 1, 1, 64, 5, 2)
    last = run_chain(k, G, [
        (j_in(WS_CTX, 16 * MB, pBWO, 4096 * 1024 * 2, 8192, 64, 20), j_out(2048), Gemm(G, *CFG, "T", epi_rowmajor)),
        (j_in(WS_OA, 4 * MB, pAWO, 1024 * 1024 * 2, 2048, 16, 18), j_out(0), Gemm(G, *CFG, "T", epi_rowmajor)),
    ])
    last.epilogue()
    G.prof.dump(pWS, G.sX, G.vt[0], G.vt[1])
    k.place(Lend)
    k.e("s_endpgm")
    return k


NEG_INF = "0xff800000"
NWG_A = 512
CB = math.log2(math.e) / math.sqrt(128.0)
CA = math.log2(math.e) / math.sqrt(32.0)
THR = float(os.environ.get("THR", "32"))


def f32hex(x):
    import struct

    return "0x%08x" % struct.unpack("<I", struct.pack("<f", x))[0]


def weave(k, main, fills):
    for ln in fills.get(-1, []):
        k.e(ln)
    for i, m in enumerate(main):
        k.e(m)
        for ln in fills.get(i, []):
            k.e(ln)


def max_tree(S, n, vt):
    out = [f"v_max3_f32 v{vt}, v{S}, v{S + 1}, v{S + 2}"]
    i = 3
    while i + 1 < n:
        out.append(f"v_max3_f32 v{vt}, v{vt}, v{S + i}, v{S + i + 1}")
        i += 2
    if i < n:
        out.append(f"v_max_f32 v{vt}, v{vt}, v{S + i}")
    return out


def xhalf_max(k, vt0, vt1):
    k.e(f"v_mov_b32 v{vt1}, v{vt0}")
    k.e("s_nop 1")
    k.e(f"v_permlane32_swap_b32 v{vt0}, v{vt1}")
    k.e("s_nop 1")
    k.e(f"v_max_f32 v{vt0}, v{vt0}, v{vt1}")


def first_tile_norm(k, S, CI, vt0, vt1):
    for ln in max_tree(S, 32, vt0):
        k.e(ln)
    xhalf_max(k, vt0, vt1)
    for r in range(32):
        k.e(f"v_sub_f32 v{S + r}, v{S + r}, v{vt0}")
    k.e(f"v_sub_f32 v{vt1}, 0, v{vt0}")
    for r in range(16):
        k.e(f"v_mov_b32 v{CI + r}, v{vt1}")


def check_rescale(k, Sn, CI, O, nO, lacc, vt0, vt1, lsum_mfma=False):
    xhalf_max(k, vt0, vt1)
    k.e(f"v_cmp_lt_f32 vcc, {THR}, v{vt0}") if THR in (0.5, 1.0, 2.0, 4.0) else k.e(
        f"v_cmp_lt_f32 vcc, {f32hex(THR)}, v{vt0}")
    Ls = k.label("nors")
    k.e(f"s_cbranch_vccz {Ls}")
    k.e(f"v_max_f32 v{vt0}, 0, v{vt0}")
    k.e(f"v_sub_f32 v{vt1}, 0, v{vt0}")
    k.e(f"v_exp_f32 v{vt1}, v{vt1}")
    for r in range(32):
        k.e(f"v_sub_f32 v{Sn + r}, v{Sn + r}, v{vt0}")
    for r in range(16):
        k.e(f"v_sub_f32 v{CI + r}, v{CI + r}, v{vt0}")
    k.e("s_nop 7")
    k.e(f"v_mul_f32 v{lacc}, v{lacc}, v{vt1}")
    if not lsum_mfma:
        k.e(f"v_mul_f32 v{lacc + 1}, v{lacc + 1}, v{vt1}")
    for r in range(nO):
        k.e(f"v_mul_f32 v{O + r}, v{O + r}, v{vt1}")
    k.e("s_nop 1")
    k.place(Ls)


def finish_store(k, O, ntile, lacc, vt0, vt1, vo, srd, soff, lsum_mfma=False, s_bad=None, lowchk=False):
    def chk(v):
        if s_bad is None:
            return
        k.e(f"v_mov_b32 v{vt1}, {f32hex(LSAFE)}")
        k.e(f"v_cmp_nlt_f32 vcc, v{v}, v{vt1}")
        k.e("s_nop 1")
        k.e(f"s_or_b32 s{s_bad}, s{s_bad}, vcc_lo")
        k.e(f"s_or_b32 s{s_bad}, s{s_bad}, vcc_hi")
        if lowchk:
            k.e(f"v_mov_b32 v{vt1}, {f32hex(2.0 ** -60)}")
            k.e(f"v_cmp_ngt_f32 vcc, v{v}, v{vt1}")
            k.e("s_nop 1")
            k.e(f"s_or_b32 s{s_bad}, s{s_bad}, vcc_lo")
            k.e(f"s_or_b32 s{s_bad}, s{s_bad}, vcc_hi")

    if lsum_mfma:
        chk(lacc)
        k.e(f"v_rcp_f32 v{vt0}, v{lacc}")
    else:
        k.e(f"v_add_f32 v{vt0}, v{lacc}, v{lacc + 1}")
        k.e(f"v_mov_b32 v{vt1}, v{vt0}")
        k.e("s_nop 1")
        k.e(f"v_permlane32_swap_b32 v{vt0}, v{vt1}")
        k.e("s_nop 1")
        k.e(f"v_add_f32 v{vt0}, v{vt0}, v{vt1}")
        chk(vt0)
        k.e(f"v_rcp_f32 v{vt0}, v{vt0}")
    k.e("s_nop 0")
    for dt in range(ntile):
        a = O + 16 * dt
        tt = a
        for r in range(16):
            k.e(f"v_mul_f32 v{a + r}, v{a + r}, v{vt0}")
        for j in range(8):
            k.e(f"v_cvt_pk_bf16_f32 v{tt + j}, v{a + 2 * j}, v{a + 2 * j + 1}")
        k.e("s_nop 1")
        k.e(f"v_permlane32_swap_b32 v{tt}, v{tt + 2}")
        k.e(f"v_permlane32_swap_b32 v{tt + 1}, v{tt + 3}")
        k.e(f"v_permlane32_swap_b32 v{tt + 4}, v{tt + 6}")
        k.e(f"v_permlane32_swap_b32 v{tt + 5}, v{tt + 7}")
        k.e("s_nop 1")
        k.e(f"buffer_store_dwordx4 {vr(tt, 4)}, v{vo}, {sr(srd, 4)}, s{soff} offen offset:{dt * 64}")
        k.e(f"buffer_store_dwordx4 {vr(tt + 4, 4)}, v{vo}, {sr(srd, 4)}, s{soff} offen offset:{dt * 64 + 32}")
    k.e("s_nop 1")


KT = 16640
ABASE = 4 * KT
VOTE_OFF = 0
ATTN_LDS = ABASE + 3 * 16384
FASTMAX = int(os.environ.get("FASTMAX", "1"))
AONES = int(os.environ.get("AONES", "0"))
LSAFE = float(os.environ.get("LSAFE", str(2.0 ** 100)))


def kern_attn():
    k = K("attn_kernel")
    Lend = k.label("end")
    k.e("s_cmp_ge_u32 s2, 256")
    k.e(f"s_cbranch_scc1 {Lend}")
    pw = k.s(2)
    load_ptr(k, pw, KA_WS)
    sQ, sK, sV, sO = k.s(4), k.s(4), k.s(4), k.s(4)
    s_wave = k.s()
    s_t0, s_t1 = k.s(), k.s()
    s_pass = k.s()
    s_wave0, s_bad = k.s(), k.s()
    v_lane, vt0, vt1, vt2 = k.v(), k.v(), k.v(), k.v()
    k.e(f"v_and_b32 v{v_lane}, 63, v0")
    k.e(f"v_lshrrev_b32 v{vt0}, 6, v0")
    k.e("s_nop 0")
    k.e(f"v_readfirstlane_b32 s{s_wave0}, v{vt0}")
    k.e(f"s_mov_b32 s{s_bad}, 0")
    k.e("s_waitcnt lgkmcnt(0)")
    save_v, save_s = k.vn, k.sn
    AST = 16384

    def role_b(fast, Ldone):
        k.e(f"s_mov_b32 s{s_wave}, s{s_wave0}")
        make_srd(k, sQ, pw, WS_QB, 16 * MB)
        make_srd(k, sK, pw, WS_KB, 16 * MB)
        make_srd(k, sV, pw, WS_VB, 16 * MB)
        make_srd(k, sO, pw, WS_CTX, 16 * MB)
        s_head, s_qb, s_q0, s_nt, s_kt, s_koff, s_voff, s_mdst = [k.s() for _ in range(8)]
        sm = [k.s(2) for _ in range(4)]
        pr = Prof(k, 6)
        pr.tot_start()
        k.e(f"s_and_b32 s{s_head}, s2, 31")
        k.e(f"s_lshr_b32 s{s_qb}, s2, 5")
        k.e(f"s_sub_u32 s{s_qb}, 15, s{s_qb}")
        Q = k.v(32, 4)
        O = k.v(64, 4)
        SS = [k.v(32, 4), k.v(32, 4)]
        P = k.v(16, 4)
        CI = k.v(16, 4)
        F = [k.v(4, 4) for _ in range(8)]
        lacc = k.v(2, 2)
        vq, vh4, vdiff = k.v(), k.v(), k.v()
        vdk, vdv, ak, avh = k.v(), k.v(), k.v(), k.v()
        k.e(f"v_lshrrev_b32 v{vt2}, 5, v{v_lane}")
        k.e(f"v_lshlrev_b32 v{vh4}, 2, v{vt2}")
        k.e(f"v_lshrrev_b32 v{vt0}, 4, v{v_lane}")
        k.e(f"v_lshlrev_b32 v{vt0}, 12, v{vt0}")
        k.e(f"v_and_b32 v{vt1}, 15, v{v_lane}")
        k.e(f"v_lshl_add_u32 v{vt0}, v{vt1}, 4, v{vt0}")
        k.e(f"s_lshl_b32 s{s_t0}, s{s_wave}, 10")
        k.e(f"v_add_u32 v{vdk}, s{s_t0}, v{vt0}")
        k.e(f"v_lshrrev_b32 v{vt0}, 4, v{v_lane}")
        k.e(f"v_lshlrev_b32 v{vt0}, 4, v{vt0}")
        k.e(f"v_bfe_u32 v{vt1}, v{v_lane}, 3, 1")
        k.e(f"v_lshl_add_u32 v{vt0}, v{vt1}, 6, v{vt0}")
        k.e(f"s_lshl_b32 s{s_t0}, s{s_wave}, 2")
        k.e(f"v_lshlrev_b32 v{vt1}, 3, v{vt1}")
        k.e(f"v_add_u32 v{vt1}, s{s_t0}, v{vt1}")
        k.e(f"v_and_b32 v{vt1}, 15, v{vt1}")
        k.e(f"v_add_u32 v{vt0}, v{vt0}, v{vt1}")
        k.e(f"v_lshlrev_b32 v{vt0}, 7, v{vt0}")
        k.e(f"v_and_b32 v{vt1}, 7, v{v_lane}")
        k.e(f"v_lshl_add_u32 v{vdv}, v{vt1}, 4, v{vt0}")
        k.e(f"v_and_b32 v{vt0}, 15, v{v_lane}")
        k.e(f"v_mul_u32_u24 v{vt1}, 1040, v{vt0}")
        k.e(f"v_bfe_u32 v{vt2}, v{v_lane}, 4, 1")
        k.e(f"v_lshlrev_b32 v{vt2}, 8, v{vt2}")
        k.e(f"v_lshl_add_u32 v{vt2}, v{vh4}, 2, v{vt2}")
        k.e(f"v_add_u32 v{ak}, v{vt1}, v{vt2}")
        k.e(f"v_add_u32 v{vt0}, 8, v{vt0}")
        k.e(f"v_and_b32 v{vt0}, 15, v{vt0}")
        k.e(f"v_mul_u32_u24 v{vt1}, 1040, v{vt0}")
        k.e(f"v_add_u32 v{vt1}, {2 * KT + 128}, v{vt1}")
        k.e(f"v_add_u32 v{avh}, v{vt1}, v{vt2}")
        k.e(f"s_mul_i32 s{s_mdst}, s{s_wave}, {4 * 1040}")

        def dmaK(st):
            out = []
            for jj in range(4):
                out.append([f"s_add_u32 m0, s{s_mdst}, {st * KT + jj * 1040 - jj * 256}", "s_nop 0",
                            f"buffer_load_dwordx4 v{vdk}, {sr(sK, 4)}, s{s_koff} offen offset:{jj * 256} lds"])
            out[-1].append(f"s_add_u32 s{s_koff}, s{s_koff}, 16384")
            return out

        def dmaV(st):
            out = []
            for jj in range(4):
                out.append([f"s_add_u32 m0, s{s_mdst}, {(2 + st) * KT + jj * 1040 - jj * 128}", "s_nop 0",
                            f"buffer_load_dwordx4 v{vdv}, {sr(sV, 4)}, s{s_voff} offen offset:{jj * 128} lds"])
            out[-1].append(f"s_add_u32 s{s_voff}, s{s_voff}, 16384")
            return out

        def block_loads():
            k.e(f"s_lshl_b32 s{s_q0}, s{s_qb}, 7")
            k.e(f"s_lshl_b32 s{s_t0}, s{s_wave}, 5")
            k.e(f"s_add_u32 s{s_q0}, s{s_q0}, s{s_t0}")
            k.e(f"s_lshl_b32 s{s_koff}, s{s_head}, 19")
            k.e(f"s_mov_b32 s{s_voff}, s{s_koff}")
            k.e(f"v_and_b32 v{vt0}, 31, v{v_lane}")
            k.e(f"v_add_u32 v{vt0}, s{s_q0}, v{vt0}")
            k.e(f"v_lshlrev_b32 v{vt1}, 8, v{vt0}")
            k.e(f"v_lshl_add_u32 v{vt1}, v{vh4}, 2, v{vt1}")
            for ds in range(8):
                k.e(f"buffer_load_dwordx4 {vr(Q + 4 * ds, 4)}, v{vt1}, {sr(sQ, 4)}, s{s_koff} offen offset:{ds * 32}")
            for g in dmaK(0) + dmaK(1) + dmaV(0):
                for ln in g:
                    k.e(ln)

        def kread(n, st):
            kk, ds = n // 8, n % 8
            return f"ds_read_b128 {vr(F[n % 8], 4)}, v{ak} offset:{st * KT + kk * 512 + ds * 32}"

        vseq = [(dt, g) for g in range(4) for dt in range(4)]

        def vread(n, st):
            dt, g = vseq[n]
            if dt < 2:
                return f"ds_read_b128 {vr(F[n % 8], 4)}, v{ak} offset:{(2 + st) * KT + dt * 512 + g * 32}"
            return f"ds_read_b128 {vr(F[n % 8], 4)}, v{avh} offset:{st * KT + (dt - 2) * 512 + g * 32}"

        def qk_mfma(n, Sd, cinit):
            kk, ds = n // 8, n % 8
            cin = cinit if ds == 0 else vr(Sd + 16 * kk, 16)
            return f"v_mfma_f32_32x32x16_bf16 {vr(Sd + 16 * kk, 16)}, {vr(F[n % 8], 4)}, {vr(Q + 4 * ds, 4)}, {cin}"

        def pv_mfma(n):
            dt, g = vseq[n]
            return f"v_mfma_f32_32x32x16_bf16 {vr(O + 16 * dt, 16)}, {vr(F[n % 8], 4)}, {vr(P + 4 * g, 4)}, {vr(O + 16 * dt, 16)}"

        def mask_ops(Sn):
            out = [f"v_subrev_u32 v{vdiff}, s{s_t1}, v{vq}", f"v_sub_u32 v{vdiff}, v{vdiff}, v{vh4}",
                   f"v_mov_b32 v{vt2}, {NEG_INF}"]
            for q in range(8):
                for j in range(4):
                    r = 4 * q + j
                    cst = 32 * (r >> 4) + 8 * ((r & 15) >> 2) + (r & 3)
                    out.append(f"v_cmp_gt_i32 {sr(sm[j], 2)}, {cst}, v{vdiff}")
                for j in range(4):
                    r = 4 * q + j
                    out.append(f"v_cndmask_b32 v{Sn + r}, v{Sn + r}, v{vt2}, {sr(sm[j], 2)}")
            return out

        def phase_qk(Sn, stK, Sc, cinit, dm=()):
            dm = list(dm)
            for n in range(8):
                k.e(kread(n, stK))
            for n in range(16):
                if n % 4 == 0:
                    k.e("s_waitcnt lgkmcnt(4)" if n < 12 else "s_waitcnt lgkmcnt(0)")
                k.e(qk_mfma(n, Sn, cinit))
                if n % 4 == 3 and n + 5 < 16:
                    for m in range(n + 5, n + 9):
                        k.e(kread(m, stK))
                if n % 4 != 3 and dm:
                    for ln in dm.pop(0):
                        k.e(ln)
                if Sc is not None:
                    k.e(f"v_exp_f32 v{Sc + 2 * n}, v{Sc + 2 * n}")
                    k.e(f"v_exp_f32 v{Sc + 2 * n + 1}, v{Sc + 2 * n + 1}")
                    if n > 0:
                        k.e(f"v_cvt_pk_bf16_f32 v{P + n - 1}, v{Sc + 2 * n - 2}, v{Sc + 2 * n - 1}")
            if Sc is not None:
                k.e(f"v_cvt_pk_bf16_f32 v{P + 15}, v{Sc + 30}, v{Sc + 31}")

        def phase_pv(Sc, stV, Sn, masked):
            for n in range(8):
                k.e(vread(n, stV))
            mt = max_tree(Sn, 32, vt0) if (Sn is not None and not fast) else []
            mk = mask_ops(Sn) if masked else []
            for n in range(16):
                if n % 4 == 0:
                    k.e("s_waitcnt lgkmcnt(4)" if n < 12 else "s_waitcnt lgkmcnt(0)")
                k.e(pv_mfma(n))
                if n % 4 == 3 and n + 5 < 16:
                    for m in range(n + 5, n + 9):
                        k.e(vread(m, stV))
                k.e(f"v_add_f32 v{lacc}, v{lacc}, v{Sc + 2 * n}")
                k.e(f"v_add_f32 v{lacc + 1}, v{lacc + 1}, v{Sc + 2 * n + 1}")
                if masked:
                    if n == 6:
                        for ln in mk:
                            k.e(ln)
                    if n >= 7:
                        for _ in range(2):
                            if mt:
                                k.e(mt.pop(0))
                elif n >= 4:
                    for _ in range(2 if n < 8 else 1):
                        if mt:
                            k.e(mt.pop(0))
            for ln in mt:
                k.e(ln)

        def full(par):
            Sc, Sn = SS[par], SS[par ^ 1]
            phase_qk(Sn, par ^ 1, Sc, vr(CI, 16), dmaK(par) + dmaV(par ^ 1))
            pr.stamp(0)
            Lm, Lj = k.label("msk"), k.label("join")
            k.e(f"s_add_u32 s{s_t0}, s{s_kt}, 3")
            k.e(f"s_cmp_ge_u32 s{s_t0}, s{s_nt}")
            k.e(f"s_cbranch_scc1 {Lm}")
            phase_pv(Sc, par, Sn, False)
            k.e(f"s_branch {Lj}")
            k.place(Lm)
            k.e(f"s_lshl_b32 s{s_t1}, s{s_kt}, 6")
            k.e(f"s_add_u32 s{s_t1}, s{s_t1}, 64")
            phase_pv(Sc, par, Sn, True)
            k.place(Lj)
            pr.stamp(1)
            if not fast:
                check_rescale(k, Sn, CI, O, 64, lacc, vt0, vt1)
            k.e(f"s_add_u32 s{s_kt}, s{s_kt}, 1")
            pr.stamp(2)
            k.e("s_waitcnt vmcnt(0)")
            pr.stamp(3)
            k.e("s_barrier")
            pr.stamp(4)

        block_loads()
        LBtop = k.label("btop")
        k.place(LBtop)
        k.e(f"v_and_b32 v{vt0}, 31, v{v_lane}")
        k.e(f"v_add_u32 v{vq}, s{s_q0}, v{vt0}")
        k.e(f"s_lshl_b32 s{s_nt}, s{s_qb}, 1")
        k.e(f"s_add_u32 s{s_nt}, s{s_nt}, 2")
        for r in range(64):
            k.e(f"v_mov_b32 v{O + r}, 0")
        k.e(f"v_mov_b32 v{lacc}, 0")
        k.e(f"v_mov_b32 v{lacc + 1}, 0")
        k.e(f"s_mov_b32 s{s_kt}, 0")
        k.e("s_waitcnt vmcnt(0)")
        k.e("s_barrier")
        phase_qk(SS[0], 0, None, "0")
        k.e("s_nop 15")
        Lnm = k.label("nm0")
        k.e(f"s_cmp_lg_u32 s{s_nt}, 2")
        k.e(f"s_cbranch_scc1 {Lnm}")
        k.e(f"s_mov_b32 s{s_t1}, 0")
        for ln in mask_ops(SS[0]):
            k.e(ln)
        k.place(Lnm)
        first_tile_norm(k, SS[0], CI, vt0, vt1)
        k.e("s_barrier")
        Lloop, Llast = k.label("bloop"), k.label("blast")
        pr.start()
        k.e(f"s_cmp_eq_u32 s{s_nt}, 2")
        k.e(f"s_cbranch_scc1 {Llast}")
        k.place(Lloop)
        full(0)
        full(1)
        k.e(f"s_add_u32 s{s_t0}, s{s_kt}, 2")
        k.e(f"s_cmp_lt_u32 s{s_t0}, s{s_nt}")
        k.e(f"s_cbranch_scc1 {Lloop}")
        k.place(Llast)
        full(0)
        Lnp = k.label("nopf")
        k.e(f"s_sub_u32 s{s_qb}, 15, s{s_qb}")
        k.e(f"s_cmp_lg_u32 s{s_pass}, 0")
        k.e(f"s_cbranch_scc1 {Lnp}")
        block_loads()
        k.place(Lnp)
        Sc = SS[1]
        for n in range(16):
            k.e(f"v_exp_f32 v{Sc + 2 * n}, v{Sc + 2 * n}")
            k.e(f"v_exp_f32 v{Sc + 2 * n + 1}, v{Sc + 2 * n + 1}")
            if n > 0:
                k.e(f"v_cvt_pk_bf16_f32 v{P + n - 1}, v{Sc + 2 * n - 2}, v{Sc + 2 * n - 1}")
        k.e("s_nop 0")
        k.e(f"v_cvt_pk_bf16_f32 v{P + 15}, v{Sc + 30}, v{Sc + 31}")
        phase_pv(Sc, 1, None, False)
        k.e("s_nop 15")
        k.e(f"v_lshlrev_b32 v{vdiff}, 13, v{vq}")
        k.e(f"v_lshl_add_u32 v{vdiff}, v{vh4}, 2, v{vdiff}")
        k.e(f"s_lshl_b32 s{s_t0}, s{s_head}, 8")
        finish_store(k, O, 4, lacc, vt0, vt1, vdiff, sO, s_t0, s_bad=s_bad if fast else None)
        k.e(f"s_add_u32 s{s_pass}, s{s_pass}, 1")
        k.e(f"s_cmp_lt_u32 s{s_pass}, 2")
        k.e(f"s_cbranch_scc1 {LBtop}")
        pr.tot_end()
        pr.dump(pw, sQ, vt0, vt1)
        k.e(f"s_branch {Ldone}")
        k.vn, k.sn = save_v, save_s

    def role_a(fast, Ldone):
        k.e(f"s_sub_u32 s{s_wave}, s{s_wave0}, 4")
        make_srd(k, sQ, pw, WS_QA, 4 * MB)
        make_srd(k, sK, pw, WS_KA, 2048 * 64)
        make_srd(k, sV, pw, WS_VA, 2048 * 64)
        make_srd(k, sO, pw, WS_OA, 4 * MB)
        s_hg, s_q0, s_kb, s_go, s_ho, s_dst, s_cur, s_nxt, s_wdst = [k.s() for _ in range(9)]
        pa = Prof(k, 6)
        pa.tot_start()
        NH = 2 if fast else 1
        Q = [k.v(8, 4) for _ in range(NH)]
        O = [k.v(16, 4) for _ in range(NH)]
        LS = [k.v(16, 4) for _ in range(NH)]
        SS = [k.v(32, 4), k.v(32, 4)]
        P2 = [k.v(16, 4) for _ in range(NH)]
        CI = k.v(16, 4)
        KF = k.v(16, 4)
        VF = k.v(16, 4)
        ONES = k.v(4, 4)
        vqo, vdm = k.v(), k.v()
        ba = [k.v(), k.v()]
        ac = [k.v(), k.v()]
        an = [k.v(), k.v()]
        LAtop = k.label("atop")
        k.place(LAtop)
        k.e(f"s_and_b32 s{s_q0}, s2, 15")
        k.e(f"s_lshr_b32 s{s_hg}, s2, 4")
        k.e(f"s_lshl_b32 s{s_hg}, s{s_hg}, 1")
        k.e(f"s_add_u32 s{s_hg}, s{s_hg}, s{s_pass}")
        k.e(f"s_lshl_b32 s{s_q0}, s{s_q0}, 7")
        k.e(f"s_lshl_b32 s{s_t0}, s{s_wave}, 5")
        k.e(f"s_add_u32 s{s_q0}, s{s_q0}, s{s_t0}")
        k.e(f"s_lshl_b32 s{s_ho}, s{s_hg}, 6")
        k.e(f"v_and_b32 v{vt0}, 31, v{v_lane}")
        k.e(f"v_lshrrev_b32 v{vt2}, 5, v{v_lane}")
        k.e(f"v_add_u32 v{vt1}, s{s_q0}, v{vt0}")
        k.e(f"v_lshlrev_b32 v{vt1}, 11, v{vt1}")
        k.e(f"v_lshl_add_u32 v{vqo}, v{vt2}, 4, v{vt1}")
        for h in range(NH):
            for ks in range(2):
                k.e(f"buffer_load_dwordx4 {vr(Q[h] + 4 * ks, 4)}, v{vqo}, {sr(sQ, 4)}, s{s_ho} offen offset:{h * 64 + ks * 32}")
        k.e(f"v_bfe_u32 v{vt1}, v{v_lane}, 2, 2")
        k.e(f"v_xor_b32 v{vt1}, v{vt1}, v{vt2}")
        k.e(f"v_lshlrev_b32 v{vt0}, 6, v{vt0}")
        for x in range(2):
            k.e(f"v_xor_b32 v{vt2}, {2 * x}, v{vt1}")
            k.e(f"v_lshl_add_u32 v{ba[x]}, v{vt2}, 4, v{vt0}")
        k.e(f"v_lshrrev_b32 v{vt0}, 2, v{v_lane}")
        k.e(f"v_lshrrev_b32 v{vt1}, 4, v{v_lane}")
        k.e(f"v_xor_b32 v{vt1}, v{vt1}, v{v_lane}")
        k.e(f"v_and_b32 v{vt1}, 3, v{vt1}")
        k.e(f"v_lshlrev_b32 v{vt0}, 6, v{vt0}")
        k.e(f"v_lshl_add_u32 v{vt0}, v{vt1}, 4, v{vt0}")
        k.e(f"s_lshl_b32 s{s_wdst}, s{s_wave}, 11")
        k.e(f"v_add_u32 v{vdm}, s{s_wdst}, v{vt0}")
        k.e(f"s_mov_b32 s{s_kb}, 0")
        k.e(f"s_mov_b32 s{s_go}, 0")
        k.e(f"s_mov_b32 s{s_dst}, {ABASE}")
        k.e(f"s_mov_b32 s{s_cur}, {ABASE}")
        k.e(f"s_mov_b32 s{s_nxt}, {ABASE + AST}")

        def dmaA():
            out = [[f"s_add_u32 s{s_t0}, s{s_dst}, s{s_wdst}"]]
            for j in range(2):
                out.append([f"s_mov_b32 m0, s{s_t0}", "s_nop 0",
                            f"buffer_load_dwordx4 v{vdm}, {sr(sK, 4)}, s{s_go} offen offset:{j * 1024} lds"])
            for j in range(2):
                out.append([f"s_add_u32 m0, s{s_t0}, 8192", "s_nop 0",
                            f"buffer_load_dwordx4 v{vdm}, {sr(sV, 4)}, s{s_go} offen offset:{j * 1024} lds"])
            out.append([f"s_add_u32 s{s_go}, s{s_go}, 8192", f"s_add_u32 s{s_dst}, s{s_dst}, {AST}",
                        f"s_cmp_eq_u32 s{s_dst}, {ABASE + 3 * AST}", f"s_cselect_b32 s{s_dst}, {ABASE}, s{s_dst}"])
            return out

        for _ in range(2):
            for g in dmaA():
                for ln in g:
                    k.e(ln)
        for h in range(NH):
            for r in range(16):
                k.e(f"v_mov_b32 v{O[h] + r}, 0")
                k.e(f"v_mov_b32 v{LS[h] + r}, 0")
        for r in range(4):
            k.e(f"v_mov_b32 v{ONES + r}, 0x3f803f80")

        def kreads_l(adr, half):
            return [f"ds_read_b128 {vr(KF + 8 * kk + 4 * ks, 4)}, v{adr[ks]} offset:{half * 4096 + kk * 2048}"
                    for kk in range(2) for ks in range(2)]

        def vreads_l(adr, half):
            return [f"ds_read_b128 {vr(VF + 4 * g, 4)}, v{adr[g & 1]} offset:{8192 + half * 4096 + (g >> 1) * 2048}"
                    for g in range(4)]

        def pv_l(h, Pp):
            out = []
            for g in range(4):
                out.append(f"v_mfma_f32_32x32x16_bf16 {vr(O[h], 16)}, {vr(VF + 4 * g, 4)}, {vr(Pp + 4 * g, 4)}, {vr(O[h], 16)}")
                if AONES or not fast:
                    out.append(f"v_mfma_f32_32x32x16_bf16 {vr(LS[h], 16)}, {vr(ONES, 4)}, {vr(Pp + 4 * g, 4)}, {vr(LS[h], 16)}")
            return out

        def qk_l(h, Sb, cinit):
            out = []
            for kk in range(2):
                for ks in range(2):
                    cin = cinit if ks == 0 else vr(Sb + 16 * kk, 16)
                    out.append(f"v_mfma_f32_32x32x16_bf16 {vr(Sb + 16 * kk, 16)}, {vr(KF + 8 * kk + 4 * ks, 4)}, {vr(Q[h] + 4 * ks, 4)}, {cin}")
            return out

        def set_addr():
            for x in range(2):
                k.e(f"v_add_u32 v{ac[x]}, s{s_cur}, v{ba[x]}")
                k.e(f"v_add_u32 v{an[x]}, s{s_nxt}, v{ba[x]}")

        def adv():
            k.e(f"s_mov_b32 s{s_cur}, s{s_nxt}")
            k.e(f"s_add_u32 s{s_nxt}, s{s_nxt}, {AST}")
            k.e(f"s_cmp_eq_u32 s{s_nxt}, {ABASE + 3 * AST}")
            k.e(f"s_cselect_b32 s{s_nxt}, {ABASE}, s{s_nxt}")

        def expcvt(Sc, Pc, slots, dm=(), la=None):
            dm = list(dm)
            for n in range(16):
                k.e(f"v_exp_f32 v{Sc + 2 * n}, v{Sc + 2 * n}")
                k.e(f"v_exp_f32 v{Sc + 2 * n + 1}, v{Sc + 2 * n + 1}")
                if n > 0:
                    k.e(f"v_cvt_pk_bf16_f32 v{Pc + n - 1}, v{Sc + 2 * n - 2}, v{Sc + 2 * n - 1}")
                    if la is not None:
                        k.e(f"v_add_f32 v{la}, v{la}, v{Sc + 2 * n - 2}")
                        k.e(f"v_add_f32 v{la + 1}, v{la + 1}, v{Sc + 2 * n - 1}")
                for ln in slots.get(n, []):
                    k.e(ln)
                if n >= 12 and dm:
                    for ln in dm.pop(0):
                        k.e(ln)
            for g in dm:
                for ln in g:
                    k.e(ln)
            k.e("s_nop 0")
            k.e(f"v_cvt_pk_bf16_f32 v{Pc + 15}, v{Sc + 30}, v{Sc + 31}")
            if la is not None:
                k.e(f"v_add_f32 v{la}, v{la}, v{Sc + 30}")
                k.e(f"v_add_f32 v{la + 1}, v{la + 1}, v{Sc + 31}")

        k.e("s_waitcnt vmcnt(0)")
        k.e("s_barrier")
        set_addr()
        for ln in kreads_l(ac, 0):
            k.e(ln)
        k.e("s_waitcnt lgkmcnt(0)")
        if fast:
            for h in range(2):
                for ln in qk_l(h, SS[h], "0"):
                    k.e(ln)
            k.e("s_nop 15")
            for ln in max_tree(SS[0], 32, vt0):
                k.e(ln)
            for ln in max_tree(SS[1], 32, vt2):
                k.e(ln)
            k.e(f"v_max_f32 v{vt0}, v{vt0}, v{vt2}")
            xhalf_max(k, vt0, vt1)
            for h in range(2):
                for r in range(32):
                    k.e(f"v_sub_f32 v{SS[h] + r}, v{SS[h] + r}, v{vt0}")
            k.e(f"v_sub_f32 v{vt1}, 0, v{vt0}")
            for r in range(16):
                k.e(f"v_mov_b32 v{CI + r}, v{vt1}")

            def it(h, half, do_pv=True, do_qk=True, rd=None, dm=()):
                slots = {}
                if h == 1:
                    k.e("s_waitcnt lgkmcnt(0)")
                if do_pv:
                    for i, ln in enumerate(pv_l(h ^ 1, P2[h ^ 1])):
                        slots.setdefault(i if AONES else 2 * i, []).append(ln)
                if do_qk:
                    for i, ln in enumerate(qk_l(h ^ 1, SS[h ^ 1], vr(CI, 16))):
                        slots.setdefault(8 + i, []).append(ln)
                if rd:
                    slots.setdefault(12, []).extend(rd)
                expcvt(SS[h], P2[h], slots, dm, la=None if AONES else LS[h])

            def stage_iter(first, last):
                it(0, 0, do_pv=not first, do_qk=not first, rd=vreads_l(ac, 0) + kreads_l(ac, 1))
                it(1, 0, dm=dmaA() if not last else ())
                k.e("s_barrier")
                it(0, 1, rd=vreads_l(ac, 1) + ([] if last else kreads_l(an, 0)))
                it(1, 1, do_qk=not last)
                if not last:
                    adv()
                    set_addr()
                    k.e(f"s_add_u32 s{s_kb}, s{s_kb}, 1")
                    k.e("s_waitcnt vmcnt(0) lgkmcnt(0)")
                k.e("s_barrier")

            for _ in range(3):
                k.e("s_barrier")
            pa.start()
            stage_iter(True, False)
            Lloop = k.label("aloop")
            k.place(Lloop)
            stage_iter(False, False)
            k.e(f"s_cmp_lt_u32 s{s_kb}, 15")
            k.e(f"s_cbranch_scc1 {Lloop}")
            stage_iter(False, True)
            k.e("s_nop 1")
            for ln in pv_l(1, P2[1]):
                k.e(ln)
            k.e("s_nop 15")
            for h in range(2):
                k.e(f"s_add_u32 s{s_t0}, s{s_ho}, {h * 64}")
                finish_store(k, O[h], 1, LS[h], vt0, vt1, vqo, sO, s_t0, lsum_mfma=bool(AONES), s_bad=s_bad, lowchk=True)
        else:
            for ln in qk_l(0, SS[0], "0"):
                k.e(ln)
            k.e("s_nop 15")
            first_tile_norm(k, SS[0], CI, vt0, vt1)
            k.e("s_barrier")
            P = P2[0]

            def a_iter(par, last, dm):
                Sc, Sn = SS[par], SS[par ^ 1]
                if not last:
                    for ln in kreads_l(ac if par == 0 else an, par ^ 1):
                        k.e(ln)
                for ln in vreads_l(ac, par):
                    k.e(ln)
                if not last:
                    k.e("s_waitcnt lgkmcnt(4)")
                    for ln in qk_l(0, Sn, vr(CI, 16)):
                        k.e(ln)
                expcvt(Sc, P, {}, dm)
                k.e("s_waitcnt lgkmcnt(0)")
                k.e("s_nop 0")
                for ln in pv_l(0, P):
                    k.e(ln)
                if not last:
                    for ln in max_tree(Sn, 32, vt0):
                        k.e(ln)
                    check_rescale(k, Sn, CI, O[0], 16, LS[0], vt0, vt1, lsum_mfma=True)

            Lloop = k.label("aloop")
            k.place(Lloop)
            a_iter(0, False, dmaA())
            a_iter(1, False, [])
            adv()
            set_addr()
            k.e(f"s_add_u32 s{s_kb}, s{s_kb}, 1")
            k.e("s_waitcnt vmcnt(0) lgkmcnt(0)")
            k.e("s_barrier")
            k.e(f"s_cmp_lt_u32 s{s_kb}, 15")
            k.e(f"s_cbranch_scc1 {Lloop}")
            a_iter(0, False, [])
            a_iter(1, True, [])
            k.e("s_nop 15")
            finish_store(k, O[0], 1, LS[0], vt0, vt1, vqo, sO, s_ho, lsum_mfma=True)
            k.e("s_barrier")
            k.e(f"s_add_u32 s{s_pass}, s{s_pass}, 1")
            k.e(f"s_cmp_lt_u32 s{s_pass}, 2")
            k.e(f"s_cbranch_scc1 {LAtop}")
        pa.tot_end()
        pa.dump(pw, sQ, vt0, vt1)
        k.e(f"s_branch {Ldone}")
        k.vn, k.sn = save_v, save_s

    def emit_mode(fast, Ldone):
        LA = k.label("attnA")
        k.e(f"s_mov_b32 s{s_pass}, 0")
        k.e(f"s_cmp_ge_u32 s{s_wave0}, 4")
        k.e(f"s_cbranch_scc1 {LA}")
        role_b(fast, Ldone)
        k.place(LA)
        role_a(fast, Ldone)

    Lvote = k.label("vote")
    if FASTMAX:
        emit_mode(True, Lvote)
        k.place(Lvote)
        k.e("s_barrier")
        k.e(f"v_mov_b32 v{vt0}, s{s_bad}")
        k.e(f"s_lshl_b32 s{s_t0}, s{s_wave0}, 2")
        k.e(f"v_mov_b32 v{vt1}, s{s_t0}")
        k.e(f"ds_write_b32 v{vt1}, v{vt0} offset:{VOTE_OFF}")
        k.e("s_waitcnt lgkmcnt(0)")
        k.e("s_barrier")
        k.e(f"v_and_b32 v{vt1}, 7, v{v_lane}")
        k.e(f"v_lshlrev_b32 v{vt1}, 2, v{vt1}")
        k.e(f"ds_read_b32 v{vt0}, v{vt1} offset:{VOTE_OFF}")
        k.e("s_waitcnt lgkmcnt(0)")
        k.e(f"v_cmp_ne_u32 vcc, 0, v{vt0}")
        k.e("s_barrier")
        k.e(f"s_cbranch_vccz {Lend}")
    emit_mode(False, Lend)
    k.place(Lend)
    k.e("s_endpgm")
    return k


def main():
    kernels = [
        (kern_proj(), 256, 512, 160 * 1024),
        (kern_attn(), 256, 512, ATTN_LDS),
        (kern_out(), 256, 512, 152 * 1024),
    ]
    out = []
    for kk, g, b, lds in kernels:
        out.append(f"; @launch kernel={kk.name} grid=({g},1,1) block=({b},1,1) lds={lds}")
    out.append('.amdgcn_target "amdgcn-amd-amdhsa--gfx950"')
    out.append(".text")
    for kk, g, b, lds in kernels:
        out.append(f".globl {kk.name}")
        out.append(".p2align 8")
        out.append(f".type {kk.name},@function")
        out.append(f"{kk.name}:")
        out.append(kk.text())
    out.append('.section .rodata,"a"')
    for kk, g, b, lds in kernels:
        nv = (kk.maxv + 7) // 8 * 8
        out.append(".p2align 6")
        out.append(f".amdhsa_kernel {kk.name}")
        out.append(f"  .amdhsa_next_free_vgpr {nv}")
        out.append("  .amdhsa_next_free_sgpr 102")
        out.append(f"  .amdhsa_accum_offset {nv}")
        out.append("  .amdhsa_group_segment_fixed_size 0")
        out.append("  .amdhsa_kernarg_size 112")
        out.append("  .amdhsa_user_sgpr_count 2")
        out.append("  .amdhsa_user_sgpr_kernarg_segment_ptr 1")
        out.append("  .amdhsa_system_sgpr_workgroup_id_x 1")
        out.append(".end_amdhsa_kernel")
    path = sys.argv[1] if len(sys.argv) > 1 else f"cdna_kernels/{NAME}.s"
    open(path, "w").write("\n".join(out) + "\n")
    for kk, g, b, lds in kernels:
        print(kk.name, "vgprs", kk.maxv, "lines", len(kk.lines))


if __name__ == "__main__":
    main()
```

```python
import math
import os
import sys

PROF = int(os.environ.get("PROF", "0"))
PRIO = int(os.environ.get("PRIO", "0"))

NAME = "concat_heads__grouped_kv_mqa__compressed_kv_cla__prompt"

KA_AX, KA_AWQ, KA_AWK, KA_AWV, KA_AWO = 0, 8, 16, 24, 32
KA_BX, KA_CKV, KA_BWQ, KA_WUK, KA_WUV, KA_BWO = 40, 48, 56, 64, 72, 80
KA_OUT, KA_DBG, KA_WS = 88, 96, 104

MB = 1 << 20
PREFETCH = int(os.environ.get("PREFETCH", "1"))
WS_QB, WS_KB, WS_VB, WS_CTX = 0, 16 * MB, 32 * MB, 48 * MB
WS_QA, WS_OA, WS_KA, WS_VA = 64 * MB, 68 * MB, 72 * MB, 73 * MB


def log2(x):
    r = int(math.log2(x))
    assert 1 << r == x, x
    return r


class K:
    def __init__(self, name):
        self.name = name
        self.lines = []
        self.vn = 1
        self.sn = 3
        self.maxv = 1
        self.uid = 0

    def v(self, n=1, align=1):
        if n > 1 and align == 1:
            align = 2
        self.vn = (self.vn + align - 1) // align * align
        r = self.vn
        self.vn += n
        self.maxv = max(self.maxv, self.vn)
        assert self.vn <= 256, "out of vgprs"
        return r

    def s(self, n=1, align=1):
        if n == 2:
            align = max(align, 2)
        if n == 4:
            align = max(align, 4)
        self.sn = (self.sn + align - 1) // align * align
        r = self.sn
        self.sn += n
        assert self.sn <= 100, "out of sgprs"
        return r

    def e(self, t):
        self.lines.append("    " + t)

    def c(self, t):
        self.lines.append("    ; " + t)

    def label(self, base):
        self.uid += 1
        return f"L_{self.name}_{base}_{self.uid}"

    def place(self, lab):
        self.lines.append(lab + ":")

    def text(self):
        return "\n".join(self.lines)


def vr(b, n):
    return f"v[{b}:{b + n - 1}]"


def sr(b, n):
    return f"s[{b}:{b + n - 1}]"


class Prof:
    def __init__(self, k, n):
        self.k = k
        self.n = n
        if not PROF:
            return
        self.t = k.s(2)
        self.prev = k.s()
        self.acc = [k.s() for _ in range(n)]
        for a in self.acc:
            k.e(f"s_mov_b32 s{a}, 0")

    def tot_start(self):
        if PROF != 2:
            return
        k = self.k
        k.e(f"s_memtime {sr(self.t, 2)}")
        k.e("s_waitcnt lgkmcnt(0)")
        k.e(f"s_mov_b32 s{self.acc[0]}, s{self.t}")
        k.e(f"s_memrealtime {sr(self.t, 2)}")
        k.e("s_waitcnt lgkmcnt(0)")
        k.e(f"s_mov_b32 s{self.acc[1]}, s{self.t}")

    def tot_end(self):
        if PROF != 2:
            return
        k = self.k
        k.e(f"s_memtime {sr(self.t, 2)}")
        k.e("s_waitcnt lgkmcnt(0)")
        k.e(f"s_sub_u32 s{self.acc[0]}, s{self.t}, s{self.acc[0]}")
        k.e(f"s_memrealtime {sr(self.t, 2)}")
        k.e("s_waitcnt lgkmcnt(0)")
        k.e(f"s_sub_u32 s{self.acc[1]}, s{self.t}, s{self.acc[1]}")

    def start(self):
        if PROF != 1:
            return
        k = self.k
        k.e(f"s_memtime {sr(self.t, 2)}")
        k.e("s_waitcnt lgkmcnt(0)")
        k.e(f"s_mov_b32 s{self.prev}, s{self.t}")

    def stamp(self, i):
        if PROF != 1:
            return
        k = self.k
        k.e(f"s_memtime {sr(self.t, 2)}")
        k.e("s_waitcnt lgkmcnt(0)")
        k.e(f"s_sub_u32 s{self.prev}, s{self.t}, s{self.prev}")
        k.e(f"s_add_u32 s{self.acc[i]}, s{self.acc[i]}, s{self.prev}")
        k.e(f"s_mov_b32 s{self.prev}, s{self.t}")

    def dump(self, pw, srd, vtmp, vtmp2):
        if not PROF or self.k.name != os.environ.get("PROFK", "attn_kernel"):
            return
        k = self.k
        make_srd(k, srd, pw, 80 * MB, 4 * MB)
        k.e(f"v_lshrrev_b32 v{vtmp}, 6, v0")
        k.e(f"v_lshlrev_b32 v{vtmp}, 6, v{vtmp}")
        k.e(f"s_lshl_b32 s{self.prev}, s2, 9")
        for i, a in enumerate(self.acc):
            k.e(f"v_mov_b32 v{vtmp2}, s{a}")
            k.e(f"buffer_store_dword v{vtmp2}, v{vtmp}, {sr(srd, 4)}, s{self.prev} offen offset:{4 * i}")
        k.e("s_waitcnt vmcnt(0)")


def load_ptr(k, sdst, off):
    k.e(f"s_load_dwordx2 {sr(sdst, 2)}, s[0:1], {off}")


def make_srd(k, srd, sptr, off, size):
    if off:
        k.e(f"s_add_u32 s{srd}, s{sptr}, {off:#x}")
        k.e(f"s_addc_u32 s{srd + 1}, s{sptr + 1}, 0")
        k.e(f"s_and_b32 s{srd + 1}, s{srd + 1}, 0xffff")
    else:
        k.e(f"s_mov_b32 s{srd}, s{sptr}")
        k.e(f"s_and_b32 s{srd + 1}, s{sptr + 1}, 0xffff")
    k.e(f"s_mov_b32 s{srd + 2}, {size:#x}")
    k.e(f"s_mov_b32 s{srd + 3}, 0x20000")


class GemmCtx:
    def __init__(self, k):
        self.k = k
        self.sX = k.s(4)
        self.sW = k.s(4)
        self.sO = k.s(4)
        self.ldx, self.ldw, self.nt, self.tm_off, self.tn_off = [k.s() for _ in range(5)]
        self.obase, self.ldo, self.scale = [k.s() for _ in range(3)]
        self.kxstep = None
        self.s_wave = k.s()
        self.s_t0, self.s_t1 = k.s(), k.s()
        self.v_lane = k.v()
        self.vt = [k.v() for _ in range(4)]
        self.voff = [[k.v() for _ in range(8)] for _ in range(2)]
        self.sset = [[k.s() for _ in range(14)] for _ in range(2)]
        self.vpf = k.v(4, 4)
        self.vpfo = k.v()
        self.shared_v = None
        self.flip = 0
        self.after_first = None

    def init_ids(self):
        k = self.k
        k.e(f"v_and_b32 v{self.v_lane}, 63, v0")
        k.e(f"v_lshrrev_b32 v{self.vt[0]}, 6, v0")
        k.e("s_nop 0")
        k.e(f"v_readfirstlane_b32 s{self.s_wave}, v{self.vt[0]}")
        k.e("s_nop 3")
        self.shared_v = k.vn


class Gemm:
    def __init__(self, G, WM, WN, TM, TN, BK, NSTAGE, ACROSS, form, epi):
        self.G, self.k = G, G.k
        self.WM, self.WN, self.TM, self.TN, self.BK, self.NSTAGE, self.ACROSS = WM, WN, TM, TN, BK, NSTAGE, ACROSS
        self.form, self.epi = form, epi
        self.NW = WM * WN
        self.BM, self.BN = WM * TM * 32, WN * TN * 32
        self.RX, self.RW = BK * 2, self.BN * 2
        self.CX = self.RX // 16
        self.SX = {64: 2, 128: 1}[self.RX]
        self.XB, self.WB = self.BM * self.RX, BK * self.RW
        self.STAGE = self.XB + self.WB
        self.KS = BK // 16
        self.NXI = self.XB // 1024 // self.NW
        self.NWI = self.WB // 1024 // self.NW
        assert self.NXI * 1024 * self.NW == self.XB and self.NWI * 1024 * self.NW == self.WB
        self.D = self.NXI + self.NWI
        assert self.D <= 8
        self.LEAD = NSTAGE - 1
        self.CERT = 2 if ACROSS else 1
        self.FULL = ACROSS == 2
        self.nstores = 2 * TM * TN

    def _wswz(self, vdst, vkrow):
        k = self.k
        if self.RW >= 256:
            k.e(f"v_and_b32 v{vdst}, 3, v{vkrow}")
        elif self.RW == 128:
            k.e(f"v_lshrrev_b32 v{vdst}, 1, v{vkrow}")
            k.e(f"v_and_b32 v{vdst}, 1, v{vdst}")
        else:
            k.e(f"v_mov_b32 v{vdst}, 0")

    def setup_dma(self):
        k, G = self.k, self.G
        v_lane = G.v_lane
        v_t0, v_t1, v_t2, v_t3 = G.vt
        s_t0, s_wave = G.s_t0, G.s_wave
        regs = G.voff[G.flip]
        sregs = G.sset[G.flip]
        G.flip ^= 1
        self.vox = regs[:self.NXI]
        self.vow = regs[self.NXI:self.NXI + self.NWI]
        LPR, RPI = self.RX // 16, 1024 // self.RX
        for j in range(self.NXI):
            k.e(f"s_mul_i32 s{s_t0}, s{s_wave}, {self.NXI * RPI}")
            k.e(f"s_add_u32 s{s_t0}, s{s_t0}, {j * RPI}")
            k.e(f"v_lshrrev_b32 v{v_t0}, {log2(LPR)}, v{v_lane}")
            k.e(f"v_add_u32 v{v_t0}, s{s_t0}, v{v_t0}")
            k.e(f"v_lshrrev_b32 v{v_t1}, {self.SX}, v{v_t0}")
            k.e(f"v_and_b32 v{v_t1}, {self.CX - 1}, v{v_t1}")
            k.e(f"v_and_b32 v{v_t2}, {LPR - 1}, v{v_lane}")
            k.e(f"v_xor_b32 v{v_t1}, v{v_t1}, v{v_t2}")
            k.e(f"v_mul_lo_u32 v{v_t0}, v{v_t0}, s{G.ldx}")
            k.e(f"v_lshl_add_u32 v{v_t0}, v{v_t1}, 4, v{v_t0}")
            k.e(f"v_add_u32 v{self.vox[j]}, s{G.tm_off}, v{v_t0}")
        LPRW, RPIW = self.RW // 16, 1024 // self.RW
        for j in range(self.NWI):
            k.e(f"s_mul_i32 s{s_t0}, s{s_wave}, {self.NWI * RPIW}")
            k.e(f"s_add_u32 s{s_t0}, s{s_t0}, {j * RPIW}")
            k.e(f"v_lshrrev_b32 v{v_t0}, {log2(LPRW)}, v{v_lane}")
            k.e(f"v_add_u32 v{v_t0}, s{s_t0}, v{v_t0}")
            self._wswz(v_t1, v_t0)
            k.e(f"v_lshlrev_b32 v{v_t1}, 2, v{v_t1}")
            k.e(f"v_and_b32 v{v_t2}, {LPRW - 1}, v{v_lane}")
            k.e(f"v_xor_b32 v{v_t1}, v{v_t1}, v{v_t2}")
            k.e(f"v_mul_lo_u32 v{v_t0}, v{v_t0}, s{G.ldw}")
            k.e(f"v_lshl_add_u32 v{v_t0}, v{v_t1}, 4, v{v_t0}")
            k.e(f"v_add_u32 v{self.vow[j]}, s{G.tn_off}, v{v_t0}")
        (self.s_kx, self.s_kw, self.s_dst, self.s_cur, self.s_nxt, self.s_cnt, self.s_xdst, self.s_wdst,
         self.s_kwstep, self.s_d0, self.s_d1, self.s_nt, self.s_wm, self.s_wn) = sregs
        k.e(f"s_mov_b32 s{self.s_kx}, 0")
        k.e(f"s_mov_b32 s{self.s_kw}, 0")
        k.e(f"s_mov_b32 s{self.s_dst}, 0")
        k.e(f"s_mov_b32 s{self.s_cur}, 0")
        k.e(f"s_mov_b32 s{self.s_nxt}, {self.STAGE}")
        k.e(f"s_mul_i32 s{self.s_xdst}, s{s_wave}, {self.NXI * 1024}")
        k.e(f"s_mul_i32 s{self.s_wdst}, s{s_wave}, {self.NWI * 1024}")
        k.e(f"s_add_u32 s{self.s_wdst}, s{self.s_wdst}, {self.XB}")
        k.e(f"s_mul_i32 s{self.s_kwstep}, s{G.ldw}, {self.BK}")
        k.e(f"s_mov_b32 s{self.s_nt}, s{G.nt}")

    def dma_list(self):
        G = self.G
        out = []
        for j in range(self.NXI):
            g = []
            if j == 0:
                g.append(f"s_add_u32 s{self.s_d0}, s{self.s_dst}, s{self.s_xdst}")
            g.append(f"s_add_u32 m0, s{self.s_d0}, {j * 1024}")
            g.append("s_nop 0")
            g.append(f"buffer_load_dwordx4 v{self.vox[j]}, {sr(G.sX, 4)}, s{self.s_kx} offen lds")
            out.append(g)
        for j in range(self.NWI):
            g = []
            if j == 0:
                g.append(f"s_add_u32 s{self.s_d1}, s{self.s_dst}, s{self.s_wdst}")
            g.append(f"s_add_u32 m0, s{self.s_d1}, {j * 1024}")
            g.append("s_nop 0")
            g.append(f"buffer_load_dwordx4 v{self.vow[j]}, {sr(G.sW, 4)}, s{self.s_kw} offen lds")
            out.append(g)
        out.append([
            f"s_add_u32 s{self.s_kx}, s{self.s_kx}, {G.kxstep or self.BK * 2}",
            f"s_add_u32 s{self.s_kw}, s{self.s_kw}, s{self.s_kwstep}",
            f"s_add_u32 s{self.s_dst}, s{self.s_dst}, {self.STAGE}",
            f"s_cmp_eq_u32 s{self.s_dst}, {self.NSTAGE * self.STAGE}",
            f"s_cselect_b32 s{self.s_dst}, 0, s{self.s_dst}",
        ])
        return out

    def issue_prologue(self):
        for t in range(self.LEAD):
            for g in self.dma_list():
                for ln in g:
                    self.k.e(ln)

    def setup_rest(self):
        k, G = self.k, self.G
        k.vn = G.shared_v
        v_lane = G.v_lane
        v_t0, v_t1, v_t2, v_t3 = G.vt
        s_t0 = G.s_t0
        TM, TN, KS, RX, RW = self.TM, self.TN, self.KS, self.RX, self.RW
        k.e(f"s_and_b32 s{self.s_wm}, s{G.s_wave}, {self.WM - 1}")
        k.e(f"s_lshr_b32 s{self.s_wn}, s{G.s_wave}, {log2(self.WM)}")
        self.bx = [k.v() for _ in range(KS)]
        self.bw = [k.v() for _ in range(TN)]
        k.e(f"s_mul_i32 s{s_t0}, s{self.s_wm}, {TM * 32}")
        k.e(f"v_and_b32 v{v_t0}, 31, v{v_lane}")
        k.e(f"v_add_u32 v{v_t0}, s{s_t0}, v{v_t0}")
        k.e(f"v_lshrrev_b32 v{v_t1}, {self.SX}, v{v_t0}")
        k.e(f"v_and_b32 v{v_t1}, {self.CX - 1}, v{v_t1}")
        k.e(f"v_lshrrev_b32 v{v_t2}, 5, v{v_lane}")
        k.e(f"v_xor_b32 v{v_t1}, v{v_t1}, v{v_t2}")
        k.e(f"v_lshlrev_b32 v{v_t0}, {log2(RX)}, v{v_t0}")
        for ks in range(KS):
            k.e(f"v_xor_b32 v{v_t2}, {2 * ks}, v{v_t1}")
            k.e(f"v_lshl_add_u32 v{self.bx[ks]}, v{v_t2}, 4, v{v_t0}")
        k.e(f"v_lshrrev_b32 v{v_t0}, 5, v{v_lane}")
        k.e(f"v_lshlrev_b32 v{v_t0}, 3, v{v_t0}")
        k.e(f"v_bfe_u32 v{v_t1}, v{v_lane}, 2, 2")
        k.e(f"v_add_u32 v{v_t0}, v{v_t0}, v{v_t1}")
        self._wswz(v_t1, v_t0)
        k.e(f"v_lshlrev_b32 v{v_t1}, 2, v{v_t1}")
        k.e(f"v_lshlrev_b32 v{v_t0}, {log2(RW)}, v{v_t0}")
        for f in range(TN):
            k.e(f"s_mul_i32 s{s_t0}, s{self.s_wn}, {TN * 4}")
            k.e(f"s_add_u32 s{s_t0}, s{s_t0}, {4 * f}")
            k.e(f"v_bfe_u32 v{v_t2}, v{v_lane}, 4, 1")
            k.e(f"v_lshlrev_b32 v{v_t2}, 1, v{v_t2}")
            k.e(f"v_bfe_u32 v{v_t3}, v{v_lane}, 1, 1")
            k.e(f"v_add3_u32 v{v_t2}, v{v_t2}, v{v_t3}, s{s_t0}")
            k.e(f"v_xor_b32 v{v_t2}, v{v_t2}, v{v_t1}")
            k.e(f"v_lshl_add_u32 v{v_t2}, v{v_t2}, 4, v{v_t0}")
            k.e(f"v_and_b32 v{v_t3}, 1, v{v_lane}")
            k.e(f"v_lshl_add_u32 v{v_t2}, v{v_t3}, 3, v{v_t2}")
            k.e(f"v_add_u32 v{self.bw[f]}, {self.XB}, v{v_t2}")
        self.acc = [[k.v(16, 4) for f in range(TN)] for i in range(TM)]
        NSET = 2 * KS if self.FULL else (2 if self.ACROSS else KS)
        self.fx = [[k.v(4, 4) for i in range(TM)] for s_ in range(NSET)]
        self.fw = [[k.v(4, 4) for f in range(TN)] for s_ in range(NSET)]
        self.ax = [k.v() for _ in range(KS)]
        self.aw_c = [k.v() for _ in range(TN)]
        self.aw_n = [k.v() for _ in range(TN)] if self.ACROSS else None
        self.end_vn = k.vn
        for i in range(TM):
            for f in range(TN):
                for r in range(16):
                    k.e(f"v_mov_b32 v{self.acc[i][f] + r}, 0")

    def reads(self, ks, st, axr, awr):
        out = []
        for i in range(self.TM):
            out.append(f"ds_read_b128 {vr(self.fx[st][i], 4)}, v{axr} offset:{i * 32 * self.RX}")
        for f in range(self.TN):
            for p in range(2):
                out.append(f"ds_read_b64_tr_b16 {vr(self.fw[st][f] + 2 * p, 2)}, v{awr[f]} offset:{(16 * ks + 4 * p) * self.RW}")
        return out

    def mfmas(self, st):
        out = []
        for i in range(self.TM):
            for f in range(self.TN):
                a, b = (self.fw[st][f], self.fx[st][i]) if self.form == "T" else (self.fx[st][i], self.fw[st][f])
                out.append(f"v_mfma_f32_32x32x16_bf16 {vr(self.acc[i][f], 16)}, {vr(a, 4)}, {vr(b, 4)}, {vr(self.acc[i][f], 16)}")
        return out

    def wait_prologue(self, extra=0):
        k = self.k
        k.e(f"s_waitcnt vmcnt({min(63, extra + (self.LEAD - self.CERT) * self.D)})")
        k.e("s_barrier")
        if self.FULL:
            for ks in range(self.KS):
                for ln in self.reads(ks, ks, self.bx[ks], self.bw):
                    k.e(ln)
        elif self.ACROSS:
            for f in range(self.TN):
                k.e(f"v_mov_b32 v{self.aw_c[f]}, v{self.bw[f]}")
            k.e(f"v_mov_b32 v{self.ax[0]}, v{self.bx[0]}")
            for ln in self.reads(0, 0, self.ax[0], self.aw_c):
                k.e(ln)

    def _interleave(self, main, fill, per=1):
        k = self.k
        fill = list(fill)
        for m in main:
            k.e(m)
            for _ in range(per):
                if fill:
                    it = fill.pop(0)
                    for ln in it if isinstance(it, list) else [it]:
                        k.e(ln)
        for it in fill:
            for ln in it if isinstance(it, list) else [it]:
                k.e(ln)

    def _body(self, with_dma):
        k = self.k
        TN, KS = self.TN, self.KS
        dm = self.dma_list() if with_dma else []
        if self.ACROSS:
            assert KS == 2
            k.e(f"v_add_u32 v{self.ax[1]}, s{self.s_cur}, v{self.bx[1]}")
            for f in range(TN):
                k.e(f"v_add_u32 v{self.aw_c[f]}, s{self.s_cur}, v{self.bw[f]}")
            k.e(f"v_add_u32 v{self.ax[0]}, s{self.s_nxt}, v{self.bx[0]}")
            for f in range(TN):
                k.e(f"v_add_u32 v{self.aw_n[f]}, s{self.s_nxt}, v{self.bw[f]}")
            k.e("s_waitcnt lgkmcnt(0)")
            self._interleave(self.mfmas(0), self.reads(1, 1, self.ax[1], self.aw_c), per=2)
            k.e("s_waitcnt lgkmcnt(0)")
            self._interleave(self.mfmas(1), self.reads(0, 0, self.ax[0], self.aw_n) + dm, per=2)
        else:
            for ks in range(KS):
                k.e(f"v_add_u32 v{self.ax[ks]}, s{self.s_cur}, v{self.bx[ks]}")
            for f in range(TN):
                k.e(f"v_add_u32 v{self.aw_c[f]}, s{self.s_cur}, v{self.bw[f]}")
            nr = self.TM + 2 * TN
            for ks in range(KS):
                for ln in self.reads(ks, ks, self.ax[ks], self.aw_c):
                    k.e(ln)
            for g in dm:
                for ln in g:
                    k.e(ln)
            for ks in range(KS):
                k.e(f"s_waitcnt lgkmcnt({min(15, (KS - 1 - ks) * nr)})")
                for ln in self.mfmas(ks):
                    k.e(ln)
        k.e(f"s_mov_b32 s{self.s_cur}, s{self.s_nxt}")
        k.e(f"s_add_u32 s{self.s_nxt}, s{self.s_nxt}, {self.STAGE}")
        k.e(f"s_cmp_eq_u32 s{self.s_nxt}, {self.NSTAGE * self.STAGE}")
        k.e(f"s_cselect_b32 s{self.s_nxt}, 0, s{self.s_nxt}")
        if with_dma:
            k.e(f"s_waitcnt vmcnt({(self.LEAD - self.CERT) * self.D})")
        else:
            k.e("s_waitcnt vmcnt(0)")
        k.e("s_barrier")

    def _body_full(self, par, with_dma):
        k = self.k
        TN, KS = self.TN, self.KS
        for ks in range(KS):
            k.e(f"v_add_u32 v{self.ax[ks]}, s{self.s_nxt}, v{self.bx[ks]}")
        for f in range(TN):
            k.e(f"v_add_u32 v{self.aw_c[f]}, s{self.s_nxt}, v{self.bw[f]}")
        k.e("s_waitcnt lgkmcnt(0)")
        rd = []
        for ks in range(KS):
            rd += self.reads(ks, (par ^ 1) * KS + ks, self.ax[ks], self.aw_c)
        mf = []
        for ks in range(KS):
            mf += self.mfmas(par * KS + ks)
        dm = self.dma_list() if with_dma else []
        fill = []
        nr, nd = len(rd), len(dm)
        di = 0
        for i, r in enumerate(rd):
            fill.append(r)
            while di < nd and (di + 1) * nr <= (i + 1) * nd:
                fill.append(dm[di])
                di += 1
        fill += dm[di:]
        per = (len(fill) + len(mf) - 1) // len(mf)
        self._interleave(mf, fill, per=per)
        k.e(f"s_add_u32 s{self.s_nxt}, s{self.s_nxt}, {self.STAGE}")
        k.e(f"s_cmp_eq_u32 s{self.s_nxt}, {self.NSTAGE * self.STAGE}")
        k.e(f"s_cselect_b32 s{self.s_nxt}, 0, s{self.s_nxt}")
        if with_dma:
            k.e(f"s_waitcnt vmcnt({(self.LEAD - self.CERT) * self.D})")
        else:
            k.e("s_waitcnt vmcnt(0)")
        k.e("s_barrier")

    def loop(self):
        k = self.k
        if self.FULL:
            assert self.LEAD % 2 == 0
            k.e(f"s_sub_u32 s{self.s_cnt}, s{self.s_nt}, {self.LEAD}")
            L1 = k.label("main")
            k.place(L1)
            self._body_full(0, True)
            self._body_full(1, True)
            k.e(f"s_sub_u32 s{self.s_cnt}, s{self.s_cnt}, 2")
            k.e(f"s_cmp_lg_u32 s{self.s_cnt}, 0")
            k.e(f"s_cbranch_scc1 {L1}")
            k.e(f"s_mov_b32 s{self.s_cnt}, {self.LEAD}")
            L2 = k.label("tail")
            k.place(L2)
            self._body_full(0, False)
            self._body_full(1, False)
            k.e(f"s_sub_u32 s{self.s_cnt}, s{self.s_cnt}, 2")
            k.e(f"s_cmp_lg_u32 s{self.s_cnt}, 0")
            k.e(f"s_cbranch_scc1 {L2}")
            k.e("s_waitcnt lgkmcnt(0)")
            k.e("s_nop 15")
            return
        k.e(f"s_sub_u32 s{self.s_cnt}, s{self.s_nt}, {self.LEAD}")
        L1 = k.label("main")
        k.place(L1)
        self._body(True)
        k.e(f"s_sub_u32 s{self.s_cnt}, s{self.s_cnt}, 1")
        k.e(f"s_cmp_lg_u32 s{self.s_cnt}, 0")
        k.e(f"s_cbranch_scc1 {L1}")
        k.e(f"s_mov_b32 s{self.s_cnt}, {self.LEAD}")
        L2 = k.label("tail")
        k.place(L2)
        self._body(False)
        k.e(f"s_sub_u32 s{self.s_cnt}, s{self.s_cnt}, 1")
        k.e(f"s_cmp_lg_u32 s{self.s_cnt}, 0")
        k.e(f"s_cbranch_scc1 {L2}")
        k.e("s_waitcnt lgkmcnt(0)")
        k.e("s_nop 15")

    def epilogue(self):
        k = self.k
        save = k.vn
        k.vn = self.end_vn
        self.epi(k, self.G, self)
        k.vn = max(save, self.G.shared_v)


def run_chain(k, G, jobs):
    prev = None
    pg = getattr(G, "prof", None)
    for ji, (set_in, set_out, g) in enumerate(jobs):
        set_in()
        g.setup_dma()
        g.issue_prologue()
        extra = 0
        if prev is None and G.after_first is not None:
            extra = G.after_first()
        if prev is not None:
            prev.epilogue()
            extra = prev.nstores
        set_out()
        g.setup_rest()
        g.wait_prologue(extra)
        if pg:
            pg.stamp(2 * ji)
        g.loop()
        if pg:
            pg.stamp(2 * ji + 1)
        prev = g
    return prev


def lds_epi_setup(k, G, RB, row_stride_sreg=None, row_stride_shift=None):
    vl = G.v_lane
    vw, vrd, vgo, vt = k.v(), k.v(), k.v(), k.v()
    CPR = RB // 16
    RPI = 64 // CPR
    s0 = G.s_t0
    k.e(f"s_lshl_b32 s{s0}, s{G.s_wave}, 12")
    k.e(f"s_add_u32 s{s0}, s{s0}, {G.epi_base}")
    k.e(f"v_and_b32 v{vt}, 31, v{vl}")
    k.e(f"v_lshlrev_b32 v{vw}, {log2(RB)}, v{vt}")
    k.e(f"v_add_u32 v{vw}, s{s0}, v{vw}")
    k.e(f"v_and_b32 v{vt}, {CPR - 1}, v{vt}")
    k.e(f"v_lshrrev_b32 v{vrd}, 5, v{vl}")
    k.e(f"v_xor_b32 v{vt}, v{vt}, v{vrd}")
    k.e(f"v_lshl_add_u32 v{vw}, v{vt}, 4, v{vw}")
    k.e(f"v_lshrrev_b32 v{vt}, {log2(CPR)}, v{vl}")
    k.e(f"v_xor_b32 v{vrd}, v{vt}, v{vl}")
    k.e(f"v_and_b32 v{vrd}, {CPR - 1}, v{vrd}")
    k.e(f"v_lshlrev_b32 v{vrd}, 4, v{vrd}")
    k.e(f"v_lshl_add_u32 v{vrd}, v{vt}, {log2(RB)}, v{vrd}")
    k.e(f"v_add_u32 v{vrd}, s{s0}, v{vrd}")
    if row_stride_sreg is not None:
        k.e(f"v_mul_lo_u32 v{vgo}, v{vt}, s{row_stride_sreg}")
    else:
        k.e(f"v_lshlrev_b32 v{vgo}, {row_stride_shift}, v{vt}")
    k.e(f"v_and_b32 v{vt}, {CPR - 1}, v{vl}")
    k.e(f"v_lshl_add_u32 v{vgo}, v{vt}, 4, v{vgo}")
    return vw, vrd, vgo, vt


def epi_rowmajor(k, G, g):
    TM, TN = g.TM, g.TN
    acc = g.acc
    s0, s1 = G.s_t0, G.s_t1
    RB = TN * 64
    CPR = RB // 16
    RPI = 64 // CPR
    NQ = 32 // RPI
    k.c("---- epilogue row-major")
    vw, vrd, vgo, vt = lds_epi_setup(k, G, RB, row_stride_sreg=G.ldo)
    s2_ = k.s()
    k.e(f"s_mul_i32 s{s0}, s{g.s_wm}, {TM * 32}")
    k.e(f"s_mul_i32 s{s0}, s{s0}, s{G.ldo}")
    k.e(f"s_add_u32 s{s0}, s{s0}, s{G.obase}")
    k.e(f"s_mul_i32 s{s1}, s{g.s_wn}, {TN * 64}")
    k.e(f"s_add_u32 s{s0}, s{s0}, s{s1}")
    k.e(f"s_mul_i32 s{s1}, s{G.ldo}, {RPI}")
    for i in range(TM):
        for f in range(TN):
            a = acc[i][f]
            t = a
            for r in range(16):
                k.e(f"v_mul_f32 v{a + r}, s{G.scale}, v{a + r}")
            for j in range(8):
                k.e(f"v_cvt_pk_bf16_f32 v{t + j}, v{a + 2 * j}, v{a + 2 * j + 1}")
            k.e("s_nop 1")
            k.e(f"v_permlane32_swap_b32 v{t}, v{t + 2}")
            k.e(f"v_permlane32_swap_b32 v{t + 1}, v{t + 3}")
            k.e(f"v_permlane32_swap_b32 v{t + 4}, v{t + 6}")
            k.e(f"v_permlane32_swap_b32 v{t + 5}, v{t + 7}")
            for jj in range(2):
                c2 = 4 * f + 2 * jj
                if c2:
                    k.e(f"v_xor_b32 v{vt}, {c2 << 4}, v{vw}")
                    k.e(f"ds_write_b128 v{vt}, {vr(t + 4 * jj, 4)}")
                else:
                    k.e("s_nop 0")
                    k.e(f"ds_write_b128 v{vw}, {vr(t + 4 * jj, 4)}")
        k.e("s_waitcnt lgkmcnt(0)")
        dst = [acc[i][q // 2] + 8 + 4 * (q % 2) for q in range(NQ)]
        for q in range(NQ):
            k.e(f"ds_read_b128 {vr(dst[q], 4)}, v{vrd} offset:{q * RPI * RB}")
        for q in range(NQ):
            k.e(f"s_waitcnt lgkmcnt({NQ - 1 - q})")
            k.e(f"buffer_store_dwordx4 {vr(dst[q], 4)}, v{vgo}, {sr(G.sO, 4)}, s{s0} offen")
            k.e(f"s_add_u32 s{s0}, s{s0}, s{s1}")
    k.e("s_nop 1")
    k.sn -= 1


def make_epi_vt(KPB, FS, BS):
    def epi(k, G, g):
        TM, TN = g.TM, g.TN
        acc = g.acc
        s0, s1 = G.s_t0, G.s_t1
        RB = KPB * 2
        assert RB == FS
        CPR = RB // 16
        RPI = 64 // CPR
        NQ = 32 // RPI
        IPB = KPB // 32
        k.c("---- epilogue V^T")
        vw, vrd, vgo, vt = lds_epi_setup(k, G, RB, row_stride_shift=log2(FS))
        assert (TM * 32) % KPB == 0
        k.e(f"s_mul_i32 s{s0}, s{g.s_wm}, {TM * 32 // KPB * BS}")
        k.e(f"s_add_u32 s{s0}, s{s0}, s{G.obase}")
        k.e(f"s_mul_i32 s{s1}, s{g.s_wn}, {TN * 32 * FS}")
        k.e(f"s_add_u32 s{s0}, s{s0}, s{s1}")
        for f in range(TN):
            for blk in range(TM // IPB):
                for ii in range(IPB):
                    a = acc[blk * IPB + ii][f]
                    t = a
                    for j in range(8):
                        k.e(f"v_cvt_pk_bf16_f32 v{t + j}, v{a + 2 * j}, v{a + 2 * j + 1}")
                    for jj in range(2):
                        c2 = 4 * ii + 2 * jj
                        if c2:
                            k.e(f"v_xor_b32 v{vt}, {c2 << 4}, v{vw}")
                            k.e(f"ds_write_b128 v{vt}, {vr(t + 4 * jj, 4)}")
                        else:
                            k.e("s_nop 0")
                            k.e(f"ds_write_b128 v{vw}, {vr(t + 4 * jj, 4)}")
                k.e("s_waitcnt lgkmcnt(0)")
                dst = [acc[blk * IPB + q // 2][f] + 8 + 4 * (q % 2) for q in range(NQ)]
                for q in range(NQ):
                    k.e(f"ds_read_b128 {vr(dst[q], 4)}, v{vrd} offset:{q * RPI * RB}")
                for q in range(NQ):
                    k.e(f"s_add_u32 s{s1}, s{s0}, {blk * BS + f * 32 * FS + q * RPI * FS}")
                    k.e(f"s_waitcnt lgkmcnt({NQ - 1 - q})")
                    k.e(f"buffer_store_dwordx4 {vr(dst[q], 4)}, v{vgo}, {sr(G.sO, 4)}, s{s1} offen")
        k.e("s_nop 1")

    return epi


def kern_proj():
    k = K("proj_kernel")
    G = GemmCtx(k)
    G.epi_base = 128 * 1024
    pBX, pBWQ, pCKV, pWUK, pWUV, pAX, pAWQ, pAWK, pAWV, pWS = [k.s(2) for _ in range(10)]
    s_id, s_tm, s_tn, s_t = k.s(), k.s(), k.s(), k.s()
    Lend, Lkv = k.label("end"), k.label("kv")
    k.e("s_cmp_ge_u32 s2, 256")
    k.e(f"s_cbranch_scc1 {Lend}")
    for p, off in ((pBX, KA_BX), (pBWQ, KA_BWQ), (pCKV, KA_CKV), (pWUK, KA_WUK), (pWUV, KA_WUV), (pAX, KA_AX),
                   (pAWQ, KA_AWQ), (pAWK, KA_AWK), (pAWV, KA_AWV), (pWS, KA_WS)):
        load_ptr(k, p, off)
    G.init_ids()
    k.e(f"s_and_b32 s{s_id}, s2, 127")
    k.e(f"s_and_b32 s{s_tm}, s{s_id}, 1")
    k.e(f"s_lshl_b32 s{s_tm}, s{s_tm}, 2")
    k.e(f"s_bfe_u32 s{s_t}, s{s_id}, 0x20003")
    k.e(f"s_add_u32 s{s_tm}, s{s_tm}, s{s_t}")
    k.e(f"s_bfe_u32 s{s_tn}, s{s_id}, 0x20001")
    k.e(f"s_lshl_b32 s{s_tn}, s{s_tn}, 2")
    k.e(f"s_lshr_b32 s{s_t}, s{s_id}, 5")
    k.e(f"s_add_u32 s{s_tn}, s{s_tn}, s{s_t}")
    k.e("s_waitcnt lgkmcnt(0)")
    G.prof = Prof(k, 6)
    G.prof.start()

    def big_in(px, xsz, pw_, wsz, ldx, nt, tmshift):
        def f():
            make_srd(k, G.sX, px, 0, xsz)
            make_srd(k, G.sW, pw_, 0, wsz)
            k.e(f"s_mov_b32 s{G.ldx}, {ldx}")
            k.e(f"s_mov_b32 s{G.ldw}, 8192")
            k.e(f"s_mov_b32 s{G.nt}, {nt}")
            k.e(f"s_lshl_b32 s{G.tm_off}, s{s_tm}, {tmshift}")
            k.e(f"s_lshl_b32 s{G.tn_off}, s{s_tn}, 9")
        return f

    def big_out(wsoff, scale, fix):
        def f():
            make_srd(k, G.sO, pWS, wsoff, 16 * MB)
            k.e(f"s_mov_b32 s{G.scale}, {scale}")
            k.e(f"s_mov_b32 s{G.ldo}, 256")
            k.e(f"s_lshl_b32 s{G.obase}, s{s_tn}, 20")
            k.e(f"s_lshl_b32 s{s_t}, s{s_tm}, 16")
            k.e(f"s_add_u32 s{G.obase}, s{G.obase}, s{s_t}")
            k.e(f"s_lshr_b32 s{s_t}, s{G.s_wave}, 2")
            k.e(f"s_mul_i32 s{s_t}, s{s_t}, {fix}")
            k.e(f"s_add_u32 s{G.obase}, s{G.obase}, s{s_t}")
        return f

    def qa_in():
        make_srd(k, G.sX, pAX, 0, 2048 * 1024 * 2)
        make_srd(k, G.sW, pAWQ, 0, 1024 * 1024 * 2)
        k.e(f"s_mov_b32 s{G.ldx}, 2048")
        k.e(f"s_mov_b32 s{G.ldw}, 2048")
        k.e(f"s_mov_b32 s{G.nt}, 16")
        k.e(f"s_and_b32 s{s_t}, s2, 15")
        k.e(f"s_lshl_b32 s{G.tm_off}, s{s_t}, 18")
        k.e(f"s_lshr_b32 s{s_t}, s2, 4")
        k.e(f"s_lshl_b32 s{G.tn_off}, s{s_t}, 7")

    def qa_out():
        make_srd(k, G.sO, pWS, WS_QA, 4 * MB)
        k.e(f"s_mov_b32 s{G.scale}, {f32hex(CA)}")
        k.e(f"s_mov_b32 s{G.ldo}, 2048")
        k.e(f"s_add_u32 s{G.obase}, s{G.tm_off}, s{G.tn_off}")

    def kva_in(pw_):
        def f():
            make_srd(k, G.sX, pAX, 0, 2048 * 1024 * 2)
            make_srd(k, G.sW, pw_, 0, 1024 * 32 * 2)
            k.e(f"s_mov_b32 s{G.ldx}, 2048")
            k.e(f"s_mov_b32 s{G.ldw}, 64")
            k.e(f"s_mov_b32 s{G.nt}, 16")
            k.e(f"s_and_b32 s{s_t}, s2, 15")
            k.e(f"s_lshl_b32 s{G.tm_off}, s{s_t}, 18")
            k.e(f"s_mov_b32 s{G.tn_off}, 0")
        return f

    def kva_out(wsoff):
        def f():
            make_srd(k, G.sO, pWS, wsoff, 2048 * 64)
            k.e(f"s_mov_b32 s{G.scale}, 1.0")
            k.e(f"s_mov_b32 s{G.ldo}, 64")
            k.e(f"s_and_b32 s{s_t}, s2, 15")
            k.e(f"s_lshl_b32 s{G.obase}, s{s_t}, 13")
        return f

    sPF = k.s(4)

    def coop_prefetch():
        n = 0
        k.e(f"v_lshlrev_b32 v{G.vpfo}, 4, v0")
        for p, mb in ((pBX, 4), (pBWQ, 8), (pCKV, 2), (pWUK, 4), (pWUV, 4), (pAX, 4), (pAWQ, 2)):
            make_srd(k, sPF, p, 0, mb * MB)
            rounds = mb * MB // 256 // 8192
            k.e(f"s_mul_i32 s{s_t}, s2, {rounds * 8192}")
            for r in range(rounds):
                k.e(f"buffer_load_dwordx4 {vr(G.vpf, 4)}, v{G.vpfo}, {sr(sPF, 4)}, s{s_t} offen")
                k.e(f"s_add_u32 s{s_t}, s{s_t}, 8192")
                n += 1
        return n

    if PREFETCH:
        G.after_first = coop_prefetch
    BIG = (2, 4, 4, 2, 32, 4, True)
    MINI = (4, 2, 1, 1, 64, 5, 2)
    KVA = (4, 1, 1, 1, 64, 5, False)
    save_s = k.sn

    def tail_jobs(first_jobs):
        last = run_chain(k, G, first_jobs + [(qa_in, qa_out, Gemm(G, *MINI, "T", epi_rowmajor))])
        last.epilogue()
        G.prof.dump(pWS, G.sX, G.vt[0], G.vt[1])
        G.prof_saved, G.prof = G.prof, None

    k.e("s_cmp_ge_u32 s2, 128")
    k.e(f"s_cbranch_scc1 {Lkv}")
    tail_jobs([(big_in(pBX, 2048 * 1024 * 2, pBWQ, 1024 * 4096 * 2, 2048, 32, 19),
                big_out(WS_QB, f32hex(CB), 524288 - 256), Gemm(G, *BIG, "T", epi_rowmajor))])
    Lidle, Lv = k.label("idle"), k.label("va")
    saved_af, G.after_first = G.after_first, None
    k.e("s_cmp_ge_u32 s2, 32")
    k.e(f"s_cbranch_scc1 {Lend}")
    k.e(f"s_cmp_ge_u32 s{G.s_wave}, 4")
    k.e(f"s_cbranch_scc1 {Lidle}")
    k.e("s_cmp_ge_u32 s2, 16")
    k.e(f"s_cbranch_scc1 {Lv}")
    k.sn = save_s
    run_chain(k, G, [(kva_in(pAWK), kva_out(WS_KA), Gemm(G, *KVA, "T", epi_rowmajor))]).epilogue()
    k.e(f"s_branch {Lend}")
    k.place(Lv)
    k.sn = save_s
    run_chain(k, G, [(kva_in(pAWV), kva_out(WS_VA), Gemm(G, *KVA, "N", make_epi_vt(32, 64, 2048)))]).epilogue()
    k.e(f"s_branch {Lend}")
    k.place(Lidle)
    k.e(f"s_mov_b32 s{s_t}, 17")
    Lb = k.label("idlel")
    k.place(Lb)
    k.e("s_barrier")
    k.e(f"s_sub_u32 s{s_t}, s{s_t}, 1")
    k.e(f"s_cmp_lg_u32 s{s_t}, 0")
    k.e(f"s_cbranch_scc1 {Lb}")
    k.e(f"s_branch {Lend}")
    k.place(Lkv)
    k.sn = save_s
    G.prof = G.prof_saved
    G.after_first = saved_af

    def v_out():
        make_srd(k, G.sO, pWS, WS_VB, 16 * MB)
        k.e(f"s_lshl_b32 s{G.obase}, s{s_tn}, 20")
        k.e(f"s_lshl_b32 s{s_t}, s{s_tm}, 16")
        k.e(f"s_add_u32 s{G.obase}, s{G.obase}, s{s_t}")
        k.e(f"s_lshr_b32 s{s_t}, s{G.s_wave}, 2")
        k.e(f"s_mul_i32 s{s_t}, s{s_t}, {524288 - 16384}")
        k.e(f"s_add_u32 s{G.obase}, s{G.obase}, s{s_t}")

    tail_jobs([(big_in(pCKV, 2048 * 512 * 2, pWUK, 512 * 4096 * 2, 1024, 16, 18),
                big_out(WS_KB, "1.0", 524288 - 256), Gemm(G, *BIG, "T", epi_rowmajor)),
               (big_in(pCKV, 2048 * 512 * 2, pWUV, 512 * 4096 * 2, 1024, 16, 18),
                v_out, Gemm(G, *BIG, "N", make_epi_vt(64, 128, 16384)))])
    k.place(Lend)
    k.e("s_endpgm")
    return k


def kern_out():
    k = K("outp_kernel")
    G = GemmCtx(k)
    G.epi_base = 0
    G.kxstep = 16384
    pWS, pOUT, pBWO, pAWO = [k.s(2) for _ in range(4)]
    s_tm, s_tn, s_t, s_id = k.s(), k.s(), k.s(), k.s()
    Lend, La = k.label("end"), k.label("a")
    k.e("s_cmp_ge_u32 s2, 256")
    k.e(f"s_cbranch_scc1 {Lend}")
    for p, off in ((pWS, KA_WS), (pOUT, KA_OUT), (pBWO, KA_BWO), (pAWO, KA_AWO)):
        load_ptr(k, p, off)
    G.init_ids()
    k.e(f"s_and_b32 s{s_id}, s2, 127")
    k.e(f"s_and_b32 s{s_tm}, s{s_id}, 3")
    k.e(f"s_lshl_b32 s{s_tm}, s{s_tm}, 2")
    k.e(f"s_bfe_u32 s{s_t}, s{s_id}, 0x20003")
    k.e(f"s_add_u32 s{s_tm}, s{s_tm}, s{s_t}")
    k.e(f"s_bfe_u32 s{s_tn}, s{s_id}, 0x10002")
    k.e(f"s_lshl_b32 s{s_tn}, s{s_tn}, 2")
    k.e(f"s_lshr_b32 s{s_t}, s{s_id}, 5")
    k.e(f"s_add_u32 s{s_tn}, s{s_tn}, s{s_t}")
    k.e("s_waitcnt lgkmcnt(0)")
    G.prof = Prof(k, 6)
    G.prof.start()

    def j_in(wsoff, xsz, pw_, wsz, ldx, nt, sh):
        def f():
            make_srd(k, G.sX, pWS, wsoff, xsz)
            make_srd(k, G.sW, pw_, 0, wsz)
            k.e(f"s_mov_b32 s{G.ldx}, {ldx}")
            k.e(f"s_mov_b32 s{G.ldw}, 2048")
            k.e(f"s_mov_b32 s{G.nt}, {nt}")
            k.e(f"s_lshl_b32 s{G.tm_off}, s{s_tm}, {sh}")
            k.e(f"s_lshl_b32 s{G.tn_off}, s{s_tn}, 8")
        return f

    def j_out(col):
        def f():
            make_srd(k, G.sO, pOUT, 0, 2048 * 2048 * 2)
            k.e(f"s_mov_b32 s{G.scale}, 1.0")
            k.e(f"s_mov_b32 s{G.ldo}, 4096")
            k.e(f"s_lshl_b32 s{G.obase}, s{s_tm}, 19")
            k.e(f"s_lshl_b32 s{s_t}, s{s_tn}, 8")
            k.e(f"s_add_u32 s{G.obase}, s{G.obase}, s{s_t}")
            if col:
                k.e(f"s_add_u32 s{G.obase}, s{G.obase}, {col}")
        return f

    CFG = (2, 2, 2, 2, 64, 5, 2)
    Lgo = k.label("go")
    k.e("s_cmp_ge_u32 s2, 128")
    k.e(f"s_cbranch_scc1 {La}")
    j_in(WS_CTX, 16 * MB, pBWO, 4096 * 1024 * 2, 128, 64, 20)()
    j_out(2048)()
    k.e(f"s_branch {Lgo}")
    k.place(La)
    j_in(WS_OA, 4 * MB, pAWO, 1024 * 1024 * 2, 128, 16, 18)()
    j_out(0)()
    k.place(Lgo)
    nop = lambda: None
    last = run_chain(k, G, [(nop, nop, Gemm(G, *CFG, "T", epi_rowmajor))])
    last.epilogue()
    G.prof.dump(pWS, G.sX, G.vt[0], G.vt[1])
    k.place(Lend)
    k.e("s_endpgm")
    return k


def kern_out_full(nw):
    k = K("outp_kernel")
    G = GemmCtx(k)
    G.epi_base = 120 * 1024
    G.kxstep = 16384
    pWS, pOUT, pBWO, pAWO = [k.s(2) for _ in range(4)]
    s_tm, s_tn, s_t = k.s(), k.s(), k.s()
    Lend = k.label("end")
    k.e("s_cmp_ge_u32 s2, 256")
    k.e(f"s_cbranch_scc1 {Lend}")
    for p, off in ((pWS, KA_WS), (pOUT, KA_OUT), (pBWO, KA_BWO), (pAWO, KA_AWO)):
        load_ptr(k, p, off)
    G.init_ids()
    k.e(f"s_and_b32 s{s_tm}, s2, 3")
    k.e(f"s_lshl_b32 s{s_tm}, s{s_tm}, 2")
    k.e(f"s_bfe_u32 s{s_t}, s2, 0x20003")
    k.e(f"s_add_u32 s{s_tm}, s{s_tm}, s{s_t}")
    k.e(f"s_bfe_u32 s{s_tn}, s2, 0x10002")
    k.e(f"s_lshl_b32 s{s_tn}, s{s_tn}, 3")
    k.e(f"s_lshr_b32 s{s_t}, s2, 5")
    k.e(f"s_add_u32 s{s_tn}, s{s_tn}, s{s_t}")
    k.e("s_waitcnt lgkmcnt(0)")
    G.prof = Prof(k, 6)
    G.prof.start()

    def j_in(wsoff, xsz, pw_, wsz, ldx, nt, sh):
        def f():
            make_srd(k, G.sX, pWS, wsoff, xsz)
            make_srd(k, G.sW, pw_, 0, wsz)
            k.e(f"s_mov_b32 s{G.ldx}, {ldx}")
            k.e(f"s_mov_b32 s{G.ldw}, 2048")
            k.e(f"s_mov_b32 s{G.nt}, {nt}")
            k.e(f"s_lshl_b32 s{G.tm_off}, s{s_tm}, {sh}")
            k.e(f"s_lshl_b32 s{G.tn_off}, s{s_tn}, 7")
        return f

    def j_out(col):
        def f():
            make_srd(k, G.sO, pOUT, 0, 2048 * 2048 * 2)
            k.e(f"s_mov_b32 s{G.scale}, 1.0")
            k.e(f"s_mov_b32 s{G.ldo}, 4096")
            k.e(f"s_lshl_b32 s{G.obase}, s{s_tm}, 19")
            k.e(f"s_lshl_b32 s{s_t}, s{s_tn}, 7")
            k.e(f"s_add_u32 s{G.obase}, s{G.obase}, s{s_t}")
            if col:
                k.e(f"s_add_u32 s{G.obase}, s{G.obase}, {col}")
        return f

    CFG = (4, 2, 1, 1, 64, 5, 2) if nw == 8 else (2, 2, 2, 1, 64, 5, 2)
    last = run_chain(k, G, [
        (j_in(WS_CTX, 16 * MB, pBWO, 4096 * 1024 * 2, 128, 64, 20), j_out(2048), Gemm(G, *CFG, "T", epi_rowmajor)),
        (j_in(WS_OA, 4 * MB, pAWO, 1024 * 1024 * 2, 128, 16, 18), j_out(0), Gemm(G, *CFG, "T", epi_rowmajor)),
    ])
    last.epilogue()
    G.prof.dump(pWS, G.sX, G.vt[0], G.vt[1])
    k.place(Lend)
    k.e("s_endpgm")
    return k


NEG_INF = "0xff800000"
NWG_A = 512
CB = math.log2(math.e) / math.sqrt(128.0)
CA = math.log2(math.e) / math.sqrt(32.0)
THR = float(os.environ.get("THR", "32"))


def f32hex(x):
    import struct

    return "0x%08x" % struct.unpack("<I", struct.pack("<f", x))[0]


def weave(k, main, fills):
    for ln in fills.get(-1, []):
        k.e(ln)
    for i, m in enumerate(main):
        k.e(m)
        for ln in fills.get(i, []):
            k.e(ln)


def max_tree(S, n, vt):
    out = [f"v_max3_f32 v{vt}, v{S}, v{S + 1}, v{S + 2}"]
    i = 3
    while i + 1 < n:
        out.append(f"v_max3_f32 v{vt}, v{vt}, v{S + i}, v{S + i + 1}")
        i += 2
    if i < n:
        out.append(f"v_max_f32 v{vt}, v{vt}, v{S + i}")
    return out


def xhalf_max(k, vt0, vt1):
    k.e(f"v_mov_b32 v{vt1}, v{vt0}")
    k.e("s_nop 1")
    k.e(f"v_permlane32_swap_b32 v{vt0}, v{vt1}")
    k.e("s_nop 1")
    k.e(f"v_max_f32 v{vt0}, v{vt0}, v{vt1}")


def first_tile_norm(k, S, CI, vt0, vt1):
    for ln in max_tree(S, 32, vt0):
        k.e(ln)
    xhalf_max(k, vt0, vt1)
    for r in range(32):
        k.e(f"v_sub_f32 v{S + r}, v{S + r}, v{vt0}")
    k.e(f"v_sub_f32 v{vt1}, 0, v{vt0}")
    for r in range(16):
        k.e(f"v_mov_b32 v{CI + r}, v{vt1}")


def check_rescale(k, Sn, CI, O, nO, lacc, vt0, vt1, lsum_mfma=False):
    xhalf_max(k, vt0, vt1)
    k.e(f"v_cmp_lt_f32 vcc, {THR}, v{vt0}") if THR in (0.5, 1.0, 2.0, 4.0) else k.e(
        f"v_cmp_lt_f32 vcc, {f32hex(THR)}, v{vt0}")
    Ls = k.label("nors")
    k.e(f"s_cbranch_vccz {Ls}")
    k.e(f"v_max_f32 v{vt0}, 0, v{vt0}")
    k.e(f"v_sub_f32 v{vt1}, 0, v{vt0}")
    k.e(f"v_exp_f32 v{vt1}, v{vt1}")
    for r in range(32):
        k.e(f"v_sub_f32 v{Sn + r}, v{Sn + r}, v{vt0}")
    for r in range(16):
        k.e(f"v_sub_f32 v{CI + r}, v{CI + r}, v{vt0}")
    k.e("s_nop 7")
    k.e(f"v_mul_f32 v{lacc}, v{lacc}, v{vt1}")
    if not lsum_mfma:
        k.e(f"v_mul_f32 v{lacc + 1}, v{lacc + 1}, v{vt1}")
    for r in range(nO):
        k.e(f"v_mul_f32 v{O + r}, v{O + r}, v{vt1}")
    k.e("s_nop 1")
    k.place(Ls)


def finish_store(k, O, ntile, lacc, vt0, vt1, vo, srd, soff, lsum_mfma=False, s_bad=None, lowchk=False, soff2=None):
    def chk(v):
        if s_bad is None:
            return
        k.e(f"v_mov_b32 v{vt1}, {f32hex(LSAFE)}")
        k.e(f"v_cmp_nlt_f32 vcc, v{v}, v{vt1}")
        k.e("s_nop 1")
        k.e(f"s_or_b32 s{s_bad}, s{s_bad}, vcc_lo")
        k.e(f"s_or_b32 s{s_bad}, s{s_bad}, vcc_hi")
        if lowchk:
            k.e(f"v_mov_b32 v{vt1}, {f32hex(2.0 ** -60)}")
            k.e(f"v_cmp_ngt_f32 vcc, v{v}, v{vt1}")
            k.e("s_nop 1")
            k.e(f"s_or_b32 s{s_bad}, s{s_bad}, vcc_lo")
            k.e(f"s_or_b32 s{s_bad}, s{s_bad}, vcc_hi")

    if lsum_mfma:
        chk(lacc)
        k.e(f"v_rcp_f32 v{vt0}, v{lacc}")
    else:
        k.e(f"v_add_f32 v{vt0}, v{lacc}, v{lacc + 1}")
        k.e(f"v_mov_b32 v{vt1}, v{vt0}")
        k.e("s_nop 1")
        k.e(f"v_permlane32_swap_b32 v{vt0}, v{vt1}")
        k.e("s_nop 1")
        k.e(f"v_add_f32 v{vt0}, v{vt0}, v{vt1}")
        chk(vt0)
        k.e(f"v_rcp_f32 v{vt0}, v{vt0}")
    k.e("s_nop 0")
    for dt in range(ntile):
        a = O + 16 * dt
        tt = a
        for r in range(16):
            k.e(f"v_mul_f32 v{a + r}, v{a + r}, v{vt0}")
        for j in range(8):
            k.e(f"v_cvt_pk_bf16_f32 v{tt + j}, v{a + 2 * j}, v{a + 2 * j + 1}")
        k.e("s_nop 1")
        k.e(f"v_permlane32_swap_b32 v{tt}, v{tt + 2}")
        k.e(f"v_permlane32_swap_b32 v{tt + 1}, v{tt + 3}")
        k.e(f"v_permlane32_swap_b32 v{tt + 4}, v{tt + 6}")
        k.e(f"v_permlane32_swap_b32 v{tt + 5}, v{tt + 7}")
        k.e("s_nop 1")
        so = soff if dt < 2 else soff2
        k.e(f"buffer_store_dwordx4 {vr(tt, 4)}, v{vo}, {sr(srd, 4)}, s{so} offen offset:{(dt & 1) * 64}")
        k.e(f"buffer_store_dwordx4 {vr(tt + 4, 4)}, v{vo}, {sr(srd, 4)}, s{so} offen offset:{(dt & 1) * 64 + 32}")
    k.e("s_nop 1")


KT = 16640
ABASE = 4 * KT
VOTE_OFF = 0
ATTN_LDS = ABASE + 3 * 16384
FASTMAX = int(os.environ.get("FASTMAX", "1"))
AONES = int(os.environ.get("AONES", "0"))
PREFETCH = int(os.environ.get("PREFETCH", "1"))
LSAFE = float(os.environ.get("LSAFE", str(2.0 ** 100)))


def kern_attn():
    k = K("attn_kernel")
    Lend = k.label("end")
    k.e("s_cmp_ge_u32 s2, 256")
    k.e(f"s_cbranch_scc1 {Lend}")
    pw = k.s(2)
    load_ptr(k, pw, KA_WS)
    pf0, pf1 = k.s(2), k.s(2)
    load_ptr(k, pf0, KA_BWO)
    load_ptr(k, pf1, KA_AWO)
    sQ, sK, sV, sO = k.s(4), k.s(4), k.s(4), k.s(4)
    s_wave = k.s()
    s_t0, s_t1 = k.s(), k.s()
    s_pass = k.s()
    s_wave0, s_bad = k.s(), k.s()
    v_lane, vt0, vt1, vt2 = k.v(), k.v(), k.v(), k.v()
    k.e(f"v_and_b32 v{v_lane}, 63, v0")
    k.e(f"v_lshrrev_b32 v{vt0}, 6, v0")
    k.e("s_nop 0")
    k.e(f"v_readfirstlane_b32 s{s_wave0}, v{vt0}")
    k.e(f"s_mov_b32 s{s_bad}, 0")
    k.e("s_waitcnt lgkmcnt(0)")
    save_v, save_s = k.vn, k.sn
    AST = 16384

    def role_b(fast, Ldone):
        k.e(f"s_mov_b32 s{s_wave}, s{s_wave0}")
        make_srd(k, sQ, pw, WS_QB, 16 * MB)
        make_srd(k, sK, pw, WS_KB, 16 * MB)
        make_srd(k, sV, pw, WS_VB, 16 * MB)
        make_srd(k, sO, pw, WS_CTX, 16 * MB)
        s_head, s_qb, s_q0, s_nt, s_kt, s_koff, s_voff, s_mdst = [k.s() for _ in range(8)]
        sm = [k.s(2) for _ in range(4)]
        pr = Prof(k, 6)
        pr.tot_start()
        k.e(f"s_and_b32 s{s_head}, s2, 31")
        k.e(f"s_lshr_b32 s{s_qb}, s2, 5")
        k.e(f"s_sub_u32 s{s_qb}, 15, s{s_qb}")
        Q = k.v(32, 4)
        O = k.v(64, 4)
        SS = [k.v(32, 4), k.v(32, 4)]
        P = k.v(16, 4)
        CI = k.v(16, 4)
        F = [k.v(4, 4) for _ in range(8)]
        lacc = k.v(2, 2)
        vq, vh4, vdiff = k.v(), k.v(), k.v()
        vdk, vdv, ak, avh = k.v(), k.v(), k.v(), k.v()
        k.e(f"v_lshrrev_b32 v{vt2}, 5, v{v_lane}")
        k.e(f"v_lshlrev_b32 v{vh4}, 2, v{vt2}")
        k.e(f"v_lshrrev_b32 v{vt0}, 4, v{v_lane}")
        k.e(f"v_lshlrev_b32 v{vt0}, 12, v{vt0}")
        k.e(f"v_and_b32 v{vt1}, 15, v{v_lane}")
        k.e(f"v_lshl_add_u32 v{vt0}, v{vt1}, 4, v{vt0}")
        k.e(f"s_lshl_b32 s{s_t0}, s{s_wave}, 10")
        k.e(f"v_add_u32 v{vdk}, s{s_t0}, v{vt0}")
        k.e(f"v_lshrrev_b32 v{vt0}, 4, v{v_lane}")
        k.e(f"v_lshlrev_b32 v{vt0}, 4, v{vt0}")
        k.e(f"v_bfe_u32 v{vt1}, v{v_lane}, 3, 1")
        k.e(f"v_lshl_add_u32 v{vt0}, v{vt1}, 6, v{vt0}")
        k.e(f"s_lshl_b32 s{s_t0}, s{s_wave}, 2")
        k.e(f"v_lshlrev_b32 v{vt1}, 3, v{vt1}")
        k.e(f"v_add_u32 v{vt1}, s{s_t0}, v{vt1}")
        k.e(f"v_and_b32 v{vt1}, 15, v{vt1}")
        k.e(f"v_add_u32 v{vt0}, v{vt0}, v{vt1}")
        k.e(f"v_lshlrev_b32 v{vt0}, 7, v{vt0}")
        k.e(f"v_and_b32 v{vt1}, 7, v{v_lane}")
        k.e(f"v_lshl_add_u32 v{vdv}, v{vt1}, 4, v{vt0}")
        k.e(f"v_and_b32 v{vt0}, 15, v{v_lane}")
        k.e(f"v_mul_u32_u24 v{vt1}, 1040, v{vt0}")
        k.e(f"v_bfe_u32 v{vt2}, v{v_lane}, 4, 1")
        k.e(f"v_lshlrev_b32 v{vt2}, 8, v{vt2}")
        k.e(f"v_lshl_add_u32 v{vt2}, v{vh4}, 2, v{vt2}")
        k.e(f"v_add_u32 v{ak}, v{vt1}, v{vt2}")
        k.e(f"v_add_u32 v{vt0}, 8, v{vt0}")
        k.e(f"v_and_b32 v{vt0}, 15, v{vt0}")
        k.e(f"v_mul_u32_u24 v{vt1}, 1040, v{vt0}")
        k.e(f"v_add_u32 v{vt1}, {2 * KT + 128}, v{vt1}")
        k.e(f"v_add_u32 v{avh}, v{vt1}, v{vt2}")
        k.e(f"s_mul_i32 s{s_mdst}, s{s_wave}, {4 * 1040}")

        def dmaK(st):
            out = []
            for jj in range(4):
                out.append([f"s_add_u32 m0, s{s_mdst}, {st * KT + jj * 1040 - jj * 256}", "s_nop 0",
                            f"buffer_load_dwordx4 v{vdk}, {sr(sK, 4)}, s{s_koff} offen offset:{jj * 256} lds"])
            out[-1].append(f"s_add_u32 s{s_koff}, s{s_koff}, 16384")
            return out

        def dmaV(st):
            out = []
            for jj in range(4):
                out.append([f"s_add_u32 m0, s{s_mdst}, {(2 + st) * KT + jj * 1040 - jj * 128}", "s_nop 0",
                            f"buffer_load_dwordx4 v{vdv}, {sr(sV, 4)}, s{s_voff} offen offset:{jj * 128} lds"])
            out[-1].append(f"s_add_u32 s{s_voff}, s{s_voff}, 16384")
            return out

        def block_loads():
            k.e(f"s_lshl_b32 s{s_q0}, s{s_qb}, 7")
            k.e(f"s_lshl_b32 s{s_t0}, s{s_wave}, 5")
            k.e(f"s_add_u32 s{s_q0}, s{s_q0}, s{s_t0}")
            k.e(f"s_lshl_b32 s{s_koff}, s{s_head}, 19")
            k.e(f"s_mov_b32 s{s_voff}, s{s_koff}")
            k.e(f"v_and_b32 v{vt0}, 31, v{v_lane}")
            k.e(f"v_add_u32 v{vt0}, s{s_q0}, v{vt0}")
            k.e(f"v_lshlrev_b32 v{vt1}, 8, v{vt0}")
            k.e(f"v_lshl_add_u32 v{vt1}, v{vh4}, 2, v{vt1}")
            for ds in range(8):
                k.e(f"buffer_load_dwordx4 {vr(Q + 4 * ds, 4)}, v{vt1}, {sr(sQ, 4)}, s{s_koff} offen offset:{ds * 32}")
            for g in dmaK(0) + dmaK(1) + dmaV(0):
                for ln in g:
                    k.e(ln)

        def kread(n, st):
            kk, ds = n // 8, n % 8
            return f"ds_read_b128 {vr(F[n % 8], 4)}, v{ak} offset:{st * KT + kk * 512 + ds * 32}"

        vseq = [(dt, g) for g in range(4) for dt in range(4)]

        def vread(n, st):
            dt, g = vseq[n]
            if dt < 2:
                return f"ds_read_b128 {vr(F[n % 8], 4)}, v{ak} offset:{(2 + st) * KT + dt * 512 + g * 32}"
            return f"ds_read_b128 {vr(F[n % 8], 4)}, v{avh} offset:{st * KT + (dt - 2) * 512 + g * 32}"

        def qk_mfma(n, Sd, cinit):
            kk, ds = n // 8, n % 8
            cin = cinit if ds == 0 else vr(Sd + 16 * kk, 16)
            return f"v_mfma_f32_32x32x16_bf16 {vr(Sd + 16 * kk, 16)}, {vr(F[n % 8], 4)}, {vr(Q + 4 * ds, 4)}, {cin}"

        def pv_mfma(n):
            dt, g = vseq[n]
            return f"v_mfma_f32_32x32x16_bf16 {vr(O + 16 * dt, 16)}, {vr(F[n % 8], 4)}, {vr(P + 4 * g, 4)}, {vr(O + 16 * dt, 16)}"

        def mask_ops(Sn):
            out = [f"v_subrev_u32 v{vdiff}, s{s_t1}, v{vq}", f"v_sub_u32 v{vdiff}, v{vdiff}, v{vh4}",
                   f"v_mov_b32 v{vt2}, {NEG_INF}"]
            for q in range(8):
                for j in range(4):
                    r = 4 * q + j
                    cst = 32 * (r >> 4) + 8 * ((r & 15) >> 2) + (r & 3)
                    out.append(f"v_cmp_gt_i32 {sr(sm[j], 2)}, {cst}, v{vdiff}")
                for j in range(4):
                    r = 4 * q + j
                    out.append(f"v_cndmask_b32 v{Sn + r}, v{Sn + r}, v{vt2}, {sr(sm[j], 2)}")
            return out

        def phase_qk(Sn, stK, Sc, cinit, dm=()):
            dm = list(dm)
            for n in range(8):
                k.e(kread(n, stK))
            for n in range(16):
                if n % 4 == 0:
                    k.e("s_waitcnt lgkmcnt(4)" if n < 12 else "s_waitcnt lgkmcnt(0)")
                k.e(qk_mfma(n, Sn, cinit))
                if n % 4 == 3 and n + 5 < 16:
                    for m in range(n + 5, n + 9):
                        k.e(kread(m, stK))
                if n % 4 != 3 and dm:
                    for ln in dm.pop(0):
                        k.e(ln)
                if Sc is not None:
                    k.e(f"v_exp_f32 v{Sc + 2 * n}, v{Sc + 2 * n}")
                    k.e(f"v_exp_f32 v{Sc + 2 * n + 1}, v{Sc + 2 * n + 1}")
                    if n > 0:
                        k.e(f"v_cvt_pk_bf16_f32 v{P + n - 1}, v{Sc + 2 * n - 2}, v{Sc + 2 * n - 1}")
            if Sc is not None:
                k.e(f"v_cvt_pk_bf16_f32 v{P + 15}, v{Sc + 30}, v{Sc + 31}")

        def phase_pv(Sc, stV, Sn, masked):
            for n in range(8):
                k.e(vread(n, stV))
            mt = max_tree(Sn, 32, vt0) if (Sn is not None and not fast) else []
            mk = mask_ops(Sn) if masked else []
            for n in range(16):
                if n % 4 == 0:
                    k.e("s_waitcnt lgkmcnt(4)" if n < 12 else "s_waitcnt lgkmcnt(0)")
                k.e(pv_mfma(n))
                if n % 4 == 3 and n + 5 < 16:
                    for m in range(n + 5, n + 9):
                        k.e(vread(m, stV))
                k.e(f"v_add_f32 v{lacc}, v{lacc}, v{Sc + 2 * n}")
                k.e(f"v_add_f32 v{lacc + 1}, v{lacc + 1}, v{Sc + 2 * n + 1}")
                if masked:
                    if n == 6:
                        for ln in mk:
                            k.e(ln)
                    if n >= 7:
                        for _ in range(2):
                            if mt:
                                k.e(mt.pop(0))
                elif n >= 4:
                    for _ in range(2 if n < 8 else 1):
                        if mt:
                            k.e(mt.pop(0))
            for ln in mt:
                k.e(ln)

        def full(par):
            Sc, Sn = SS[par], SS[par ^ 1]
            phase_qk(Sn, par ^ 1, Sc, vr(CI, 16), dmaK(par) + dmaV(par ^ 1))
            pr.stamp(0)
            Lm, Lj = k.label("msk"), k.label("join")
            k.e(f"s_add_u32 s{s_t0}, s{s_kt}, 3")
            k.e(f"s_cmp_ge_u32 s{s_t0}, s{s_nt}")
            k.e(f"s_cbranch_scc1 {Lm}")
            phase_pv(Sc, par, Sn, False)
            k.e(f"s_branch {Lj}")
            k.place(Lm)
            k.e(f"s_lshl_b32 s{s_t1}, s{s_kt}, 6")
            k.e(f"s_add_u32 s{s_t1}, s{s_t1}, 64")
            phase_pv(Sc, par, Sn, True)
            k.place(Lj)
            pr.stamp(1)
            if not fast:
                check_rescale(k, Sn, CI, O, 64, lacc, vt0, vt1)
            k.e(f"s_add_u32 s{s_kt}, s{s_kt}, 1")
            pr.stamp(2)
            k.e("s_waitcnt vmcnt(0)")
            pr.stamp(3)
            k.e("s_barrier")
            pr.stamp(4)

        block_loads()
        LBtop = k.label("btop")
        k.place(LBtop)
        k.e(f"v_and_b32 v{vt0}, 31, v{v_lane}")
        k.e(f"v_add_u32 v{vq}, s{s_q0}, v{vt0}")
        k.e(f"s_lshl_b32 s{s_nt}, s{s_qb}, 1")
        k.e(f"s_add_u32 s{s_nt}, s{s_nt}, 2")
        for r in range(64):
            k.e(f"v_mov_b32 v{O + r}, 0")
        k.e(f"v_mov_b32 v{lacc}, 0")
        k.e(f"v_mov_b32 v{lacc + 1}, 0")
        k.e(f"s_mov_b32 s{s_kt}, 0")
        k.e("s_waitcnt vmcnt(0)")
        k.e("s_barrier")
        phase_qk(SS[0], 0, None, "0")
        k.e("s_nop 15")
        Lnm = k.label("nm0")
        k.e(f"s_cmp_lg_u32 s{s_nt}, 2")
        k.e(f"s_cbranch_scc1 {Lnm}")
        k.e(f"s_mov_b32 s{s_t1}, 0")
        for ln in mask_ops(SS[0]):
            k.e(ln)
        k.place(Lnm)
        first_tile_norm(k, SS[0], CI, vt0, vt1)
        k.e("s_barrier")
        Lloop, Llast = k.label("bloop"), k.label("blast")
        pr.start()
        k.e(f"s_cmp_eq_u32 s{s_nt}, 2")
        k.e(f"s_cbranch_scc1 {Llast}")
        k.place(Lloop)
        full(0)
        full(1)
        k.e(f"s_add_u32 s{s_t0}, s{s_kt}, 2")
        k.e(f"s_cmp_lt_u32 s{s_t0}, s{s_nt}")
        k.e(f"s_cbranch_scc1 {Lloop}")
        k.place(Llast)
        full(0)
        Lnp = k.label("nopf")
        k.e(f"s_sub_u32 s{s_qb}, 15, s{s_qb}")
        k.e(f"s_cmp_lg_u32 s{s_pass}, 0")
        k.e(f"s_cbranch_scc1 {Lnp}")
        block_loads()
        k.place(Lnp)
        Sc = SS[1]
        for n in range(16):
            k.e(f"v_exp_f32 v{Sc + 2 * n}, v{Sc + 2 * n}")
            k.e(f"v_exp_f32 v{Sc + 2 * n + 1}, v{Sc + 2 * n + 1}")
            if n > 0:
                k.e(f"v_cvt_pk_bf16_f32 v{P + n - 1}, v{Sc + 2 * n - 2}, v{Sc + 2 * n - 1}")
        k.e("s_nop 0")
        k.e(f"v_cvt_pk_bf16_f32 v{P + 15}, v{Sc + 30}, v{Sc + 31}")
        phase_pv(Sc, 1, None, False)
        k.e("s_nop 15")
        k.e(f"v_lshrrev_b32 v{vt0}, 7, v{vq}")
        k.e(f"v_lshlrev_b32 v{vdiff}, 20, v{vt0}")
        k.e(f"v_and_b32 v{vt0}, 127, v{vq}")
        k.e(f"v_lshl_add_u32 v{vdiff}, v{vt0}, 7, v{vdiff}")
        k.e(f"v_lshl_add_u32 v{vdiff}, v{vh4}, 2, v{vdiff}")
        k.e(f"s_lshl_b32 s{s_t0}, s{s_head}, 15")
        k.e(f"s_add_u32 s{s_t1}, s{s_t0}, 16384")
        finish_store(k, O, 4, lacc, vt0, vt1, vdiff, sO, s_t0, s_bad=s_bad if fast else None, soff2=s_t1)
        k.e(f"s_add_u32 s{s_pass}, s{s_pass}, 1")
        k.e(f"s_cmp_lt_u32 s{s_pass}, 2")
        k.e(f"s_cbranch_scc1 {LBtop}")
        pr.tot_end()
        pr.dump(pw, sQ, vt0, vt1)
        k.e(f"s_branch {Ldone}")
        k.vn, k.sn = save_v, save_s

    def role_a(fast, Ldone):
        k.e(f"s_sub_u32 s{s_wave}, s{s_wave0}, 4")
        make_srd(k, sQ, pw, WS_QA, 4 * MB)
        make_srd(k, sK, pw, WS_KA, 2048 * 64)
        make_srd(k, sV, pw, WS_VA, 2048 * 64)
        make_srd(k, sO, pw, WS_OA, 4 * MB)
        s_hg, s_q0, s_kb, s_go, s_ho, s_dst, s_cur, s_nxt, s_wdst = [k.s() for _ in range(9)]
        pa = Prof(k, 6)
        pa.tot_start()
        NH = 2 if fast else 1
        Q = [k.v(8, 4) for _ in range(NH)]
        O = [k.v(16, 4) for _ in range(NH)]
        LS = [k.v(16, 4) for _ in range(NH)]
        SS = [k.v(32, 4), k.v(32, 4)]
        P2 = [k.v(16, 4) for _ in range(NH)]
        CI = k.v(16, 4)
        KF = k.v(16, 4)
        VF = k.v(16, 4)
        ONES = k.v(4, 4)
        vqo, vdm = k.v(), k.v()
        ba = [k.v(), k.v()]
        ac = [k.v(), k.v()]
        an = [k.v(), k.v()]
        LAtop = k.label("atop")
        k.place(LAtop)
        k.e(f"s_and_b32 s{s_q0}, s2, 15")
        k.e(f"s_lshr_b32 s{s_hg}, s2, 4")
        k.e(f"s_lshl_b32 s{s_hg}, s{s_hg}, 1")
        k.e(f"s_add_u32 s{s_hg}, s{s_hg}, s{s_pass}")
        k.e(f"s_lshl_b32 s{s_q0}, s{s_q0}, 7")
        k.e(f"s_lshl_b32 s{s_t0}, s{s_wave}, 5")
        k.e(f"s_add_u32 s{s_q0}, s{s_q0}, s{s_t0}")
        k.e(f"s_lshl_b32 s{s_ho}, s{s_hg}, 6")
        k.e(f"v_and_b32 v{vt0}, 31, v{v_lane}")
        k.e(f"v_lshrrev_b32 v{vt2}, 5, v{v_lane}")
        k.e(f"v_add_u32 v{vt1}, s{s_q0}, v{vt0}")
        k.e(f"v_lshlrev_b32 v{vt1}, 11, v{vt1}")
        k.e(f"v_lshl_add_u32 v{vqo}, v{vt2}, 4, v{vt1}")
        for h in range(NH):
            for ks in range(2):
                k.e(f"buffer_load_dwordx4 {vr(Q[h] + 4 * ks, 4)}, v{vqo}, {sr(sQ, 4)}, s{s_ho} offen offset:{h * 64 + ks * 32}")
        k.e(f"v_bfe_u32 v{vt1}, v{v_lane}, 2, 2")
        k.e(f"v_xor_b32 v{vt1}, v{vt1}, v{vt2}")
        k.e(f"v_lshlrev_b32 v{vt0}, 6, v{vt0}")
        for x in range(2):
            k.e(f"v_xor_b32 v{vt2}, {2 * x}, v{vt1}")
            k.e(f"v_lshl_add_u32 v{ba[x]}, v{vt2}, 4, v{vt0}")
        k.e(f"v_lshrrev_b32 v{vt0}, 2, v{v_lane}")
        k.e(f"v_lshrrev_b32 v{vt1}, 4, v{v_lane}")
        k.e(f"v_xor_b32 v{vt1}, v{vt1}, v{v_lane}")
        k.e(f"v_and_b32 v{vt1}, 3, v{vt1}")
        k.e(f"v_lshlrev_b32 v{vt0}, 6, v{vt0}")
        k.e(f"v_lshl_add_u32 v{vt0}, v{vt1}, 4, v{vt0}")
        k.e(f"s_lshl_b32 s{s_wdst}, s{s_wave}, 11")
        k.e(f"v_add_u32 v{vdm}, s{s_wdst}, v{vt0}")
        k.e(f"s_mov_b32 s{s_kb}, 0")
        k.e(f"s_mov_b32 s{s_go}, 0")
        k.e(f"s_mov_b32 s{s_dst}, {ABASE}")
        k.e(f"s_mov_b32 s{s_cur}, {ABASE}")
        k.e(f"s_mov_b32 s{s_nxt}, {ABASE + AST}")

        def dmaA():
            out = [[f"s_add_u32 s{s_t0}, s{s_dst}, s{s_wdst}"]]
            for j in range(2):
                out.append([f"s_mov_b32 m0, s{s_t0}", "s_nop 0",
                            f"buffer_load_dwordx4 v{vdm}, {sr(sK, 4)}, s{s_go} offen offset:{j * 1024} lds"])
            for j in range(2):
                out.append([f"s_add_u32 m0, s{s_t0}, 8192", "s_nop 0",
                            f"buffer_load_dwordx4 v{vdm}, {sr(sV, 4)}, s{s_go} offen offset:{j * 1024} lds"])
            out.append([f"s_add_u32 s{s_go}, s{s_go}, 8192", f"s_add_u32 s{s_dst}, s{s_dst}, {AST}",
                        f"s_cmp_eq_u32 s{s_dst}, {ABASE + 3 * AST}", f"s_cselect_b32 s{s_dst}, {ABASE}, s{s_dst}"])
            return out

        for _ in range(2):
            for g in dmaA():
                for ln in g:
                    k.e(ln)
        for h in range(NH):
            for r in range(16):
                k.e(f"v_mov_b32 v{O[h] + r}, 0")
                k.e(f"v_mov_b32 v{LS[h] + r}, 0")
        for r in range(4):
            k.e(f"v_mov_b32 v{ONES + r}, 0x3f803f80")

        def kreads_l(adr, half):
            return [f"ds_read_b128 {vr(KF + 8 * kk + 4 * ks, 4)}, v{adr[ks]} offset:{half * 4096 + kk * 2048}"
                    for kk in range(2) for ks in range(2)]

        def vreads_l(adr, half):
            return [f"ds_read_b128 {vr(VF + 4 * g, 4)}, v{adr[g & 1]} offset:{8192 + half * 4096 + (g >> 1) * 2048}"
                    for g in range(4)]

        def pv_l(h, Pp):
            out = []
            for g in range(4):
                out.append(f"v_mfma_f32_32x32x16_bf16 {vr(O[h], 16)}, {vr(VF + 4 * g, 4)}, {vr(Pp + 4 * g, 4)}, {vr(O[h], 16)}")
                if AONES or not fast:
                    out.append(f"v_mfma_f32_32x32x16_bf16 {vr(LS[h], 16)}, {vr(ONES, 4)}, {vr(Pp + 4 * g, 4)}, {vr(LS[h], 16)}")
            return out

        def qk_l(h, Sb, cinit):
            out = []
            for kk in range(2):
                for ks in range(2):
                    cin = cinit if ks == 0 else vr(Sb + 16 * kk, 16)
                    out.append(f"v_mfma_f32_32x32x16_bf16 {vr(Sb + 16 * kk, 16)}, {vr(KF + 8 * kk + 4 * ks, 4)}, {vr(Q[h] + 4 * ks, 4)}, {cin}")
            return out

        def oa_addr():
            k.e(f"v_and_b32 v{vt0}, 31, v{v_lane}")
            k.e(f"v_add_u32 v{vt0}, s{s_q0}, v{vt0}")
            k.e(f"v_lshrrev_b32 v{vt1}, 7, v{vt0}")
            k.e(f"v_lshlrev_b32 v{vdm}, 18, v{vt1}")
            k.e(f"v_and_b32 v{vt0}, 127, v{vt0}")
            k.e(f"v_lshl_add_u32 v{vdm}, v{vt0}, 7, v{vdm}")
            k.e(f"v_lshrrev_b32 v{vt1}, 5, v{v_lane}")
            k.e(f"v_lshl_add_u32 v{vdm}, v{vt1}, 4, v{vdm}")
            k.e(f"s_lshr_b32 s{s_t1}, s{s_hg}, 1")
            k.e(f"s_lshl_b32 s{s_t1}, s{s_t1}, 14")
            k.e(f"s_and_b32 s{s_t0}, s{s_hg}, 1")
            k.e(f"s_lshl_b32 s{s_t0}, s{s_t0}, 6")
            k.e(f"s_add_u32 s{s_t1}, s{s_t1}, s{s_t0}")

        def set_addr():
            for x in range(2):
                k.e(f"v_add_u32 v{ac[x]}, s{s_cur}, v{ba[x]}")
                k.e(f"v_add_u32 v{an[x]}, s{s_nxt}, v{ba[x]}")

        def adv():
            k.e(f"s_mov_b32 s{s_cur}, s{s_nxt}")
            k.e(f"s_add_u32 s{s_nxt}, s{s_nxt}, {AST}")
            k.e(f"s_cmp_eq_u32 s{s_nxt}, {ABASE + 3 * AST}")
            k.e(f"s_cselect_b32 s{s_nxt}, {ABASE}, s{s_nxt}")

        def expcvt(Sc, Pc, slots, dm=(), la=None):
            dm = list(dm)
            for n in range(16):
                k.e(f"v_exp_f32 v{Sc + 2 * n}, v{Sc + 2 * n}")
                k.e(f"v_exp_f32 v{Sc + 2 * n + 1}, v{Sc + 2 * n + 1}")
                if n > 0:
                    k.e(f"v_cvt_pk_bf16_f32 v{Pc + n - 1}, v{Sc + 2 * n - 2}, v{Sc + 2 * n - 1}")
                    if la is not None:
                        k.e(f"v_add_f32 v{la}, v{la}, v{Sc + 2 * n - 2}")
                        k.e(f"v_add_f32 v{la + 1}, v{la + 1}, v{Sc + 2 * n - 1}")
                for ln in slots.get(n, []):
                    k.e(ln)
                if n >= 12 and dm:
                    for ln in dm.pop(0):
                        k.e(ln)
            for g in dm:
                for ln in g:
                    k.e(ln)
            k.e("s_nop 0")
            k.e(f"v_cvt_pk_bf16_f32 v{Pc + 15}, v{Sc + 30}, v{Sc + 31}")
            if la is not None:
                k.e(f"v_add_f32 v{la}, v{la}, v{Sc + 30}")
                k.e(f"v_add_f32 v{la + 1}, v{la + 1}, v{Sc + 31}")

        k.e("s_waitcnt vmcnt(0)")
        k.e("s_barrier")
        set_addr()
        for ln in kreads_l(ac, 0):
            k.e(ln)
        k.e("s_waitcnt lgkmcnt(0)")
        if fast:
            for h in range(2):
                for ln in qk_l(h, SS[h], "0"):
                    k.e(ln)
            k.e("s_nop 15")
            for ln in max_tree(SS[0], 32, vt0):
                k.e(ln)
            for ln in max_tree(SS[1], 32, vt2):
                k.e(ln)
            k.e(f"v_max_f32 v{vt0}, v{vt0}, v{vt2}")
            xhalf_max(k, vt0, vt1)
            for h in range(2):
                for r in range(32):
                    k.e(f"v_sub_f32 v{SS[h] + r}, v{SS[h] + r}, v{vt0}")
            k.e(f"v_sub_f32 v{vt1}, 0, v{vt0}")
            for r in range(16):
                k.e(f"v_mov_b32 v{CI + r}, v{vt1}")

            def it(h, half, do_pv=True, do_qk=True, rd=None, dm=()):
                slots = {}
                if h == 1:
                    k.e("s_waitcnt lgkmcnt(0)")
                if do_pv:
                    for i, ln in enumerate(pv_l(h ^ 1, P2[h ^ 1])):
                        slots.setdefault(i if AONES else 2 * i, []).append(ln)
                if do_qk:
                    for i, ln in enumerate(qk_l(h ^ 1, SS[h ^ 1], vr(CI, 16))):
                        slots.setdefault(8 + i, []).append(ln)
                if rd:
                    slots.setdefault(12, []).extend(rd)
                expcvt(SS[h], P2[h], slots, dm, la=None if AONES else LS[h])

            sPF = k.s(4)
            s_pfo = k.s()
            vpf = LS[0] + 8
            if PREFETCH:
                make_srd(k, sPF, pf0, 0, 4096 * 1024 * 2)
                k.e(f"s_lshl_b32 s{s_pfo}, s2, 15")
                k.e(f"s_lshl_b32 s{s_t0}, s{s_wave}, 10")
                k.e(f"s_add_u32 s{s_pfo}, s{s_pfo}, s{s_t0}")
                k.e(f"v_lshlrev_b32 v{vpf}, 4, v{v_lane}")

            def prefetch():
                if not PREFETCH:
                    return
                Lsw = k.label("pfsw")
                k.e(f"s_cmp_lg_u32 s{s_kb}, 8")
                k.e(f"s_cbranch_scc1 {Lsw}")
                make_srd(k, sPF, pf1, 0, 1024 * 1024 * 2)
                k.e(f"s_lshl_b32 s{s_pfo}, s2, 13")
                k.e(f"s_lshl_b32 s{s_t0}, s{s_wave}, 10")
                k.e(f"s_add_u32 s{s_pfo}, s{s_pfo}, s{s_t0}")
                k.place(Lsw)
                k.e(f"buffer_load_dwordx4 {vr(LS[0] + 4, 4)}, v{vpf}, {sr(sPF, 4)}, s{s_pfo} offen")
                k.e(f"s_add_u32 s{s_pfo}, s{s_pfo}, 4096")

            def stage_iter(first, last):
                if not last:
                    prefetch()
                it(0, 0, do_pv=not first, do_qk=not first, rd=vreads_l(ac, 0) + kreads_l(ac, 1))
                it(1, 0, dm=dmaA() if not last else ())
                k.e("s_barrier")
                it(0, 1, rd=vreads_l(ac, 1) + ([] if last else kreads_l(an, 0)))
                it(1, 1, do_qk=not last)
                if not last:
                    adv()
                    set_addr()
                    k.e(f"s_add_u32 s{s_kb}, s{s_kb}, 1")
                    k.e("s_waitcnt vmcnt(0) lgkmcnt(0)")
                k.e("s_barrier")

            for _ in range(3):
                k.e("s_barrier")
            pa.start()
            stage_iter(True, False)
            Lloop = k.label("aloop")
            k.place(Lloop)
            stage_iter(False, False)
            k.e(f"s_cmp_lt_u32 s{s_kb}, 15")
            k.e(f"s_cbranch_scc1 {Lloop}")
            stage_iter(False, True)
            k.e("s_nop 1")
            for ln in pv_l(1, P2[1]):
                k.e(ln)
            k.e("s_nop 15")
            oa_addr()
            for h in range(2):
                k.e(f"s_add_u32 s{s_t0}, s{s_t1}, {h * 64}")
                finish_store(k, O[h], 1, LS[h], vt0, vt1, vdm, sO, s_t0, lsum_mfma=bool(AONES), s_bad=s_bad, lowchk=True)
        else:
            for ln in qk_l(0, SS[0], "0"):
                k.e(ln)
            k.e("s_nop 15")
            first_tile_norm(k, SS[0], CI, vt0, vt1)
            k.e("s_barrier")
            P = P2[0]

            def a_iter(par, last, dm):
                Sc, Sn = SS[par], SS[par ^ 1]
                if not last:
                    for ln in kreads_l(ac if par == 0 else an, par ^ 1):
                        k.e(ln)
                for ln in vreads_l(ac, par):
                    k.e(ln)
                if not last:
                    k.e("s_waitcnt lgkmcnt(4)")
                    for ln in qk_l(0, Sn, vr(CI, 16)):
                        k.e(ln)
                expcvt(Sc, P, {}, dm)
                k.e("s_waitcnt lgkmcnt(0)")
                k.e("s_nop 0")
                for ln in pv_l(0, P):
                    k.e(ln)
                if not last:
                    for ln in max_tree(Sn, 32, vt0):
                        k.e(ln)
                    check_rescale(k, Sn, CI, O[0], 16, LS[0], vt0, vt1, lsum_mfma=True)

            Lloop = k.label("aloop")
            k.place(Lloop)
            a_iter(0, False, dmaA())
            a_iter(1, False, [])
            adv()
            set_addr()
            k.e(f"s_add_u32 s{s_kb}, s{s_kb}, 1")
            k.e("s_waitcnt vmcnt(0) lgkmcnt(0)")
            k.e("s_barrier")
            k.e(f"s_cmp_lt_u32 s{s_kb}, 15")
            k.e(f"s_cbranch_scc1 {Lloop}")
            a_iter(0, False, [])
            a_iter(1, True, [])
            k.e("s_nop 15")
            oa_addr()
            finish_store(k, O[0], 1, LS[0], vt0, vt1, vdm, sO, s_t1, lsum_mfma=True)
            k.e("s_barrier")
            k.e(f"s_add_u32 s{s_pass}, s{s_pass}, 1")
            k.e(f"s_cmp_lt_u32 s{s_pass}, 2")
            k.e(f"s_cbranch_scc1 {LAtop}")
        pa.tot_end()
        pa.dump(pw, sQ, vt0, vt1)
        k.e(f"s_branch {Ldone}")
        k.vn, k.sn = save_v, save_s

    def emit_mode(fast, Ldone):
        LA = k.label("attnA")
        k.e(f"s_mov_b32 s{s_pass}, 0")
        k.e(f"s_cmp_ge_u32 s{s_wave0}, 4")
        k.e(f"s_cbranch_scc1 {LA}")
        role_b(fast, Ldone)
        k.place(LA)
        role_a(fast, Ldone)

    Lvote = k.label("vote")
    if FASTMAX:
        emit_mode(True, Lvote)
        k.place(Lvote)
        k.e("s_barrier")
        k.e(f"v_mov_b32 v{vt0}, s{s_bad}")
        k.e(f"s_lshl_b32 s{s_t0}, s{s_wave0}, 2")
        k.e(f"v_mov_b32 v{vt1}, s{s_t0}")
        k.e(f"ds_write_b32 v{vt1}, v{vt0} offset:{VOTE_OFF}")
        k.e("s_waitcnt lgkmcnt(0)")
        k.e("s_barrier")
        k.e(f"v_and_b32 v{vt1}, 7, v{v_lane}")
        k.e(f"v_lshlrev_b32 v{vt1}, 2, v{vt1}")
        k.e(f"ds_read_b32 v{vt0}, v{vt1} offset:{VOTE_OFF}")
        k.e("s_waitcnt lgkmcnt(0)")
        k.e(f"v_cmp_ne_u32 vcc, 0, v{vt0}")
        k.e("s_barrier")
        k.e(f"s_cbranch_vccz {Lend}")
    emit_mode(False, Lend)
    k.place(Lend)
    k.e("s_endpgm")
    return k


def main():
    kernels = [
        (kern_proj(), 256, 512, 160 * 1024),
        (kern_attn(), 256, 512, ATTN_LDS),
        {"half": lambda: (kern_out(), 256, 256, 160 * 1024),
         "f8": lambda: (kern_out_full(8), 256, 512, 152 * 1024),
         "f4": lambda: (kern_out_full(4), 256, 256, 152 * 1024)}[os.environ.get("OUTMODE", "half")](),
    ]
    out = []
    for kk, g, b, lds in kernels:
        out.append(f"; @launch kernel={kk.name} grid=({g},1,1) block=({b},1,1) lds={lds}")
    out.append('.amdgcn_target "amdgcn-amd-amdhsa--gfx950"')
    out.append(".text")
    for kk, g, b, lds in kernels:
        out.append(f".globl {kk.name}")
        out.append(".p2align 8")
        out.append(f".type {kk.name},@function")
        out.append(f"{kk.name}:")
        out.append(kk.text())
    out.append('.section .rodata,"a"')
    for kk, g, b, lds in kernels:
        nv = (kk.maxv + 7) // 8 * 8
        out.append(".p2align 6")
        out.append(f".amdhsa_kernel {kk.name}")
        out.append(f"  .amdhsa_next_free_vgpr {nv}")
        out.append("  .amdhsa_next_free_sgpr 102")
        out.append(f"  .amdhsa_accum_offset {nv}")
        out.append("  .amdhsa_group_segment_fixed_size 0")
        out.append("  .amdhsa_kernarg_size 112")
        out.append("  .amdhsa_user_sgpr_count 2")
        out.append("  .amdhsa_user_sgpr_kernarg_segment_ptr 1")
        out.append("  .amdhsa_system_sgpr_workgroup_id_x 1")
        out.append(".end_amdhsa_kernel")
    path = sys.argv[1] if len(sys.argv) > 1 else f"cdna_kernels/{NAME}.s"
    open(path, "w").write("\n".join(out) + "\n")
    for kk, g, b, lds in kernels:
        print(kk.name, "vgprs", kk.maxv, "lines", len(kk.lines))


if __name__ == "__main__":
    main()
```

```python
import math
import os
import sys

PROF = int(os.environ.get("PROF", "0"))
PRIO = int(os.environ.get("PRIO", "0"))

NAME = "concat_heads__grouped_kv_mqa__compressed_kv_cla__prompt"

KA_AX, KA_AWQ, KA_AWK, KA_AWV, KA_AWO = 0, 8, 16, 24, 32
KA_BX, KA_CKV, KA_BWQ, KA_WUK, KA_WUV, KA_BWO = 40, 48, 56, 64, 72, 80
KA_OUT, KA_DBG, KA_WS = 88, 96, 104

MB = 1 << 20
PREFETCH = int(os.environ.get("PREFETCH", "1"))
WS_QB, WS_KB, WS_VB, WS_CTX = 0, 16 * MB, 32 * MB, 48 * MB
WS_QA, WS_OA, WS_KA, WS_VA = 64 * MB, 68 * MB, 72 * MB, 73 * MB


def log2(x):
    r = int(math.log2(x))
    assert 1 << r == x, x
    return r


class K:
    def __init__(self, name):
        self.name = name
        self.lines = []
        self.vn = 1
        self.sn = 3
        self.maxv = 1
        self.uid = 0

    def v(self, n=1, align=1):
        if n > 1 and align == 1:
            align = 2
        self.vn = (self.vn + align - 1) // align * align
        r = self.vn
        self.vn += n
        self.maxv = max(self.maxv, self.vn)
        assert self.vn <= 256, "out of vgprs"
        return r

    def s(self, n=1, align=1):
        if n == 2:
            align = max(align, 2)
        if n == 4:
            align = max(align, 4)
        self.sn = (self.sn + align - 1) // align * align
        r = self.sn
        self.sn += n
        assert self.sn <= 100, "out of sgprs"
        return r

    def e(self, t):
        self.lines.append("    " + t)

    def c(self, t):
        self.lines.append("    ; " + t)

    def label(self, base):
        self.uid += 1
        return f"L_{self.name}_{base}_{self.uid}"

    def place(self, lab):
        self.lines.append(lab + ":")

    def text(self):
        return "\n".join(self.lines)


def vr(b, n):
    return f"v[{b}:{b + n - 1}]"


def sr(b, n):
    return f"s[{b}:{b + n - 1}]"


class Prof:
    def __init__(self, k, n):
        self.k = k
        self.n = n
        if not PROF:
            return
        self.t = k.s(2)
        self.prev = k.s()
        self.acc = [k.s() for _ in range(n)]
        for a in self.acc:
            k.e(f"s_mov_b32 s{a}, 0")

    def tot_start(self):
        if PROF != 2:
            return
        k = self.k
        k.e(f"s_memtime {sr(self.t, 2)}")
        k.e("s_waitcnt lgkmcnt(0)")
        k.e(f"s_mov_b32 s{self.acc[0]}, s{self.t}")
        k.e(f"s_memrealtime {sr(self.t, 2)}")
        k.e("s_waitcnt lgkmcnt(0)")
        k.e(f"s_mov_b32 s{self.acc[1]}, s{self.t}")

    def tot_end(self):
        if PROF != 2:
            return
        k = self.k
        k.e(f"s_memtime {sr(self.t, 2)}")
        k.e("s_waitcnt lgkmcnt(0)")
        k.e(f"s_sub_u32 s{self.acc[0]}, s{self.t}, s{self.acc[0]}")
        k.e(f"s_memrealtime {sr(self.t, 2)}")
        k.e("s_waitcnt lgkmcnt(0)")
        k.e(f"s_sub_u32 s{self.acc[1]}, s{self.t}, s{self.acc[1]}")

    def start(self):
        if PROF != 1:
            return
        k = self.k
        k.e(f"s_memtime {sr(self.t, 2)}")
        k.e("s_waitcnt lgkmcnt(0)")
        k.e(f"s_mov_b32 s{self.prev}, s{self.t}")

    def stamp(self, i):
        if PROF != 1:
            return
        k = self.k
        k.e(f"s_memtime {sr(self.t, 2)}")
        k.e("s_waitcnt lgkmcnt(0)")
        k.e(f"s_sub_u32 s{self.prev}, s{self.t}, s{self.prev}")
        k.e(f"s_add_u32 s{self.acc[i]}, s{self.acc[i]}, s{self.prev}")
        k.e(f"s_mov_b32 s{self.prev}, s{self.t}")

    def dump(self, pw, srd, vtmp, vtmp2):
        if not PROF or self.k.name != os.environ.get("PROFK", "attn_kernel"):
            return
        k = self.k
        make_srd(k, srd, pw, 80 * MB, 4 * MB)
        k.e(f"v_lshrrev_b32 v{vtmp}, 6, v0")
        k.e(f"v_lshlrev_b32 v{vtmp}, 6, v{vtmp}")
        k.e(f"s_lshl_b32 s{self.prev}, s2, 9")
        for i, a in enumerate(self.acc):
            k.e(f"v_mov_b32 v{vtmp2}, s{a}")
            k.e(f"buffer_store_dword v{vtmp2}, v{vtmp}, {sr(srd, 4)}, s{self.prev} offen offset:{4 * i}")
        k.e("s_waitcnt vmcnt(0)")


def load_ptr(k, sdst, off):
    k.e(f"s_load_dwordx2 {sr(sdst, 2)}, s[0:1], {off}")


def make_srd(k, srd, sptr, off, size):
    if off:
        k.e(f"s_add_u32 s{srd}, s{sptr}, {off:#x}")
        k.e(f"s_addc_u32 s{srd + 1}, s{sptr + 1}, 0")
        k.e(f"s_and_b32 s{srd + 1}, s{srd + 1}, 0xffff")
    else:
        k.e(f"s_mov_b32 s{srd}, s{sptr}")
        k.e(f"s_and_b32 s{srd + 1}, s{sptr + 1}, 0xffff")
    k.e(f"s_mov_b32 s{srd + 2}, {size:#x}")
    k.e(f"s_mov_b32 s{srd + 3}, 0x20000")


class GemmCtx:
    def __init__(self, k):
        self.k = k
        self.sX = k.s(4)
        self.sW = k.s(4)
        self.sO = k.s(4)
        self.ldx, self.ldw, self.nt, self.tm_off, self.tn_off = [k.s() for _ in range(5)]
        self.obase, self.ldo, self.scale = [k.s() for _ in range(3)]
        self.kxstep = None
        self.s_wave = k.s()
        self.s_t0, self.s_t1 = k.s(), k.s()
        self.v_lane = k.v()
        self.vt = [k.v() for _ in range(4)]
        self.voff = [[k.v() for _ in range(8)] for _ in range(2)]
        self.sset = [[k.s() for _ in range(14)] for _ in range(2)]
        self.vpf = k.v(4, 4)
        self.vpfo = k.v()
        self.shared_v = None
        self.flip = 0
        self.after_first = None

    def init_ids(self):
        k = self.k
        k.e(f"v_and_b32 v{self.v_lane}, 63, v0")
        k.e(f"v_lshrrev_b32 v{self.vt[0]}, 6, v0")
        k.e("s_nop 0")
        k.e(f"v_readfirstlane_b32 s{self.s_wave}, v{self.vt[0]}")
        k.e("s_nop 3")
        self.shared_v = k.vn


class Gemm:
    def __init__(self, G, WM, WN, TM, TN, BK, NSTAGE, ACROSS, form, epi):
        self.G, self.k = G, G.k
        self.WM, self.WN, self.TM, self.TN, self.BK, self.NSTAGE, self.ACROSS = WM, WN, TM, TN, BK, NSTAGE, ACROSS
        self.form, self.epi = form, epi
        self.NW = WM * WN
        self.BM, self.BN = WM * TM * 32, WN * TN * 32
        self.RX, self.RW = BK * 2, self.BN * 2
        self.CX = self.RX // 16
        self.SX = {64: 2, 128: 1}[self.RX]
        self.XB, self.WB = self.BM * self.RX, BK * self.RW
        self.STAGE = self.XB + self.WB
        self.KS = BK // 16
        self.NXI = self.XB // 1024 // self.NW
        self.NWI = self.WB // 1024 // self.NW
        assert self.NXI * 1024 * self.NW == self.XB and self.NWI * 1024 * self.NW == self.WB
        self.D = self.NXI + self.NWI
        assert self.D <= 8
        self.LEAD = NSTAGE - 1
        self.CERT = 2 if ACROSS else 1
        self.FULL = ACROSS == 2
        self.nstores = 2 * TM * TN

    def _wswz(self, vdst, vkrow):
        k = self.k
        if self.RW >= 256:
            k.e(f"v_and_b32 v{vdst}, 3, v{vkrow}")
        elif self.RW == 128:
            k.e(f"v_lshrrev_b32 v{vdst}, 1, v{vkrow}")
            k.e(f"v_and_b32 v{vdst}, 1, v{vdst}")
        else:
            k.e(f"v_mov_b32 v{vdst}, 0")

    def setup_dma(self):
        k, G = self.k, self.G
        v_lane = G.v_lane
        v_t0, v_t1, v_t2, v_t3 = G.vt
        s_t0, s_wave = G.s_t0, G.s_wave
        regs = G.voff[G.flip]
        sregs = G.sset[G.flip]
        G.flip ^= 1
        self.vox = regs[:self.NXI]
        self.vow = regs[self.NXI:self.NXI + self.NWI]
        LPR, RPI = self.RX // 16, 1024 // self.RX
        for j in range(self.NXI):
            k.e(f"s_mul_i32 s{s_t0}, s{s_wave}, {self.NXI * RPI}")
            k.e(f"s_add_u32 s{s_t0}, s{s_t0}, {j * RPI}")
            k.e(f"v_lshrrev_b32 v{v_t0}, {log2(LPR)}, v{v_lane}")
            k.e(f"v_add_u32 v{v_t0}, s{s_t0}, v{v_t0}")
            k.e(f"v_lshrrev_b32 v{v_t1}, {self.SX}, v{v_t0}")
            k.e(f"v_and_b32 v{v_t1}, {self.CX - 1}, v{v_t1}")
            k.e(f"v_and_b32 v{v_t2}, {LPR - 1}, v{v_lane}")
            k.e(f"v_xor_b32 v{v_t1}, v{v_t1}, v{v_t2}")
            k.e(f"v_mul_lo_u32 v{v_t0}, v{v_t0}, s{G.ldx}")
            k.e(f"v_lshl_add_u32 v{v_t0}, v{v_t1}, 4, v{v_t0}")
            k.e(f"v_add_u32 v{self.vox[j]}, s{G.tm_off}, v{v_t0}")
        LPRW, RPIW = self.RW // 16, 1024 // self.RW
        for j in range(self.NWI):
            k.e(f"s_mul_i32 s{s_t0}, s{s_wave}, {self.NWI * RPIW}")
            k.e(f"s_add_u32 s{s_t0}, s{s_t0}, {j * RPIW}")
            k.e(f"v_lshrrev_b32 v{v_t0}, {log2(LPRW)}, v{v_lane}")
            k.e(f"v_add_u32 v{v_t0}, s{s_t0}, v{v_t0}")
            self._wswz(v_t1, v_t0)
            k.e(f"v_lshlrev_b32 v{v_t1}, 2, v{v_t1}")
            k.e(f"v_and_b32 v{v_t2}, {LPRW - 1}, v{v_lane}")
            k.e(f"v_xor_b32 v{v_t1}, v{v_t1}, v{v_t2}")
            k.e(f"v_mul_lo_u32 v{v_t0}, v{v_t0}, s{G.ldw}")
            k.e(f"v_lshl_add_u32 v{v_t0}, v{v_t1}, 4, v{v_t0}")
            k.e(f"v_add_u32 v{self.vow[j]}, s{G.tn_off}, v{v_t0}")
        (self.s_kx, self.s_kw, self.s_dst, self.s_cur, self.s_nxt, self.s_cnt, self.s_xdst, self.s_wdst,
         self.s_kwstep, self.s_d0, self.s_d1, self.s_nt, self.s_wm, self.s_wn) = sregs
        k.e(f"s_mov_b32 s{self.s_kx}, {getattr(self, 'kx0', 0)}")
        k.e(f"s_mov_b32 s{self.s_kw}, {getattr(self, 'kw0', 0)}")
        k.e(f"s_mov_b32 s{self.s_dst}, 0")
        k.e(f"s_mov_b32 s{self.s_cur}, 0")
        k.e(f"s_mov_b32 s{self.s_nxt}, {self.STAGE}")
        k.e(f"s_mul_i32 s{self.s_xdst}, s{s_wave}, {self.NXI * 1024}")
        k.e(f"s_mul_i32 s{self.s_wdst}, s{s_wave}, {self.NWI * 1024}")
        k.e(f"s_add_u32 s{self.s_wdst}, s{self.s_wdst}, {self.XB}")
        k.e(f"s_mul_i32 s{self.s_kwstep}, s{G.ldw}, {self.BK}")
        k.e(f"s_mov_b32 s{self.s_nt}, s{G.nt}")

    def dma_list(self):
        G = self.G
        out = []
        for j in range(self.NXI):
            g = []
            if j == 0:
                g.append(f"s_add_u32 s{self.s_d0}, s{self.s_dst}, s{self.s_xdst}")
            g.append(f"s_add_u32 m0, s{self.s_d0}, {j * 1024}")
            g.append("s_nop 0")
            g.append(f"buffer_load_dwordx4 v{self.vox[j]}, {sr(G.sX, 4)}, s{self.s_kx} offen lds")
            out.append(g)
        for j in range(self.NWI):
            g = []
            if j == 0:
                g.append(f"s_add_u32 s{self.s_d1}, s{self.s_dst}, s{self.s_wdst}")
            g.append(f"s_add_u32 m0, s{self.s_d1}, {j * 1024}")
            g.append("s_nop 0")
            g.append(f"buffer_load_dwordx4 v{self.vow[j]}, {sr(G.sW, 4)}, s{self.s_kw} offen lds")
            out.append(g)
        out.append([
            f"s_add_u32 s{self.s_kx}, s{self.s_kx}, {G.kxstep or self.BK * 2}",
            f"s_add_u32 s{self.s_kw}, s{self.s_kw}, s{self.s_kwstep}",
            f"s_add_u32 s{self.s_dst}, s{self.s_dst}, {self.STAGE}",
            f"s_cmp_eq_u32 s{self.s_dst}, {self.NSTAGE * self.STAGE}",
            f"s_cselect_b32 s{self.s_dst}, 0, s{self.s_dst}",
        ])
        return out

    def issue_prologue(self):
        for t in range(self.LEAD):
            for g in self.dma_list():
                for ln in g:
                    self.k.e(ln)

    def setup_rest(self):
        k, G = self.k, self.G
        k.vn = G.shared_v
        v_lane = G.v_lane
        v_t0, v_t1, v_t2, v_t3 = G.vt
        s_t0 = G.s_t0
        TM, TN, KS, RX, RW = self.TM, self.TN, self.KS, self.RX, self.RW
        k.e(f"s_and_b32 s{self.s_wm}, s{G.s_wave}, {self.WM - 1}")
        k.e(f"s_lshr_b32 s{self.s_wn}, s{G.s_wave}, {log2(self.WM)}")
        self.bx = [k.v() for _ in range(KS)]
        self.bw = [k.v() for _ in range(TN)]
        k.e(f"s_mul_i32 s{s_t0}, s{self.s_wm}, {TM * 32}")
        k.e(f"v_and_b32 v{v_t0}, 31, v{v_lane}")
        k.e(f"v_add_u32 v{v_t0}, s{s_t0}, v{v_t0}")
        k.e(f"v_lshrrev_b32 v{v_t1}, {self.SX}, v{v_t0}")
        k.e(f"v_and_b32 v{v_t1}, {self.CX - 1}, v{v_t1}")
        k.e(f"v_lshrrev_b32 v{v_t2}, 5, v{v_lane}")
        k.e(f"v_xor_b32 v{v_t1}, v{v_t1}, v{v_t2}")
        k.e(f"v_lshlrev_b32 v{v_t0}, {log2(RX)}, v{v_t0}")
        for ks in range(KS):
            k.e(f"v_xor_b32 v{v_t2}, {2 * ks}, v{v_t1}")
            k.e(f"v_lshl_add_u32 v{self.bx[ks]}, v{v_t2}, 4, v{v_t0}")
        k.e(f"v_lshrrev_b32 v{v_t0}, 5, v{v_lane}")
        k.e(f"v_lshlrev_b32 v{v_t0}, 3, v{v_t0}")
        k.e(f"v_bfe_u32 v{v_t1}, v{v_lane}, 2, 2")
        k.e(f"v_add_u32 v{v_t0}, v{v_t0}, v{v_t1}")
        self._wswz(v_t1, v_t0)
        k.e(f"v_lshlrev_b32 v{v_t1}, 2, v{v_t1}")
        k.e(f"v_lshlrev_b32 v{v_t0}, {log2(RW)}, v{v_t0}")
        for f in range(TN):
            k.e(f"s_mul_i32 s{s_t0}, s{self.s_wn}, {TN * 4}")
            k.e(f"s_add_u32 s{s_t0}, s{s_t0}, {4 * f}")
            k.e(f"v_bfe_u32 v{v_t2}, v{v_lane}, 4, 1")
            k.e(f"v_lshlrev_b32 v{v_t2}, 1, v{v_t2}")
            k.e(f"v_bfe_u32 v{v_t3}, v{v_lane}, 1, 1")
            k.e(f"v_add3_u32 v{v_t2}, v{v_t2}, v{v_t3}, s{s_t0}")
            k.e(f"v_xor_b32 v{v_t2}, v{v_t2}, v{v_t1}")
            k.e(f"v_lshl_add_u32 v{v_t2}, v{v_t2}, 4, v{v_t0}")
            k.e(f"v_and_b32 v{v_t3}, 1, v{v_lane}")
            k.e(f"v_lshl_add_u32 v{v_t2}, v{v_t3}, 3, v{v_t2}")
            k.e(f"v_add_u32 v{self.bw[f]}, {self.XB}, v{v_t2}")
        self.acc = [[k.v(16, 4) for f in range(TN)] for i in range(TM)]
        NSET = 2 * KS if self.FULL else (2 if self.ACROSS else KS)
        self.fx = [[k.v(4, 4) for i in range(TM)] for s_ in range(NSET)]
        self.fw = [[k.v(4, 4) for f in range(TN)] for s_ in range(NSET)]
        self.ax = [k.v() for _ in range(KS)]
        self.aw_c = [k.v() for _ in range(TN)]
        self.aw_n = [k.v() for _ in range(TN)] if self.ACROSS else None
        self.end_vn = k.vn
        for i in range(TM):
            for f in range(TN):
                for r in range(16):
                    k.e(f"v_mov_b32 v{self.acc[i][f] + r}, 0")

    def reads(self, ks, st, axr, awr):
        out = []
        for i in range(self.TM):
            out.append(f"ds_read_b128 {vr(self.fx[st][i], 4)}, v{axr} offset:{i * 32 * self.RX}")
        for f in range(self.TN):
            for p in range(2):
                out.append(f"ds_read_b64_tr_b16 {vr(self.fw[st][f] + 2 * p, 2)}, v{awr[f]} offset:{(16 * ks + 4 * p) * self.RW}")
        return out

    def mfmas(self, st):
        out = []
        for i in range(self.TM):
            for f in range(self.TN):
                a, b = (self.fw[st][f], self.fx[st][i]) if self.form == "T" else (self.fx[st][i], self.fw[st][f])
                out.append(f"v_mfma_f32_32x32x16_bf16 {vr(self.acc[i][f], 16)}, {vr(a, 4)}, {vr(b, 4)}, {vr(self.acc[i][f], 16)}")
        return out

    def wait_prologue(self, extra=0):
        k = self.k
        k.e(f"s_waitcnt vmcnt({min(63, extra + (self.LEAD - self.CERT) * self.D)})")
        k.e("s_barrier")
        if self.FULL:
            for ks in range(self.KS):
                for ln in self.reads(ks, ks, self.bx[ks], self.bw):
                    k.e(ln)
        elif self.ACROSS:
            for f in range(self.TN):
                k.e(f"v_mov_b32 v{self.aw_c[f]}, v{self.bw[f]}")
            k.e(f"v_mov_b32 v{self.ax[0]}, v{self.bx[0]}")
            for ln in self.reads(0, 0, self.ax[0], self.aw_c):
                k.e(ln)

    def _interleave(self, main, fill, per=1):
        k = self.k
        fill = list(fill)
        for m in main:
            k.e(m)
            for _ in range(per):
                if fill:
                    it = fill.pop(0)
                    for ln in it if isinstance(it, list) else [it]:
                        k.e(ln)
        for it in fill:
            for ln in it if isinstance(it, list) else [it]:
                k.e(ln)

    def _body(self, with_dma):
        k = self.k
        TN, KS = self.TN, self.KS
        dm = self.dma_list() if with_dma else []
        if self.ACROSS:
            assert KS == 2
            k.e(f"v_add_u32 v{self.ax[1]}, s{self.s_cur}, v{self.bx[1]}")
            for f in range(TN):
                k.e(f"v_add_u32 v{self.aw_c[f]}, s{self.s_cur}, v{self.bw[f]}")
            k.e(f"v_add_u32 v{self.ax[0]}, s{self.s_nxt}, v{self.bx[0]}")
            for f in range(TN):
                k.e(f"v_add_u32 v{self.aw_n[f]}, s{self.s_nxt}, v{self.bw[f]}")
            k.e("s_waitcnt lgkmcnt(0)")
            self._interleave(self.mfmas(0), self.reads(1, 1, self.ax[1], self.aw_c), per=2)
            k.e("s_waitcnt lgkmcnt(0)")
            self._interleave(self.mfmas(1), self.reads(0, 0, self.ax[0], self.aw_n) + dm, per=2)
        else:
            for ks in range(KS):
                k.e(f"v_add_u32 v{self.ax[ks]}, s{self.s_cur}, v{self.bx[ks]}")
            for f in range(TN):
                k.e(f"v_add_u32 v{self.aw_c[f]}, s{self.s_cur}, v{self.bw[f]}")
            nr = self.TM + 2 * TN
            for ks in range(KS):
                for ln in self.reads(ks, ks, self.ax[ks], self.aw_c):
                    k.e(ln)
            for g in dm:
                for ln in g:
                    k.e(ln)
            for ks in range(KS):
                k.e(f"s_waitcnt lgkmcnt({min(15, (KS - 1 - ks) * nr)})")
                for ln in self.mfmas(ks):
                    k.e(ln)
        k.e(f"s_mov_b32 s{self.s_cur}, s{self.s_nxt}")
        k.e(f"s_add_u32 s{self.s_nxt}, s{self.s_nxt}, {self.STAGE}")
        k.e(f"s_cmp_eq_u32 s{self.s_nxt}, {self.NSTAGE * self.STAGE}")
        k.e(f"s_cselect_b32 s{self.s_nxt}, 0, s{self.s_nxt}")
        if with_dma:
            k.e(f"s_waitcnt vmcnt({(self.LEAD - self.CERT) * self.D})")
        else:
            k.e("s_waitcnt vmcnt(0)")
        k.e("s_barrier")

    def _body_full(self, par, with_dma):
        k = self.k
        TN, KS = self.TN, self.KS
        for ks in range(KS):
            k.e(f"v_add_u32 v{self.ax[ks]}, s{self.s_nxt}, v{self.bx[ks]}")
        for f in range(TN):
            k.e(f"v_add_u32 v{self.aw_c[f]}, s{self.s_nxt}, v{self.bw[f]}")
        k.e("s_waitcnt lgkmcnt(0)")
        rd = []
        for ks in range(KS):
            rd += self.reads(ks, (par ^ 1) * KS + ks, self.ax[ks], self.aw_c)
        mf = []
        for ks in range(KS):
            mf += self.mfmas(par * KS + ks)
        dm = self.dma_list() if with_dma else []
        fill = []
        nr, nd = len(rd), len(dm)
        di = 0
        for i, r in enumerate(rd):
            fill.append(r)
            while di < nd and (di + 1) * nr <= (i + 1) * nd:
                fill.append(dm[di])
                di += 1
        fill += dm[di:]
        per = (len(fill) + len(mf) - 1) // len(mf)
        self._interleave(mf, fill, per=per)
        k.e(f"s_add_u32 s{self.s_nxt}, s{self.s_nxt}, {self.STAGE}")
        k.e(f"s_cmp_eq_u32 s{self.s_nxt}, {self.NSTAGE * self.STAGE}")
        k.e(f"s_cselect_b32 s{self.s_nxt}, 0, s{self.s_nxt}")
        if with_dma:
            k.e(f"s_waitcnt vmcnt({(self.LEAD - self.CERT) * self.D})")
        else:
            k.e("s_waitcnt vmcnt(0)")
        k.e("s_barrier")

    def loop(self):
        k = self.k
        if self.FULL:
            assert self.LEAD % 2 == 0
            k.e(f"s_sub_u32 s{self.s_cnt}, s{self.s_nt}, {self.LEAD}")
            L1 = k.label("main")
            k.place(L1)
            self._body_full(0, True)
            self._body_full(1, True)
            k.e(f"s_sub_u32 s{self.s_cnt}, s{self.s_cnt}, 2")
            k.e(f"s_cmp_lg_u32 s{self.s_cnt}, 0")
            k.e(f"s_cbranch_scc1 {L1}")
            k.e(f"s_mov_b32 s{self.s_cnt}, {self.LEAD}")
            L2 = k.label("tail")
            k.place(L2)
            self._body_full(0, False)
            self._body_full(1, False)
            k.e(f"s_sub_u32 s{self.s_cnt}, s{self.s_cnt}, 2")
            k.e(f"s_cmp_lg_u32 s{self.s_cnt}, 0")
            k.e(f"s_cbranch_scc1 {L2}")
            k.e("s_waitcnt lgkmcnt(0)")
            k.e("s_nop 15")
            return
        k.e(f"s_sub_u32 s{self.s_cnt}, s{self.s_nt}, {self.LEAD}")
        L1 = k.label("main")
        k.place(L1)
        self._body(True)
        k.e(f"s_sub_u32 s{self.s_cnt}, s{self.s_cnt}, 1")
        k.e(f"s_cmp_lg_u32 s{self.s_cnt}, 0")
        k.e(f"s_cbranch_scc1 {L1}")
        k.e(f"s_mov_b32 s{self.s_cnt}, {self.LEAD}")
        L2 = k.label("tail")
        k.place(L2)
        self._body(False)
        k.e(f"s_sub_u32 s{self.s_cnt}, s{self.s_cnt}, 1")
        k.e(f"s_cmp_lg_u32 s{self.s_cnt}, 0")
        k.e(f"s_cbranch_scc1 {L2}")
        k.e("s_waitcnt lgkmcnt(0)")
        k.e("s_nop 15")

    def epilogue(self):
        k = self.k
        save = k.vn
        k.vn = self.end_vn
        self.epi(k, self.G, self)
        k.vn = max(save, self.G.shared_v)


def run_chain(k, G, jobs):
    prev = None
    pg = getattr(G, "prof", None)
    for ji, (set_in, set_out, g) in enumerate(jobs):
        set_in()
        g.setup_dma()
        g.issue_prologue()
        extra = 0
        if prev is None and G.after_first is not None:
            extra = G.after_first()
        if prev is not None:
            prev.epilogue()
            extra = prev.nstores
        set_out()
        g.setup_rest()
        g.wait_prologue(extra)
        if pg:
            pg.stamp(2 * ji)
        g.loop()
        if pg:
            pg.stamp(2 * ji + 1)
        prev = g
    return prev


def lds_epi_setup(k, G, RB, row_stride_sreg=None, row_stride_shift=None):
    vl = G.v_lane
    vw, vrd, vgo, vt = k.v(), k.v(), k.v(), k.v()
    CPR = RB // 16
    RPI = 64 // CPR
    s0 = G.s_t0
    k.e(f"s_lshl_b32 s{s0}, s{G.s_wave}, 12")
    k.e(f"s_add_u32 s{s0}, s{s0}, {G.epi_base}")
    k.e(f"v_and_b32 v{vt}, 31, v{vl}")
    k.e(f"v_lshlrev_b32 v{vw}, {log2(RB)}, v{vt}")
    k.e(f"v_add_u32 v{vw}, s{s0}, v{vw}")
    k.e(f"v_and_b32 v{vt}, {CPR - 1}, v{vt}")
    k.e(f"v_lshrrev_b32 v{vrd}, 5, v{vl}")
    k.e(f"v_xor_b32 v{vt}, v{vt}, v{vrd}")
    k.e(f"v_lshl_add_u32 v{vw}, v{vt}, 4, v{vw}")
    k.e(f"v_lshrrev_b32 v{vt}, {log2(CPR)}, v{vl}")
    k.e(f"v_xor_b32 v{vrd}, v{vt}, v{vl}")
    k.e(f"v_and_b32 v{vrd}, {CPR - 1}, v{vrd}")
    k.e(f"v_lshlrev_b32 v{vrd}, 4, v{vrd}")
    k.e(f"v_lshl_add_u32 v{vrd}, v{vt}, {log2(RB)}, v{vrd}")
    k.e(f"v_add_u32 v{vrd}, s{s0}, v{vrd}")
    if row_stride_sreg is not None:
        k.e(f"v_mul_lo_u32 v{vgo}, v{vt}, s{row_stride_sreg}")
    else:
        k.e(f"v_lshlrev_b32 v{vgo}, {row_stride_shift}, v{vt}")
    k.e(f"v_and_b32 v{vt}, {CPR - 1}, v{vl}")
    k.e(f"v_lshl_add_u32 v{vgo}, v{vt}, 4, v{vgo}")
    return vw, vrd, vgo, vt


def epi_rowmajor(k, G, g):
    TM, TN = g.TM, g.TN
    acc = g.acc
    s0, s1 = G.s_t0, G.s_t1
    RB = TN * 64
    CPR = RB // 16
    RPI = 64 // CPR
    NQ = 32 // RPI
    k.c("---- epilogue row-major")
    vw, vrd, vgo, vt = lds_epi_setup(k, G, RB, row_stride_sreg=G.ldo)
    s2_ = k.s()
    k.e(f"s_mul_i32 s{s0}, s{g.s_wm}, {TM * 32}")
    k.e(f"s_mul_i32 s{s0}, s{s0}, s{G.ldo}")
    k.e(f"s_add_u32 s{s0}, s{s0}, s{G.obase}")
    k.e(f"s_mul_i32 s{s1}, s{g.s_wn}, {TN * 64}")
    k.e(f"s_add_u32 s{s0}, s{s0}, s{s1}")
    k.e(f"s_mul_i32 s{s1}, s{G.ldo}, {RPI}")
    for i in range(TM):
        for f in range(TN):
            a = acc[i][f]
            t = a
            for r in range(16):
                k.e(f"v_mul_f32 v{a + r}, s{G.scale}, v{a + r}")
            for j in range(8):
                k.e(f"v_cvt_pk_bf16_f32 v{t + j}, v{a + 2 * j}, v{a + 2 * j + 1}")
            k.e("s_nop 1")
            k.e(f"v_permlane32_swap_b32 v{t}, v{t + 2}")
            k.e(f"v_permlane32_swap_b32 v{t + 1}, v{t + 3}")
            k.e(f"v_permlane32_swap_b32 v{t + 4}, v{t + 6}")
            k.e(f"v_permlane32_swap_b32 v{t + 5}, v{t + 7}")
            for jj in range(2):
                c2 = 4 * f + 2 * jj
                if c2:
                    k.e(f"v_xor_b32 v{vt}, {c2 << 4}, v{vw}")
                    k.e(f"ds_write_b128 v{vt}, {vr(t + 4 * jj, 4)}")
                else:
                    k.e("s_nop 0")
                    k.e(f"ds_write_b128 v{vw}, {vr(t + 4 * jj, 4)}")
        k.e("s_waitcnt lgkmcnt(0)")
        dst = [acc[i][q // 2] + 8 + 4 * (q % 2) for q in range(NQ)]
        for q in range(NQ):
            k.e(f"ds_read_b128 {vr(dst[q], 4)}, v{vrd} offset:{q * RPI * RB}")
        for q in range(NQ):
            k.e(f"s_waitcnt lgkmcnt({NQ - 1 - q})")
            k.e(f"buffer_store_dwordx4 {vr(dst[q], 4)}, v{vgo}, {sr(G.sO, 4)}, s{s0} offen")
            k.e(f"s_add_u32 s{s0}, s{s0}, s{s1}")
    k.e("s_nop 1")
    k.sn -= 1


def make_epi_vt(KPB, FS, BS):
    def epi(k, G, g):
        TM, TN = g.TM, g.TN
        acc = g.acc
        s0, s1 = G.s_t0, G.s_t1
        RB = KPB * 2
        assert RB == FS
        CPR = RB // 16
        RPI = 64 // CPR
        NQ = 32 // RPI
        IPB = KPB // 32
        k.c("---- epilogue V^T")
        vw, vrd, vgo, vt = lds_epi_setup(k, G, RB, row_stride_shift=log2(FS))
        assert (TM * 32) % KPB == 0
        k.e(f"s_mul_i32 s{s0}, s{g.s_wm}, {TM * 32 // KPB * BS}")
        k.e(f"s_add_u32 s{s0}, s{s0}, s{G.obase}")
        k.e(f"s_mul_i32 s{s1}, s{g.s_wn}, {TN * 32 * FS}")
        k.e(f"s_add_u32 s{s0}, s{s0}, s{s1}")
        for f in range(TN):
            for blk in range(TM // IPB):
                for ii in range(IPB):
                    a = acc[blk * IPB + ii][f]
                    t = a
                    for j in range(8):
                        k.e(f"v_cvt_pk_bf16_f32 v{t + j}, v{a + 2 * j}, v{a + 2 * j + 1}")
                    for jj in range(2):
                        c2 = 4 * ii + 2 * jj
                        if c2:
                            k.e(f"v_xor_b32 v{vt}, {c2 << 4}, v{vw}")
                            k.e(f"ds_write_b128 v{vt}, {vr(t + 4 * jj, 4)}")
                        else:
                            k.e("s_nop 0")
                            k.e(f"ds_write_b128 v{vw}, {vr(t + 4 * jj, 4)}")
                k.e("s_waitcnt lgkmcnt(0)")
                dst = [acc[blk * IPB + q // 2][f] + 8 + 4 * (q % 2) for q in range(NQ)]
                for q in range(NQ):
                    k.e(f"ds_read_b128 {vr(dst[q], 4)}, v{vrd} offset:{q * RPI * RB}")
                for q in range(NQ):
                    k.e(f"s_add_u32 s{s1}, s{s0}, {blk * BS + f * 32 * FS + q * RPI * FS}")
                    k.e(f"s_waitcnt lgkmcnt({NQ - 1 - q})")
                    k.e(f"buffer_store_dwordx4 {vr(dst[q], 4)}, v{vgo}, {sr(G.sO, 4)}, s{s1} offen")
        k.e("s_nop 1")

    return epi


def kern_proj():
    k = K("proj_kernel")
    G = GemmCtx(k)
    G.epi_base = 128 * 1024
    pBX, pBWQ, pCKV, pWUK, pWUV, pAX, pAWQ, pAWK, pAWV, pWS = [k.s(2) for _ in range(10)]
    s_id, s_tm, s_tn, s_t = k.s(), k.s(), k.s(), k.s()
    Lend, Lkv = k.label("end"), k.label("kv")
    k.e("s_cmp_ge_u32 s2, 256")
    k.e(f"s_cbranch_scc1 {Lend}")
    for p, off in ((pBX, KA_BX), (pBWQ, KA_BWQ), (pCKV, KA_CKV), (pWUK, KA_WUK), (pWUV, KA_WUV), (pAX, KA_AX),
                   (pAWQ, KA_AWQ), (pAWK, KA_AWK), (pAWV, KA_AWV), (pWS, KA_WS)):
        load_ptr(k, p, off)
    G.init_ids()
    k.e(f"s_and_b32 s{s_id}, s2, 127")
    k.e(f"s_and_b32 s{s_tm}, s{s_id}, 1")
    k.e(f"s_lshl_b32 s{s_tm}, s{s_tm}, 2")
    k.e(f"s_bfe_u32 s{s_t}, s{s_id}, 0x20003")
    k.e(f"s_add_u32 s{s_tm}, s{s_tm}, s{s_t}")
    k.e(f"s_bfe_u32 s{s_tn}, s{s_id}, 0x20001")
    k.e(f"s_lshl_b32 s{s_tn}, s{s_tn}, 2")
    k.e(f"s_lshr_b32 s{s_t}, s{s_id}, 5")
    k.e(f"s_add_u32 s{s_tn}, s{s_tn}, s{s_t}")
    k.e("s_waitcnt lgkmcnt(0)")
    G.prof = Prof(k, 6)
    G.prof.start()
    G.prof.tot_start()

    def big_in(px, xsz, pw_, wsz, ldx, nt, tmshift):
        def f():
            make_srd(k, G.sX, px, 0, xsz)
            make_srd(k, G.sW, pw_, 0, wsz)
            k.e(f"s_mov_b32 s{G.ldx}, {ldx}")
            k.e(f"s_mov_b32 s{G.ldw}, 8192")
            k.e(f"s_mov_b32 s{G.nt}, {nt}")
            k.e(f"s_lshl_b32 s{G.tm_off}, s{s_tm}, {tmshift}")
            k.e(f"s_lshl_b32 s{G.tn_off}, s{s_tn}, 9")
        return f

    def big_out(wsoff, scale, fix):
        def f():
            make_srd(k, G.sO, pWS, wsoff, 16 * MB)
            k.e(f"s_mov_b32 s{G.scale}, {scale}")
            k.e(f"s_mov_b32 s{G.ldo}, 256")
            k.e(f"s_lshl_b32 s{G.obase}, s{s_tn}, 20")
            k.e(f"s_lshl_b32 s{s_t}, s{s_tm}, 16")
            k.e(f"s_add_u32 s{G.obase}, s{G.obase}, s{s_t}")
            k.e(f"s_lshr_b32 s{s_t}, s{G.s_wave}, 2")
            k.e(f"s_mul_i32 s{s_t}, s{s_t}, {fix}")
            k.e(f"s_add_u32 s{G.obase}, s{G.obase}, s{s_t}")
        return f

    def qa_in():
        make_srd(k, G.sX, pAX, 0, 2048 * 1024 * 2)
        make_srd(k, G.sW, pAWQ, 0, 1024 * 1024 * 2)
        k.e(f"s_mov_b32 s{G.ldx}, 2048")
        k.e(f"s_mov_b32 s{G.ldw}, 2048")
        k.e(f"s_mov_b32 s{G.nt}, 16")
        k.e(f"s_and_b32 s{s_t}, s2, 15")
        k.e(f"s_lshl_b32 s{G.tm_off}, s{s_t}, 18")
        k.e(f"s_lshr_b32 s{s_t}, s2, 4")
        k.e(f"s_lshl_b32 s{G.tn_off}, s{s_t}, 8")

    def qa_out():
        make_srd(k, G.sO, pWS, WS_QA, 4 * MB)
        k.e(f"s_mov_b32 s{G.scale}, {f32hex(CA)}")
        k.e(f"s_mov_b32 s{G.ldo}, 2048")
        k.e(f"s_add_u32 s{G.obase}, s{G.tm_off}, s{G.tn_off}")

    def kva_in(pw_):
        def f():
            make_srd(k, G.sX, pAX, 0, 2048 * 1024 * 2)
            make_srd(k, G.sW, pw_, 0, 1024 * 32 * 2)
            k.e(f"s_mov_b32 s{G.ldx}, 2048")
            k.e(f"s_mov_b32 s{G.ldw}, 64")
            k.e(f"s_mov_b32 s{G.nt}, 16")
            k.e(f"s_and_b32 s{s_t}, s2, 15")
            k.e(f"s_lshl_b32 s{G.tm_off}, s{s_t}, 18")
            k.e(f"s_mov_b32 s{G.tn_off}, 0")
        return f

    def kva_out(wsoff):
        def f():
            make_srd(k, G.sO, pWS, wsoff, 2048 * 64)
            k.e(f"s_mov_b32 s{G.scale}, 1.0")
            k.e(f"s_mov_b32 s{G.ldo}, 64")
            k.e(f"s_and_b32 s{s_t}, s2, 15")
            k.e(f"s_lshl_b32 s{G.obase}, s{s_t}, 13")
        return f

    sPF = k.s(4)

    def coop_prefetch():
        n = 0
        k.e(f"v_lshlrev_b32 v{G.vpfo}, 4, v0")
        for p, mb in ((pBX, 4), (pBWQ, 8), (pCKV, 2), (pWUK, 4), (pWUV, 4), (pAX, 4), (pAWQ, 2)):
            make_srd(k, sPF, p, 0, mb * MB)
            rounds = mb * MB // 256 // 8192
            k.e(f"s_mul_i32 s{s_t}, s2, {rounds * 8192}")
            for r in range(rounds):
                k.e(f"buffer_load_dwordx4 {vr(G.vpf, 4)}, v{G.vpfo}, {sr(sPF, 4)}, s{s_t} offen")
                k.e(f"s_add_u32 s{s_t}, s{s_t}, 8192")
                n += 1
        return n

    if PREFETCH:
        G.after_first = coop_prefetch
    BIG = (2, 4, 4, 2, 32, 4, True)
    MINI = (4, 2, 1, 2, 64, 4, True)
    MINI = (4, 2, 1, 2, 32, 5, 2)
    KVA = (4, 1, 1, 1, 64, 5, 2)
    save_s = k.sn

    k.e("s_cmp_ge_u32 s2, 128")
    k.e(f"s_cbranch_scc1 {Lkv}")

    def qa_in2():
        qa_in()
        k.e(f"s_mov_b32 s{G.nt}, 32")

    last = run_chain(k, G, [(big_in(pBX, 2048 * 1024 * 2, pBWQ, 1024 * 4096 * 2, 2048, 32, 19),
                             big_out(WS_QB, f32hex(CB), 524288 - 256), Gemm(G, *BIG, "T", epi_rowmajor)),
                            (qa_in2, qa_out, Gemm(G, *MINI, "T", epi_rowmajor))])
    last.epilogue()
    G.prof.tot_end()
    G.prof.dump(pWS, G.sX, G.vt[0], G.vt[1])
    k.e(f"s_branch {Lend}")
    k.place(Lkv)
    k.sn = save_s

    def v_out():
        make_srd(k, G.sO, pWS, WS_VB, 16 * MB)
        k.e(f"s_lshl_b32 s{G.obase}, s{s_tn}, 20")
        k.e(f"s_lshl_b32 s{s_t}, s{s_tm}, 16")
        k.e(f"s_add_u32 s{G.obase}, s{G.obase}, s{s_t}")
        k.e(f"s_lshr_b32 s{s_t}, s{G.s_wave}, 2")
        k.e(f"s_mul_i32 s{s_t}, s{s_t}, {524288 - 16384}")
        k.e(f"s_add_u32 s{G.obase}, s{G.obase}, s{s_t}")

    last = run_chain(k, G, [(big_in(pCKV, 2048 * 512 * 2, pWUK, 512 * 4096 * 2, 1024, 16, 18),
                             big_out(WS_KB, "1.0", 524288 - 256), Gemm(G, *BIG, "T", epi_rowmajor)),
                            (big_in(pCKV, 2048 * 512 * 2, pWUV, 512 * 4096 * 2, 1024, 16, 18),
                             v_out, Gemm(G, *BIG, "N", make_epi_vt(64, 128, 16384)))])
    last.epilogue()
    G.prof.tot_end()
    G.prof.dump(pWS, G.sX, G.vt[0], G.vt[1])
    G.prof = None
    G.after_first = None
    Lidle, Lv = k.label("idle"), k.label("va")
    k.e("s_cmp_ge_u32 s2, 160")
    k.e(f"s_cbranch_scc1 {Lend}")
    k.e(f"s_cmp_ge_u32 s{G.s_wave}, 4")
    k.e(f"s_cbranch_scc1 {Lidle}")
    k.e("s_cmp_ge_u32 s2, 144")
    k.e(f"s_cbranch_scc1 {Lv}")
    k.sn = save_s
    run_chain(k, G, [(kva_in(pAWK), kva_out(WS_KA), Gemm(G, *KVA, "T", epi_rowmajor))]).epilogue()
    k.e(f"s_branch {Lend}")
    k.place(Lv)
    k.sn = save_s
    run_chain(k, G, [(kva_in(pAWV), kva_out(WS_VA), Gemm(G, *KVA, "N", make_epi_vt(32, 64, 2048)))]).epilogue()
    k.e(f"s_branch {Lend}")
    k.place(Lidle)
    k.e(f"s_mov_b32 s{s_t}, 17")
    Lb = k.label("idlel")
    k.place(Lb)
    k.e("s_barrier")
    k.e(f"s_sub_u32 s{s_t}, s{s_t}, 1")
    k.e(f"s_cmp_lg_u32 s{s_t}, 0")
    k.e(f"s_cbranch_scc1 {Lb}")
    k.place(Lend)
    k.e("s_endpgm")
    return k


def kern_out():
    k = K("outp_kernel")
    G = GemmCtx(k)
    G.epi_base = 0
    G.kxstep = 16384
    pWS, pOUT, pBWO, pAWO = [k.s(2) for _ in range(4)]
    s_tm, s_tn, s_t, s_id = k.s(), k.s(), k.s(), k.s()
    Lend, La = k.label("end"), k.label("a")
    k.e("s_cmp_ge_u32 s2, 256")
    k.e(f"s_cbranch_scc1 {Lend}")
    for p, off in ((pWS, KA_WS), (pOUT, KA_OUT), (pBWO, KA_BWO), (pAWO, KA_AWO)):
        load_ptr(k, p, off)
    G.init_ids()
    k.e(f"s_and_b32 s{s_id}, s2, 127")
    k.e(f"s_and_b32 s{s_tm}, s{s_id}, 3")
    k.e(f"s_lshl_b32 s{s_tm}, s{s_tm}, 2")
    k.e(f"s_bfe_u32 s{s_t}, s{s_id}, 0x20003")
    k.e(f"s_add_u32 s{s_tm}, s{s_tm}, s{s_t}")
    k.e(f"s_bfe_u32 s{s_tn}, s{s_id}, 0x10002")
    k.e(f"s_lshl_b32 s{s_tn}, s{s_tn}, 2")
    k.e(f"s_lshr_b32 s{s_t}, s{s_id}, 5")
    k.e(f"s_add_u32 s{s_tn}, s{s_tn}, s{s_t}")
    k.e("s_waitcnt lgkmcnt(0)")
    G.prof = Prof(k, 6)
    G.prof.start()
    G.prof.tot_start()

    def j_in(wsoff, xsz, pw_, wsz, ldx, nt, sh):
        def f():
            make_srd(k, G.sX, pWS, wsoff, xsz)
            make_srd(k, G.sW, pw_, 0, wsz)
            k.e(f"s_mov_b32 s{G.ldx}, {ldx}")
            k.e(f"s_mov_b32 s{G.ldw}, 2048")
            k.e(f"s_mov_b32 s{G.nt}, {nt}")
            k.e(f"s_lshl_b32 s{G.tm_off}, s{s_tm}, {sh}")
            k.e(f"s_lshl_b32 s{G.tn_off}, s{s_tn}, 8")
        return f

    def j_out(col):
        def f():
            make_srd(k, G.sO, pOUT, 0, 2048 * 2048 * 2)
            k.e(f"s_mov_b32 s{G.scale}, 1.0")
            k.e(f"s_mov_b32 s{G.ldo}, 4096")
            k.e(f"s_lshl_b32 s{G.obase}, s{s_tm}, 19")
            k.e(f"s_lshl_b32 s{s_t}, s{s_tn}, 8")
            k.e(f"s_add_u32 s{G.obase}, s{G.obase}, s{s_t}")
            if col:
                k.e(f"s_add_u32 s{G.obase}, s{G.obase}, {col}")
        return f

    CFG = (2, 2, 2, 2, 64, 5, 2)
    Lgo = k.label("go")
    k.e("s_cmp_ge_u32 s2, 128")
    k.e(f"s_cbranch_scc1 {La}")
    j_in(WS_CTX, 16 * MB, pBWO, 4096 * 1024 * 2, 128, 64, 20)()
    j_out(2048)()
    k.e(f"s_branch {Lgo}")
    k.place(La)
    j_in(WS_OA, 4 * MB, pAWO, 1024 * 1024 * 2, 128, 16, 18)()
    j_out(0)()
    k.place(Lgo)
    nop = lambda: None
    last = run_chain(k, G, [(nop, nop, Gemm(G, *CFG, "T", epi_rowmajor))])
    last.epilogue()
    G.prof.tot_end()
    G.prof.dump(pWS, G.sX, G.vt[0], G.vt[1])
    k.place(Lend)
    k.e("s_endpgm")
    return k


WS_PART = 96 * MB
N1_OUT = 44


def kern_out_split():
    k = K("outp_kernel")
    G = GemmCtx(k)
    G.epi_base = 0
    G.kxstep = 16384
    pWS, pOUT, pBWO, pAWO, pDBG = [k.s(2) for _ in range(5)]
    s_tm, s_tn, s_t, s_id = k.s(), k.s(), k.s(), k.s()
    sP, sD = k.s(4), k.s(4)
    Lend, Lc = k.label("end"), k.label("cons")
    k.e("s_cmp_ge_u32 s2, 256")
    k.e(f"s_cbranch_scc1 {Lend}")
    for p, off in ((pWS, KA_WS), (pOUT, KA_OUT), (pBWO, KA_BWO), (pAWO, KA_AWO), (pDBG, KA_DBG)):
        load_ptr(k, p, off)
    G.init_ids()
    k.e(f"s_and_b32 s{s_id}, s2, 127")
    k.e(f"s_and_b32 s{s_tm}, s{s_id}, 3")
    k.e(f"s_lshl_b32 s{s_tm}, s{s_tm}, 2")
    k.e(f"s_bfe_u32 s{s_t}, s{s_id}, 0x20003")
    k.e(f"s_add_u32 s{s_tm}, s{s_tm}, s{s_t}")
    k.e(f"s_bfe_u32 s{s_tn}, s{s_id}, 0x10002")
    k.e(f"s_lshl_b32 s{s_tn}, s{s_tn}, 2")
    k.e(f"s_lshr_b32 s{s_t}, s{s_id}, 5")
    k.e(f"s_add_u32 s{s_tn}, s{s_tn}, s{s_t}")
    k.e("s_waitcnt lgkmcnt(0)")
    make_srd(k, sP, pWS, WS_PART, 8 * MB)
    make_srd(k, sD, pDBG, 0, 256)
    G.prof = Prof(k, 6)
    G.prof.start()
    G.prof.tot_start()

    def j_in(wsoff, xsz, pw_, wsz, nt, sh):
        def f():
            make_srd(k, G.sX, pWS, wsoff, xsz)
            make_srd(k, G.sW, pw_, 0, wsz)
            k.e(f"s_mov_b32 s{G.ldx}, 128")
            k.e(f"s_mov_b32 s{G.ldw}, 2048")
            k.e(f"s_mov_b32 s{G.nt}, {nt}")
            k.e(f"s_lshl_b32 s{G.tm_off}, s{s_tm}, {sh}")
            k.e(f"s_lshl_b32 s{G.tn_off}, s{s_tn}, 8")
        return f

    def j_out(col):
        def f():
            make_srd(k, G.sO, pOUT, 0, 2048 * 2048 * 2)
            k.e(f"s_mov_b32 s{G.scale}, 1.0")
            k.e(f"s_mov_b32 s{G.ldo}, 4096")
            k.e(f"s_lshl_b32 s{G.obase}, s{s_tm}, 19")
            k.e(f"s_lshl_b32 s{s_t}, s{s_tn}, 8")
            k.e(f"s_add_u32 s{G.obase}, s{G.obase}, s{s_t}")
            if col:
                k.e(f"s_add_u32 s{G.obase}, s{G.obase}, {col}")
        return f

    def part_addr(k, G):
        vo = k.v()
        k.e(f"v_lshlrev_b32 v{vo}, 4, v{G.v_lane}")
        k.e(f"s_lshl_b32 s{G.s_t0}, s{s_id}, 16")
        k.e(f"s_lshl_b32 s{G.s_t1}, s{G.s_wave}, 14")
        k.e(f"s_add_u32 s{G.s_t0}, s{G.s_t0}, s{G.s_t1}")
        return vo

    def flag_regs(k):
        vf, vb = k.v(), k.v()
        k.e(f"s_lshr_b32 s{G.s_t1}, s{s_id}, 1")
        k.e(f"s_lshl_b32 s{G.s_t1}, s{G.s_t1}, 2")
        k.e(f"v_mov_b32 v{vf}, s{G.s_t1}")
        k.e(f"s_and_b32 s{G.s_t1}, s{s_id}, 1")
        k.e(f"s_lshl_b32 s{G.s_t1}, s{G.s_t1}, 4")
        k.e(f"s_lshl_b32 s{G.s_t1}, 1, s{G.s_t1}")
        k.e(f"v_mov_b32 v{vb}, s{G.s_t1}")
        return vf, vb

    def epi_partial(k, G, g):
        vo = part_addr(k, G)
        n = 0
        for i in range(g.TM):
            for f in range(g.TN):
                for q in range(4):
                    k.e(f"buffer_store_dwordx4 {vr(g.acc[i][f] + 4 * q, 4)}, v{vo}, {sr(sP, 4)}, s{G.s_t0} offen offset:{q * 1024} sc1")
                k.e(f"s_add_u32 s{G.s_t0}, s{G.s_t0}, 4096")
        k.e("s_waitcnt vmcnt(0)")
        k.e("s_barrier")
        vf, vb = flag_regs(k)
        Ls = k.label("noflag")
        k.e(f"s_cmp_lg_u32 s{G.s_wave}, 0")
        k.e(f"s_cbranch_scc1 {Ls}")
        k.e("s_mov_b64 exec, 1")
        k.e(f"buffer_atomic_or v{vb}, v{vf}, {sr(sD, 4)}, 0 offen")
        k.e("s_mov_b64 exec, -1")
        k.place(Ls)

    def epi_final(k, G, g):
        vf, vb = flag_regs(k)
        vr_ = k.v()
        Lp, Lok = k.label("poll"), k.label("ok")
        k.e(f"s_mov_b32 s{G.s_t0}, 0x400000")
        k.place(Lp)
        k.e(f"buffer_load_dword v{vr_}, v{vf}, {sr(sD, 4)}, 0 offen sc1")
        k.e("s_waitcnt vmcnt(0)")
        k.e(f"v_and_b32 v{vr_}, v{vr_}, v{vb}")
        k.e(f"v_cmp_ne_u32 vcc, 0, v{vr_}")
        k.e(f"s_cbranch_vccnz {Lok}")
        k.e("s_sleep 2")
        k.e(f"s_sub_u32 s{G.s_t0}, s{G.s_t0}, 1")
        k.e(f"s_cmp_lg_u32 s{G.s_t0}, 0")
        k.e(f"s_cbranch_scc1 {Lp}")
        k.place(Lok)
        k.e("s_barrier")
        vo = part_addr(k, G)
        tmp = g.fx[0][0]
        frag = [r for st in g.fx for r in st] + [r for st in g.fw for r in st]
        idx = 0
        loads = []
        for i in range(g.TM):
            for f in range(g.TN):
                for q in range(4):
                    d = frag[idx]
                    idx += 1
                    k.e(f"buffer_load_dwordx4 {vr(d, 4)}, v{vo}, {sr(sP, 4)}, s{G.s_t0} offen offset:{q * 1024} sc1")
                    loads.append((g.acc[i][f] + 4 * q, d))
                k.e(f"s_add_u32 s{G.s_t0}, s{G.s_t0}, 4096")
        for n, (a, d) in enumerate(loads):
            k.e(f"s_waitcnt vmcnt({len(loads) - 1 - n})")
            for r in range(4):
                k.e(f"v_add_f32 v{a + r}, v{a + r}, v{d + r}")
        epi_rowmajor(k, G, g)

    CFG = (2, 2, 2, 2, 64, 5, 2)
    k.e("s_cmp_ge_u32 s2, 128")
    k.e(f"s_cbranch_scc1 {Lc}")
    g1 = Gemm(G, *CFG, "T", epi_partial)
    g1.kx0, g1.kw0 = N1_OUT * 16384, N1_OUT * 64 * 2048
    g1.nstores = 0
    last = run_chain(k, G, [
        (j_in(WS_CTX, 16 * MB, pBWO, 4096 * 1024 * 2, 64 - N1_OUT, 20), lambda: None, g1),
        (j_in(WS_OA, 4 * MB, pAWO, 1024 * 1024 * 2, 16, 18), j_out(0), Gemm(G, *CFG, "T", epi_rowmajor)),
    ])
    last.epilogue()
    G.prof.tot_end()
    G.prof.dump(pWS, G.sX, G.vt[0], G.vt[1])
    k.e(f"s_branch {Lend}")
    k.place(Lc)
    last = run_chain(k, G, [
        (j_in(WS_CTX, 16 * MB, pBWO, 4096 * 1024 * 2, N1_OUT, 20), j_out(2048), Gemm(G, *CFG, "T", epi_final)),
    ])
    last.epilogue()
    G.prof.tot_end()
    G.prof.dump(pWS, G.sX, G.vt[0], G.vt[1])
    k.place(Lend)
    k.e("s_endpgm")
    return k


def kern_out_full(nw):
    k = K("outp_kernel")
    G = GemmCtx(k)
    G.epi_base = 120 * 1024
    G.kxstep = 16384
    pWS, pOUT, pBWO, pAWO = [k.s(2) for _ in range(4)]
    s_tm, s_tn, s_t = k.s(), k.s(), k.s()
    Lend = k.label("end")
    k.e("s_cmp_ge_u32 s2, 256")
    k.e(f"s_cbranch_scc1 {Lend}")
    for p, off in ((pWS, KA_WS), (pOUT, KA_OUT), (pBWO, KA_BWO), (pAWO, KA_AWO)):
        load_ptr(k, p, off)
    G.init_ids()
    k.e(f"s_and_b32 s{s_tm}, s2, 3")
    k.e(f"s_lshl_b32 s{s_tm}, s{s_tm}, 2")
    k.e(f"s_bfe_u32 s{s_t}, s2, 0x20003")
    k.e(f"s_add_u32 s{s_tm}, s{s_tm}, s{s_t}")
    k.e(f"s_bfe_u32 s{s_tn}, s2, 0x10002")
    k.e(f"s_lshl_b32 s{s_tn}, s{s_tn}, 3")
    k.e(f"s_lshr_b32 s{s_t}, s2, 5")
    k.e(f"s_add_u32 s{s_tn}, s{s_tn}, s{s_t}")
    k.e("s_waitcnt lgkmcnt(0)")
    G.prof = Prof(k, 6)
    G.prof.start()
    G.prof.tot_start()

    def j_in(wsoff, xsz, pw_, wsz, ldx, nt, sh):
        def f():
            make_srd(k, G.sX, pWS, wsoff, xsz)
            make_srd(k, G.sW, pw_, 0, wsz)
            k.e(f"s_mov_b32 s{G.ldx}, {ldx}")
            k.e(f"s_mov_b32 s{G.ldw}, 2048")
            k.e(f"s_mov_b32 s{G.nt}, {nt}")
            k.e(f"s_lshl_b32 s{G.tm_off}, s{s_tm}, {sh}")
            k.e(f"s_lshl_b32 s{G.tn_off}, s{s_tn}, 7")
        return f

    def j_out(col):
        def f():
            make_srd(k, G.sO, pOUT, 0, 2048 * 2048 * 2)
            k.e(f"s_mov_b32 s{G.scale}, 1.0")
            k.e(f"s_mov_b32 s{G.ldo}, 4096")
            k.e(f"s_lshl_b32 s{G.obase}, s{s_tm}, 19")
            k.e(f"s_lshl_b32 s{s_t}, s{s_tn}, 7")
            k.e(f"s_add_u32 s{G.obase}, s{G.obase}, s{s_t}")
            if col:
                k.e(f"s_add_u32 s{G.obase}, s{G.obase}, {col}")
        return f

    CFG = (4, 2, 1, 1, 64, 5, 2) if nw == 8 else (2, 2, 2, 1, 64, 5, 2)
    last = run_chain(k, G, [
        (j_in(WS_CTX, 16 * MB, pBWO, 4096 * 1024 * 2, 128, 64, 20), j_out(2048), Gemm(G, *CFG, "T", epi_rowmajor)),
        (j_in(WS_OA, 4 * MB, pAWO, 1024 * 1024 * 2, 128, 16, 18), j_out(0), Gemm(G, *CFG, "T", epi_rowmajor)),
    ])
    last.epilogue()
    G.prof.tot_end()
    G.prof.dump(pWS, G.sX, G.vt[0], G.vt[1])
    k.place(Lend)
    k.e("s_endpgm")
    return k


NEG_INF = "0xff800000"
NWG_A = 512
CB = math.log2(math.e) / math.sqrt(128.0)
CA = math.log2(math.e) / math.sqrt(32.0)
THR = float(os.environ.get("THR", "32"))


def f32hex(x):
    import struct

    return "0x%08x" % struct.unpack("<I", struct.pack("<f", x))[0]


def weave(k, main, fills):
    for ln in fills.get(-1, []):
        k.e(ln)
    for i, m in enumerate(main):
        k.e(m)
        for ln in fills.get(i, []):
            k.e(ln)


def max_tree(S, n, vt):
    out = [f"v_max3_f32 v{vt}, v{S}, v{S + 1}, v{S + 2}"]
    i = 3
    while i + 1 < n:
        out.append(f"v_max3_f32 v{vt}, v{vt}, v{S + i}, v{S + i + 1}")
        i += 2
    if i < n:
        out.append(f"v_max_f32 v{vt}, v{vt}, v{S + i}")
    return out


def xhalf_max(k, vt0, vt1):
    k.e(f"v_mov_b32 v{vt1}, v{vt0}")
    k.e("s_nop 1")
    k.e(f"v_permlane32_swap_b32 v{vt0}, v{vt1}")
    k.e("s_nop 1")
    k.e(f"v_max_f32 v{vt0}, v{vt0}, v{vt1}")


def first_tile_norm(k, S, CI, vt0, vt1):
    for ln in max_tree(S, 32, vt0):
        k.e(ln)
    xhalf_max(k, vt0, vt1)
    for r in range(32):
        k.e(f"v_sub_f32 v{S + r}, v{S + r}, v{vt0}")
    k.e(f"v_sub_f32 v{vt1}, 0, v{vt0}")
    for r in range(16):
        k.e(f"v_mov_b32 v{CI + r}, v{vt1}")


def check_rescale(k, Sn, CI, O, nO, lacc, vt0, vt1, lsum_mfma=False):
    xhalf_max(k, vt0, vt1)
    k.e(f"v_cmp_lt_f32 vcc, {THR}, v{vt0}") if THR in (0.5, 1.0, 2.0, 4.0) else k.e(
        f"v_cmp_lt_f32 vcc, {f32hex(THR)}, v{vt0}")
    Ls = k.label("nors")
    k.e(f"s_cbranch_vccz {Ls}")
    k.e(f"v_max_f32 v{vt0}, 0, v{vt0}")
    k.e(f"v_sub_f32 v{vt1}, 0, v{vt0}")
    k.e(f"v_exp_f32 v{vt1}, v{vt1}")
    for r in range(32):
        k.e(f"v_sub_f32 v{Sn + r}, v{Sn + r}, v{vt0}")
    for r in range(16):
        k.e(f"v_sub_f32 v{CI + r}, v{CI + r}, v{vt0}")
    k.e("s_nop 7")
    k.e(f"v_mul_f32 v{lacc}, v{lacc}, v{vt1}")
    if not lsum_mfma:
        k.e(f"v_mul_f32 v{lacc + 1}, v{lacc + 1}, v{vt1}")
    for r in range(nO):
        k.e(f"v_mul_f32 v{O + r}, v{O + r}, v{vt1}")
    k.e("s_nop 1")
    k.place(Ls)


def finish_store(k, O, ntile, lacc, vt0, vt1, vo, srd, soff, lsum_mfma=False, s_bad=None, lowchk=False, soff2=None):
    def chk(v):
        if s_bad is None:
            return
        k.e(f"v_mov_b32 v{vt1}, {f32hex(LSAFE)}")
        k.e(f"v_cmp_nlt_f32 vcc, v{v}, v{vt1}")
        k.e("s_nop 1")
        k.e(f"s_or_b32 s{s_bad}, s{s_bad}, vcc_lo")
        k.e(f"s_or_b32 s{s_bad}, s{s_bad}, vcc_hi")
        if lowchk:
            k.e(f"v_mov_b32 v{vt1}, {f32hex(2.0 ** -60)}")
            k.e(f"v_cmp_ngt_f32 vcc, v{v}, v{vt1}")
            k.e("s_nop 1")
            k.e(f"s_or_b32 s{s_bad}, s{s_bad}, vcc_lo")
            k.e(f"s_or_b32 s{s_bad}, s{s_bad}, vcc_hi")

    if lsum_mfma:
        chk(lacc)
        k.e(f"v_rcp_f32 v{vt0}, v{lacc}")
    else:
        k.e(f"v_add_f32 v{vt0}, v{lacc}, v{lacc + 1}")
        k.e(f"v_mov_b32 v{vt1}, v{vt0}")
        k.e("s_nop 1")
        k.e(f"v_permlane32_swap_b32 v{vt0}, v{vt1}")
        k.e("s_nop 1")
        k.e(f"v_add_f32 v{vt0}, v{vt0}, v{vt1}")
        chk(vt0)
        k.e(f"v_rcp_f32 v{vt0}, v{vt0}")
    k.e("s_nop 0")
    for dt in range(ntile):
        a = O + 16 * dt
        tt = a
        for r in range(16):
            k.e(f"v_mul_f32 v{a + r}, v{a + r}, v{vt0}")
        for j in range(8):
            k.e(f"v_cvt_pk_bf16_f32 v{tt + j}, v{a + 2 * j}, v{a + 2 * j + 1}")
        k.e("s_nop 1")
        k.e(f"v_permlane32_swap_b32 v{tt}, v{tt + 2}")
        k.e(f"v_permlane32_swap_b32 v{tt + 1}, v{tt + 3}")
        k.e(f"v_permlane32_swap_b32 v{tt + 4}, v{tt + 6}")
        k.e(f"v_permlane32_swap_b32 v{tt + 5}, v{tt + 7}")
        k.e("s_nop 1")
        so = soff if dt < 2 else soff2
        k.e(f"buffer_store_dwordx4 {vr(tt, 4)}, v{vo}, {sr(srd, 4)}, s{so} offen offset:{(dt & 1) * 64}")
        k.e(f"buffer_store_dwordx4 {vr(tt + 4, 4)}, v{vo}, {sr(srd, 4)}, s{so} offen offset:{(dt & 1) * 64 + 32}")
    k.e("s_nop 1")


KT = 16640
ABASE = 4 * KT
VOTE_OFF = 0
ATTN_LDS = ABASE + 3 * 16384
FASTMAX = int(os.environ.get("FASTMAX", "1"))
AONES = int(os.environ.get("AONES", "0"))
PREFETCH = int(os.environ.get("PREFETCH", "1"))
LSAFE = float(os.environ.get("LSAFE", str(2.0 ** 100)))


def kern_attn():
    k = K("attn_kernel")
    Lend = k.label("end")
    k.e("s_cmp_ge_u32 s2, 256")
    k.e(f"s_cbranch_scc1 {Lend}")
    pw = k.s(2)
    load_ptr(k, pw, KA_WS)
    pf0, pf1 = k.s(2), k.s(2)
    load_ptr(k, pf0, KA_BWO)
    load_ptr(k, pf1, KA_AWO)
    sQ, sK, sV, sO = k.s(4), k.s(4), k.s(4), k.s(4)
    s_wave = k.s()
    s_t0, s_t1 = k.s(), k.s()
    s_pass = k.s()
    s_wave0, s_bad = k.s(), k.s()
    v_lane, vt0, vt1, vt2 = k.v(), k.v(), k.v(), k.v()
    k.e(f"v_and_b32 v{v_lane}, 63, v0")
    k.e(f"v_lshrrev_b32 v{vt0}, 6, v0")
    k.e("s_nop 0")
    k.e(f"v_readfirstlane_b32 s{s_wave0}, v{vt0}")
    k.e(f"s_mov_b32 s{s_bad}, 0")
    k.e("s_waitcnt lgkmcnt(0)")
    save_v, save_s = k.vn, k.sn
    AST = 16384

    def role_b(fast, Ldone):
        k.e(f"s_mov_b32 s{s_wave}, s{s_wave0}")
        make_srd(k, sQ, pw, WS_QB, 16 * MB)
        make_srd(k, sK, pw, WS_KB, 16 * MB)
        make_srd(k, sV, pw, WS_VB, 16 * MB)
        make_srd(k, sO, pw, WS_CTX, 16 * MB)
        s_head, s_qb, s_q0, s_nt, s_kt, s_koff, s_voff, s_mdst = [k.s() for _ in range(8)]
        sm = [k.s(2) for _ in range(4)]
        pr = Prof(k, 6)
        pr.tot_start()
        k.e(f"s_and_b32 s{s_head}, s2, 31")
        k.e(f"s_lshr_b32 s{s_qb}, s2, 5")
        k.e(f"s_sub_u32 s{s_qb}, 15, s{s_qb}")
        Q = k.v(32, 4)
        O = k.v(64, 4)
        SS = [k.v(32, 4), k.v(32, 4)]
        P = k.v(16, 4)
        CI = k.v(16, 4)
        F = [k.v(4, 4) for _ in range(8)]
        lacc = k.v(2, 2)
        vq, vh4, vdiff = k.v(), k.v(), k.v()
        vdk, vdv, ak, avh = k.v(), k.v(), k.v(), k.v()
        k.e(f"v_lshrrev_b32 v{vt2}, 5, v{v_lane}")
        k.e(f"v_lshlrev_b32 v{vh4}, 2, v{vt2}")
        k.e(f"v_lshrrev_b32 v{vt0}, 4, v{v_lane}")
        k.e(f"v_lshlrev_b32 v{vt0}, 12, v{vt0}")
        k.e(f"v_and_b32 v{vt1}, 15, v{v_lane}")
        k.e(f"v_lshl_add_u32 v{vt0}, v{vt1}, 4, v{vt0}")
        k.e(f"s_lshl_b32 s{s_t0}, s{s_wave}, 10")
        k.e(f"v_add_u32 v{vdk}, s{s_t0}, v{vt0}")
        k.e(f"v_lshrrev_b32 v{vt0}, 4, v{v_lane}")
        k.e(f"v_lshlrev_b32 v{vt0}, 4, v{vt0}")
        k.e(f"v_bfe_u32 v{vt1}, v{v_lane}, 3, 1")
        k.e(f"v_lshl_add_u32 v{vt0}, v{vt1}, 6, v{vt0}")
        k.e(f"s_lshl_b32 s{s_t0}, s{s_wave}, 2")
        k.e(f"v_lshlrev_b32 v{vt1}, 3, v{vt1}")
        k.e(f"v_add_u32 v{vt1}, s{s_t0}, v{vt1}")
        k.e(f"v_and_b32 v{vt1}, 15, v{vt1}")
        k.e(f"v_add_u32 v{vt0}, v{vt0}, v{vt1}")
        k.e(f"v_lshlrev_b32 v{vt0}, 7, v{vt0}")
        k.e(f"v_and_b32 v{vt1}, 7, v{v_lane}")
        k.e(f"v_lshl_add_u32 v{vdv}, v{vt1}, 4, v{vt0}")
        k.e(f"v_and_b32 v{vt0}, 15, v{v_lane}")
        k.e(f"v_mul_u32_u24 v{vt1}, 1040, v{vt0}")
        k.e(f"v_bfe_u32 v{vt2}, v{v_lane}, 4, 1")
        k.e(f"v_lshlrev_b32 v{vt2}, 8, v{vt2}")
        k.e(f"v_lshl_add_u32 v{vt2}, v{vh4}, 2, v{vt2}")
        k.e(f"v_add_u32 v{ak}, v{vt1}, v{vt2}")
        k.e(f"v_add_u32 v{vt0}, 8, v{vt0}")
        k.e(f"v_and_b32 v{vt0}, 15, v{vt0}")
        k.e(f"v_mul_u32_u24 v{vt1}, 1040, v{vt0}")
        k.e(f"v_add_u32 v{vt1}, {2 * KT + 128}, v{vt1}")
        k.e(f"v_add_u32 v{avh}, v{vt1}, v{vt2}")
        k.e(f"s_mul_i32 s{s_mdst}, s{s_wave}, {4 * 1040}")

        def dmaK(st):
            out = []
            for jj in range(4):
                out.append([f"s_add_u32 m0, s{s_mdst}, {st * KT + jj * 1040 - jj * 256}", "s_nop 0",
                            f"buffer_load_dwordx4 v{vdk}, {sr(sK, 4)}, s{s_koff} offen offset:{jj * 256} lds"])
            out[-1].append(f"s_add_u32 s{s_koff}, s{s_koff}, 16384")
            return out

        def dmaV(st):
            out = []
            for jj in range(4):
                out.append([f"s_add_u32 m0, s{s_mdst}, {(2 + st) * KT + jj * 1040 - jj * 128}", "s_nop 0",
                            f"buffer_load_dwordx4 v{vdv}, {sr(sV, 4)}, s{s_voff} offen offset:{jj * 128} lds"])
            out[-1].append(f"s_add_u32 s{s_voff}, s{s_voff}, 16384")
            return out

        def block_loads():
            k.e(f"s_lshl_b32 s{s_q0}, s{s_qb}, 7")
            k.e(f"s_lshl_b32 s{s_t0}, s{s_wave}, 5")
            k.e(f"s_add_u32 s{s_q0}, s{s_q0}, s{s_t0}")
            k.e(f"s_lshl_b32 s{s_koff}, s{s_head}, 19")
            k.e(f"s_mov_b32 s{s_voff}, s{s_koff}")
            k.e(f"v_and_b32 v{vt0}, 31, v{v_lane}")
            k.e(f"v_add_u32 v{vt0}, s{s_q0}, v{vt0}")
            k.e(f"v_lshlrev_b32 v{vt1}, 8, v{vt0}")
            k.e(f"v_lshl_add_u32 v{vt1}, v{vh4}, 2, v{vt1}")
            for ds in range(8):
                k.e(f"buffer_load_dwordx4 {vr(Q + 4 * ds, 4)}, v{vt1}, {sr(sQ, 4)}, s{s_koff} offen offset:{ds * 32}")
            for g in dmaK(0) + dmaK(1) + dmaV(0):
                for ln in g:
                    k.e(ln)

        def kread(n, st):
            kk, ds = n // 8, n % 8
            return f"ds_read_b128 {vr(F[n % 8], 4)}, v{ak} offset:{st * KT + kk * 512 + ds * 32}"

        vseq = [(dt, g) for g in range(4) for dt in range(4)]

        def vread(n, st):
            dt, g = vseq[n]
            if dt < 2:
                return f"ds_read_b128 {vr(F[n % 8], 4)}, v{ak} offset:{(2 + st) * KT + dt * 512 + g * 32}"
            return f"ds_read_b128 {vr(F[n % 8], 4)}, v{avh} offset:{st * KT + (dt - 2) * 512 + g * 32}"

        def qk_mfma(n, Sd, cinit):
            kk, ds = n // 8, n % 8
            cin = cinit if ds == 0 else vr(Sd + 16 * kk, 16)
            return f"v_mfma_f32_32x32x16_bf16 {vr(Sd + 16 * kk, 16)}, {vr(F[n % 8], 4)}, {vr(Q + 4 * ds, 4)}, {cin}"

        def pv_mfma(n):
            dt, g = vseq[n]
            return f"v_mfma_f32_32x32x16_bf16 {vr(O + 16 * dt, 16)}, {vr(F[n % 8], 4)}, {vr(P + 4 * g, 4)}, {vr(O + 16 * dt, 16)}"

        def mask_ops(Sn):
            out = [f"v_subrev_u32 v{vdiff}, s{s_t1}, v{vq}", f"v_sub_u32 v{vdiff}, v{vdiff}, v{vh4}",
                   f"v_mov_b32 v{vt2}, {NEG_INF}"]
            for q in range(8):
                for j in range(4):
                    r = 4 * q + j
                    cst = 32 * (r >> 4) + 8 * ((r & 15) >> 2) + (r & 3)
                    out.append(f"v_cmp_gt_i32 {sr(sm[j], 2)}, {cst}, v{vdiff}")
                for j in range(4):
                    r = 4 * q + j
                    out.append(f"v_cndmask_b32 v{Sn + r}, v{Sn + r}, v{vt2}, {sr(sm[j], 2)}")
            return out

        def phase_qk(Sn, stK, Sc, cinit, dm=()):
            dm = list(dm)
            for n in range(8):
                k.e(kread(n, stK))
            for n in range(16):
                if n % 4 == 0:
                    k.e("s_waitcnt lgkmcnt(4)" if n < 12 else "s_waitcnt lgkmcnt(0)")
                k.e(qk_mfma(n, Sn, cinit))
                if n % 4 == 3 and n + 5 < 16:
                    for m in range(n + 5, n + 9):
                        k.e(kread(m, stK))
                if n % 4 != 3 and dm:
                    for ln in dm.pop(0):
                        k.e(ln)
                if Sc is not None:
                    k.e(f"v_exp_f32 v{Sc + 2 * n}, v{Sc + 2 * n}")
                    k.e(f"v_exp_f32 v{Sc + 2 * n + 1}, v{Sc + 2 * n + 1}")
                    if n > 0:
                        k.e(f"v_cvt_pk_bf16_f32 v{P + n - 1}, v{Sc + 2 * n - 2}, v{Sc + 2 * n - 1}")
            if Sc is not None:
                k.e(f"v_cvt_pk_bf16_f32 v{P + 15}, v{Sc + 30}, v{Sc + 31}")

        def phase_pv(Sc, stV, Sn, masked):
            for n in range(8):
                k.e(vread(n, stV))
            mt = max_tree(Sn, 32, vt0) if (Sn is not None and not fast) else []
            mk = mask_ops(Sn) if masked else []
            for n in range(16):
                if n % 4 == 0:
                    k.e("s_waitcnt lgkmcnt(4)" if n < 12 else "s_waitcnt lgkmcnt(0)")
                k.e(pv_mfma(n))
                if n % 4 == 3 and n + 5 < 16:
                    for m in range(n + 5, n + 9):
                        k.e(vread(m, stV))
                k.e(f"v_add_f32 v{lacc}, v{lacc}, v{Sc + 2 * n}")
                k.e(f"v_add_f32 v{lacc + 1}, v{lacc + 1}, v{Sc + 2 * n + 1}")
                if masked:
                    if n == 6:
                        for ln in mk:
                            k.e(ln)
                    if n >= 7:
                        for _ in range(2):
                            if mt:
                                k.e(mt.pop(0))
                elif n >= 4:
                    for _ in range(2 if n < 8 else 1):
                        if mt:
                            k.e(mt.pop(0))
            for ln in mt:
                k.e(ln)

        def full(par):
            Sc, Sn = SS[par], SS[par ^ 1]
            phase_qk(Sn, par ^ 1, Sc, vr(CI, 16), dmaK(par) + dmaV(par ^ 1))
            pr.stamp(0)
            Lm, Lj = k.label("msk"), k.label("join")
            k.e(f"s_add_u32 s{s_t0}, s{s_kt}, 3")
            k.e(f"s_cmp_ge_u32 s{s_t0}, s{s_nt}")
            k.e(f"s_cbranch_scc1 {Lm}")
            phase_pv(Sc, par, Sn, False)
            k.e(f"s_branch {Lj}")
            k.place(Lm)
            k.e(f"s_lshl_b32 s{s_t1}, s{s_kt}, 6")
            k.e(f"s_add_u32 s{s_t1}, s{s_t1}, 64")
            phase_pv(Sc, par, Sn, True)
            k.place(Lj)
            pr.stamp(1)
            if not fast:
                check_rescale(k, Sn, CI, O, 64, lacc, vt0, vt1)
            k.e(f"s_add_u32 s{s_kt}, s{s_kt}, 1")
            pr.stamp(2)
            k.e("s_waitcnt vmcnt(0)")
            pr.stamp(3)
            k.e("s_barrier")
            pr.stamp(4)

        block_loads()
        LBtop = k.label("btop")
        k.place(LBtop)
        k.e(f"v_and_b32 v{vt0}, 31, v{v_lane}")
        k.e(f"v_add_u32 v{vq}, s{s_q0}, v{vt0}")
        k.e(f"s_lshl_b32 s{s_nt}, s{s_qb}, 1")
        k.e(f"s_add_u32 s{s_nt}, s{s_nt}, 2")
        for r in range(64):
            k.e(f"v_mov_b32 v{O + r}, 0")
        k.e(f"v_mov_b32 v{lacc}, 0")
        k.e(f"v_mov_b32 v{lacc + 1}, 0")
        k.e(f"s_mov_b32 s{s_kt}, 0")
        k.e("s_waitcnt vmcnt(0)")
        k.e("s_barrier")
        phase_qk(SS[0], 0, None, "0")
        k.e("s_nop 15")
        Lnm = k.label("nm0")
        k.e(f"s_cmp_lg_u32 s{s_nt}, 2")
        k.e(f"s_cbranch_scc1 {Lnm}")
        k.e(f"s_mov_b32 s{s_t1}, 0")
        for ln in mask_ops(SS[0]):
            k.e(ln)
        k.place(Lnm)
        first_tile_norm(k, SS[0], CI, vt0, vt1)
        k.e("s_barrier")
        Lloop, Llast = k.label("bloop"), k.label("blast")
        pr.start()
        k.e(f"s_cmp_eq_u32 s{s_nt}, 2")
        k.e(f"s_cbranch_scc1 {Llast}")
        k.place(Lloop)
        full(0)
        full(1)
        k.e(f"s_add_u32 s{s_t0}, s{s_kt}, 2")
        k.e(f"s_cmp_lt_u32 s{s_t0}, s{s_nt}")
        k.e(f"s_cbranch_scc1 {Lloop}")
        k.place(Llast)
        full(0)
        Lnp = k.label("nopf")
        k.e(f"s_sub_u32 s{s_qb}, 15, s{s_qb}")
        k.e(f"s_cmp_lg_u32 s{s_pass}, 0")
        k.e(f"s_cbranch_scc1 {Lnp}")
        block_loads()
        k.place(Lnp)
        Sc = SS[1]
        for n in range(16):
            k.e(f"v_exp_f32 v{Sc + 2 * n}, v{Sc + 2 * n}")
            k.e(f"v_exp_f32 v{Sc + 2 * n + 1}, v{Sc + 2 * n + 1}")
            if n > 0:
                k.e(f"v_cvt_pk_bf16_f32 v{P + n - 1}, v{Sc + 2 * n - 2}, v{Sc + 2 * n - 1}")
        k.e("s_nop 0")
        k.e(f"v_cvt_pk_bf16_f32 v{P + 15}, v{Sc + 30}, v{Sc + 31}")
        phase_pv(Sc, 1, None, False)
        k.e("s_nop 15")
        k.e(f"v_lshrrev_b32 v{vt0}, 7, v{vq}")
        k.e(f"v_lshlrev_b32 v{vdiff}, 20, v{vt0}")
        k.e(f"v_and_b32 v{vt0}, 127, v{vq}")
        k.e(f"v_lshl_add_u32 v{vdiff}, v{vt0}, 7, v{vdiff}")
        k.e(f"v_lshl_add_u32 v{vdiff}, v{vh4}, 2, v{vdiff}")
        k.e(f"s_lshl_b32 s{s_t0}, s{s_head}, 15")
        k.e(f"s_add_u32 s{s_t1}, s{s_t0}, 16384")
        finish_store(k, O, 4, lacc, vt0, vt1, vdiff, sO, s_t0, s_bad=s_bad if fast else None, soff2=s_t1)
        k.e(f"s_add_u32 s{s_pass}, s{s_pass}, 1")
        k.e(f"s_cmp_lt_u32 s{s_pass}, 2")
        k.e(f"s_cbranch_scc1 {LBtop}")
        pr.tot_end()
        pr.dump(pw, sQ, vt0, vt1)
        k.e(f"s_branch {Ldone}")
        k.vn, k.sn = save_v, save_s

    def role_a(fast, Ldone):
        k.e(f"s_sub_u32 s{s_wave}, s{s_wave0}, 4")
        make_srd(k, sQ, pw, WS_QA, 4 * MB)
        make_srd(k, sK, pw, WS_KA, 2048 * 64)
        make_srd(k, sV, pw, WS_VA, 2048 * 64)
        make_srd(k, sO, pw, WS_OA, 4 * MB)
        s_hg, s_q0, s_kb, s_go, s_ho, s_dst, s_cur, s_nxt, s_wdst = [k.s() for _ in range(9)]
        pa = Prof(k, 6)
        pa.tot_start()
        NH = 2 if fast else 1
        Q = [k.v(8, 4) for _ in range(NH)]
        O = [k.v(16, 4) for _ in range(NH)]
        LS = [k.v(16, 4) for _ in range(NH)]
        SS = [k.v(32, 4), k.v(32, 4)]
        P2 = [k.v(16, 4) for _ in range(NH)]
        CI = k.v(16, 4)
        KF = k.v(16, 4)
        VF = k.v(16, 4)
        ONES = k.v(4, 4)
        vqo, vdm = k.v(), k.v()
        ba = [k.v(), k.v()]
        ac = [k.v(), k.v()]
        an = [k.v(), k.v()]
        LAtop = k.label("atop")
        k.place(LAtop)
        k.e(f"s_and_b32 s{s_q0}, s2, 15")
        k.e(f"s_lshr_b32 s{s_hg}, s2, 4")
        k.e(f"s_lshl_b32 s{s_hg}, s{s_hg}, 1")
        k.e(f"s_add_u32 s{s_hg}, s{s_hg}, s{s_pass}")
        k.e(f"s_lshl_b32 s{s_q0}, s{s_q0}, 7")
        k.e(f"s_lshl_b32 s{s_t0}, s{s_wave}, 5")
        k.e(f"s_add_u32 s{s_q0}, s{s_q0}, s{s_t0}")
        k.e(f"s_lshl_b32 s{s_ho}, s{s_hg}, 6")
        k.e(f"v_and_b32 v{vt0}, 31, v{v_lane}")
        k.e(f"v_lshrrev_b32 v{vt2}, 5, v{v_lane}")
        k.e(f"v_add_u32 v{vt1}, s{s_q0}, v{vt0}")
        k.e(f"v_lshlrev_b32 v{vt1}, 11, v{vt1}")
        k.e(f"v_lshl_add_u32 v{vqo}, v{vt2}, 4, v{vt1}")
        for h in range(NH):
            for ks in range(2):
                k.e(f"buffer_load_dwordx4 {vr(Q[h] + 4 * ks, 4)}, v{vqo}, {sr(sQ, 4)}, s{s_ho} offen offset:{h * 64 + ks * 32}")
        k.e(f"v_bfe_u32 v{vt1}, v{v_lane}, 2, 2")
        k.e(f"v_xor_b32 v{vt1}, v{vt1}, v{vt2}")
        k.e(f"v_lshlrev_b32 v{vt0}, 6, v{vt0}")
        for x in range(2):
            k.e(f"v_xor_b32 v{vt2}, {2 * x}, v{vt1}")
            k.e(f"v_lshl_add_u32 v{ba[x]}, v{vt2}, 4, v{vt0}")
        k.e(f"v_lshrrev_b32 v{vt0}, 2, v{v_lane}")
        k.e(f"v_lshrrev_b32 v{vt1}, 4, v{v_lane}")
        k.e(f"v_xor_b32 v{vt1}, v{vt1}, v{v_lane}")
        k.e(f"v_and_b32 v{vt1}, 3, v{vt1}")
        k.e(f"v_lshlrev_b32 v{vt0}, 6, v{vt0}")
        k.e(f"v_lshl_add_u32 v{vt0}, v{vt1}, 4, v{vt0}")
        k.e(f"s_lshl_b32 s{s_wdst}, s{s_wave}, 11")
        k.e(f"v_add_u32 v{vdm}, s{s_wdst}, v{vt0}")
        k.e(f"s_mov_b32 s{s_kb}, 0")
        k.e(f"s_mov_b32 s{s_go}, 0")
        k.e(f"s_mov_b32 s{s_dst}, {ABASE}")
        k.e(f"s_mov_b32 s{s_cur}, {ABASE}")
        k.e(f"s_mov_b32 s{s_nxt}, {ABASE + AST}")

        def dmaA():
            out = [[f"s_add_u32 s{s_t0}, s{s_dst}, s{s_wdst}"]]
            for j in range(2):
                out.append([f"s_mov_b32 m0, s{s_t0}", "s_nop 0",
                            f"buffer_load_dwordx4 v{vdm}, {sr(sK, 4)}, s{s_go} offen offset:{j * 1024} lds"])
            for j in range(2):
                out.append([f"s_add_u32 m0, s{s_t0}, 8192", "s_nop 0",
                            f"buffer_load_dwordx4 v{vdm}, {sr(sV, 4)}, s{s_go} offen offset:{j * 1024} lds"])
            out.append([f"s_add_u32 s{s_go}, s{s_go}, 8192", f"s_add_u32 s{s_dst}, s{s_dst}, {AST}",
                        f"s_cmp_eq_u32 s{s_dst}, {ABASE + 3 * AST}", f"s_cselect_b32 s{s_dst}, {ABASE}, s{s_dst}"])
            return out

        for _ in range(2):
            for g in dmaA():
                for ln in g:
                    k.e(ln)
        for h in range(NH):
            for r in range(16):
                k.e(f"v_mov_b32 v{O[h] + r}, 0")
                k.e(f"v_mov_b32 v{LS[h] + r}, 0")
        for r in range(4):
            k.e(f"v_mov_b32 v{ONES + r}, 0x3f803f80")

        def kreads_l(adr, half):
            return [f"ds_read_b128 {vr(KF + 8 * kk + 4 * ks, 4)}, v{adr[ks]} offset:{half * 4096 + kk * 2048}"
                    for kk in range(2) for ks in range(2)]

        def vreads_l(adr, half):
            return [f"ds_read_b128 {vr(VF + 4 * g, 4)}, v{adr[g & 1]} offset:{8192 + half * 4096 + (g >> 1) * 2048}"
                    for g in range(4)]

        def pv_l(h, Pp):
            out = []
            for g in range(4):
                out.append(f"v_mfma_f32_32x32x16_bf16 {vr(O[h], 16)}, {vr(VF + 4 * g, 4)}, {vr(Pp + 4 * g, 4)}, {vr(O[h], 16)}")
                if AONES or not fast:
                    out.append(f"v_mfma_f32_32x32x16_bf16 {vr(LS[h], 16)}, {vr(ONES, 4)}, {vr(Pp + 4 * g, 4)}, {vr(LS[h], 16)}")
            return out

        def qk_l(h, Sb, cinit):
            out = []
            for kk in range(2):
                for ks in range(2):
                    cin = cinit if ks == 0 else vr(Sb + 16 * kk, 16)
                    out.append(f"v_mfma_f32_32x32x16_bf16 {vr(Sb + 16 * kk, 16)}, {vr(KF + 8 * kk + 4 * ks, 4)}, {vr(Q[h] + 4 * ks, 4)}, {cin}")
            return out

        def oa_addr():
            k.e(f"v_and_b32 v{vt0}, 31, v{v_lane}")
            k.e(f"v_add_u32 v{vt0}, s{s_q0}, v{vt0}")
            k.e(f"v_lshrrev_b32 v{vt1}, 7, v{vt0}")
            k.e(f"v_lshlrev_b32 v{vdm}, 18, v{vt1}")
            k.e(f"v_and_b32 v{vt0}, 127, v{vt0}")
            k.e(f"v_lshl_add_u32 v{vdm}, v{vt0}, 7, v{vdm}")
            k.e(f"v_lshrrev_b32 v{vt1}, 5, v{v_lane}")
            k.e(f"v_lshl_add_u32 v{vdm}, v{vt1}, 4, v{vdm}")
            k.e(f"s_lshr_b32 s{s_t1}, s{s_hg}, 1")
            k.e(f"s_lshl_b32 s{s_t1}, s{s_t1}, 14")
            k.e(f"s_and_b32 s{s_t0}, s{s_hg}, 1")
            k.e(f"s_lshl_b32 s{s_t0}, s{s_t0}, 6")
            k.e(f"s_add_u32 s{s_t1}, s{s_t1}, s{s_t0}")

        def set_addr():
            for x in range(2):
                k.e(f"v_add_u32 v{ac[x]}, s{s_cur}, v{ba[x]}")
                k.e(f"v_add_u32 v{an[x]}, s{s_nxt}, v{ba[x]}")

        def adv():
            k.e(f"s_mov_b32 s{s_cur}, s{s_nxt}")
            k.e(f"s_add_u32 s{s_nxt}, s{s_nxt}, {AST}")
            k.e(f"s_cmp_eq_u32 s{s_nxt}, {ABASE + 3 * AST}")
            k.e(f"s_cselect_b32 s{s_nxt}, {ABASE}, s{s_nxt}")

        def expcvt(Sc, Pc, slots, dm=(), la=None):
            dm = list(dm)
            for n in range(16):
                k.e(f"v_exp_f32 v{Sc + 2 * n}, v{Sc + 2 * n}")
                k.e(f"v_exp_f32 v{Sc + 2 * n + 1}, v{Sc + 2 * n + 1}")
                if n > 0:
                    k.e(f"v_cvt_pk_bf16_f32 v{Pc + n - 1}, v{Sc + 2 * n - 2}, v{Sc + 2 * n - 1}")
                    if la is not None:
                        k.e(f"v_add_f32 v{la}, v{la}, v{Sc + 2 * n - 2}")
                        k.e(f"v_add_f32 v{la + 1}, v{la + 1}, v{Sc + 2 * n - 1}")
                for ln in slots.get(n, []):
                    k.e(ln)
                if n >= 12 and dm:
                    for ln in dm.pop(0):
                        k.e(ln)
            for g in dm:
                for ln in g:
                    k.e(ln)
            k.e("s_nop 0")
            k.e(f"v_cvt_pk_bf16_f32 v{Pc + 15}, v{Sc + 30}, v{Sc + 31}")
            if la is not None:
                k.e(f"v_add_f32 v{la}, v{la}, v{Sc + 30}")
                k.e(f"v_add_f32 v{la + 1}, v{la + 1}, v{Sc + 31}")

        k.e("s_waitcnt vmcnt(0)")
        k.e("s_barrier")
        set_addr()
        for ln in kreads_l(ac, 0):
            k.e(ln)
        k.e("s_waitcnt lgkmcnt(0)")
        if fast:
            for h in range(2):
                for ln in qk_l(h, SS[h], "0"):
                    k.e(ln)
            k.e("s_nop 15")
            for ln in max_tree(SS[0], 32, vt0):
                k.e(ln)
            for ln in max_tree(SS[1], 32, vt2):
                k.e(ln)
            k.e(f"v_max_f32 v{vt0}, v{vt0}, v{vt2}")
            xhalf_max(k, vt0, vt1)
            for h in range(2):
                for r in range(32):
                    k.e(f"v_sub_f32 v{SS[h] + r}, v{SS[h] + r}, v{vt0}")
            k.e(f"v_sub_f32 v{vt1}, 0, v{vt0}")
            for r in range(16):
                k.e(f"v_mov_b32 v{CI + r}, v{vt1}")

            def it(h, half, do_pv=True, do_qk=True, rd=None, dm=()):
                slots = {}
                if h == 1:
                    k.e("s_waitcnt lgkmcnt(0)")
                if do_pv:
                    for i, ln in enumerate(pv_l(h ^ 1, P2[h ^ 1])):
                        slots.setdefault(i if AONES else 2 * i, []).append(ln)
                if do_qk:
                    for i, ln in enumerate(qk_l(h ^ 1, SS[h ^ 1], vr(CI, 16))):
                        slots.setdefault(8 + i, []).append(ln)
                if rd:
                    slots.setdefault(12, []).extend(rd)
                expcvt(SS[h], P2[h], slots, dm, la=None if AONES else LS[h])

            sPF = k.s(4)
            s_pfo = k.s()
            vpf = LS[0] + 8
            if PREFETCH:
                make_srd(k, sPF, pf0, 0, 4096 * 1024 * 2)
                k.e(f"s_lshl_b32 s{s_pfo}, s2, 15")
                k.e(f"s_lshl_b32 s{s_t0}, s{s_wave}, 10")
                k.e(f"s_add_u32 s{s_pfo}, s{s_pfo}, s{s_t0}")
                k.e(f"v_lshlrev_b32 v{vpf}, 4, v{v_lane}")

            def prefetch():
                if not PREFETCH:
                    return
                Lsw = k.label("pfsw")
                k.e(f"s_cmp_lg_u32 s{s_kb}, 8")
                k.e(f"s_cbranch_scc1 {Lsw}")
                make_srd(k, sPF, pf1, 0, 1024 * 1024 * 2)
                k.e(f"s_lshl_b32 s{s_pfo}, s2, 13")
                k.e(f"s_lshl_b32 s{s_t0}, s{s_wave}, 10")
                k.e(f"s_add_u32 s{s_pfo}, s{s_pfo}, s{s_t0}")
                k.place(Lsw)
                k.e(f"buffer_load_dwordx4 {vr(LS[0] + 4, 4)}, v{vpf}, {sr(sPF, 4)}, s{s_pfo} offen")
                k.e(f"s_add_u32 s{s_pfo}, s{s_pfo}, 4096")

            def stage_iter(first, last):
                if not last:
                    prefetch()
                it(0, 0, do_pv=not first, do_qk=not first, rd=vreads_l(ac, 0) + kreads_l(ac, 1))
                it(1, 0, dm=dmaA() if not last else ())
                k.e("s_barrier")
                it(0, 1, rd=vreads_l(ac, 1) + ([] if last else kreads_l(an, 0)))
                it(1, 1, do_qk=not last)
                if not last:
                    adv()
                    set_addr()
                    k.e(f"s_add_u32 s{s_kb}, s{s_kb}, 1")
                    k.e("s_waitcnt vmcnt(0) lgkmcnt(0)")
                k.e("s_barrier")

            for _ in range(3):
                k.e("s_barrier")
            pa.start()
            stage_iter(True, False)
            Lloop = k.label("aloop")
            k.place(Lloop)
            stage_iter(False, False)
            k.e(f"s_cmp_lt_u32 s{s_kb}, 15")
            k.e(f"s_cbranch_scc1 {Lloop}")
            stage_iter(False, True)
            k.e("s_nop 1")
            for ln in pv_l(1, P2[1]):
                k.e(ln)
            k.e("s_nop 15")
            oa_addr()
            for h in range(2):
                k.e(f"s_add_u32 s{s_t0}, s{s_t1}, {h * 64}")
                finish_store(k, O[h], 1, LS[h], vt0, vt1, vdm, sO, s_t0, lsum_mfma=bool(AONES), s_bad=s_bad, lowchk=True)
        else:
            for ln in qk_l(0, SS[0], "0"):
                k.e(ln)
            k.e("s_nop 15")
            first_tile_norm(k, SS[0], CI, vt0, vt1)
            k.e("s_barrier")
            P = P2[0]

            def a_iter(par, last, dm):
                Sc, Sn = SS[par], SS[par ^ 1]
                if not last:
                    for ln in kreads_l(ac if par == 0 else an, par ^ 1):
                        k.e(ln)
                for ln in vreads_l(ac, par):
                    k.e(ln)
                if not last:
                    k.e("s_waitcnt lgkmcnt(4)")
                    for ln in qk_l(0, Sn, vr(CI, 16)):
                        k.e(ln)
                expcvt(Sc, P, {}, dm)
                k.e("s_waitcnt lgkmcnt(0)")
                k.e("s_nop 0")
                for ln in pv_l(0, P):
                    k.e(ln)
                if not last:
                    for ln in max_tree(Sn, 32, vt0):
                        k.e(ln)
                    check_rescale(k, Sn, CI, O[0], 16, LS[0], vt0, vt1, lsum_mfma=True)

            Lloop = k.label("aloop")
            k.place(Lloop)
            a_iter(0, False, dmaA())
            a_iter(1, False, [])
            adv()
            set_addr()
            k.e(f"s_add_u32 s{s_kb}, s{s_kb}, 1")
            k.e("s_waitcnt vmcnt(0) lgkmcnt(0)")
            k.e("s_barrier")
            k.e(f"s_cmp_lt_u32 s{s_kb}, 15")
            k.e(f"s_cbranch_scc1 {Lloop}")
            a_iter(0, False, [])
            a_iter(1, True, [])
            k.e("s_nop 15")
            oa_addr()
            finish_store(k, O[0], 1, LS[0], vt0, vt1, vdm, sO, s_t1, lsum_mfma=True)
            k.e("s_barrier")
            k.e(f"s_add_u32 s{s_pass}, s{s_pass}, 1")
            k.e(f"s_cmp_lt_u32 s{s_pass}, 2")
            k.e(f"s_cbranch_scc1 {LAtop}")
        pa.tot_end()
        pa.dump(pw, sQ, vt0, vt1)
        k.e(f"s_branch {Ldone}")
        k.vn, k.sn = save_v, save_s

    def emit_mode(fast, Ldone):
        LA = k.label("attnA")
        k.e(f"s_mov_b32 s{s_pass}, 0")
        k.e(f"s_cmp_ge_u32 s{s_wave0}, 4")
        k.e(f"s_cbranch_scc1 {LA}")
        role_b(fast, Ldone)
        k.place(LA)
        role_a(fast, Ldone)

    Lvote = k.label("vote")
    if FASTMAX:
        emit_mode(True, Lvote)
        k.place(Lvote)
        k.e("s_barrier")
        k.e(f"v_mov_b32 v{vt0}, s{s_bad}")
        k.e(f"s_lshl_b32 s{s_t0}, s{s_wave0}, 2")
        k.e(f"v_mov_b32 v{vt1}, s{s_t0}")
        k.e(f"ds_write_b32 v{vt1}, v{vt0} offset:{VOTE_OFF}")
        k.e("s_waitcnt lgkmcnt(0)")
        k.e("s_barrier")
        k.e(f"v_and_b32 v{vt1}, 7, v{v_lane}")
        k.e(f"v_lshlrev_b32 v{vt1}, 2, v{vt1}")
        k.e(f"ds_read_b32 v{vt0}, v{vt1} offset:{VOTE_OFF}")
        k.e("s_waitcnt lgkmcnt(0)")
        k.e(f"v_cmp_ne_u32 vcc, 0, v{vt0}")
        k.e("s_barrier")
        k.e(f"s_cbranch_vccz {Lend}")
    emit_mode(False, Lend)
    k.place(Lend)
    k.e("s_endpgm")
    return k


def main():
    kernels = [
        (kern_proj(), 256, 512, 160 * 1024),
        (kern_attn(), 256, 512, ATTN_LDS),
        {"half": lambda: (kern_out(), 256, 256, 160 * 1024),
         "split": lambda: (kern_out_split(), 256, 256, 160 * 1024),
         "f8": lambda: (kern_out_full(8), 256, 512, 152 * 1024),
         "f4": lambda: (kern_out_full(4), 256, 256, 152 * 1024)}[os.environ.get("OUTMODE", "split")](),
    ]
    out = []
    for kk, g, b, lds in kernels:
        out.append(f"; @launch kernel={kk.name} grid=({g},1,1) block=({b},1,1) lds={lds}")
    out.append('.amdgcn_target "amdgcn-amd-amdhsa--gfx950"')
    out.append(".text")
    for kk, g, b, lds in kernels:
        out.append(f".globl {kk.name}")
        out.append(".p2align 8")
        out.append(f".type {kk.name},@function")
        out.append(f"{kk.name}:")
        out.append(kk.text())
    out.append('.section .rodata,"a"')
    for kk, g, b, lds in kernels:
        nv = (kk.maxv + 7) // 8 * 8
        out.append(".p2align 6")
        out.append(f".amdhsa_kernel {kk.name}")
        out.append(f"  .amdhsa_next_free_vgpr {nv}")
        out.append("  .amdhsa_next_free_sgpr 102")
        out.append(f"  .amdhsa_accum_offset {nv}")
        out.append("  .amdhsa_group_segment_fixed_size 0")
        out.append("  .amdhsa_kernarg_size 112")
        out.append("  .amdhsa_user_sgpr_count 2")
        out.append("  .amdhsa_user_sgpr_kernarg_segment_ptr 1")
        out.append("  .amdhsa_system_sgpr_workgroup_id_x 1")
        out.append(".end_amdhsa_kernel")
    path = sys.argv[1] if len(sys.argv) > 1 else f"cdna_kernels/{NAME}.s"
    open(path, "w").write("\n".join(out) + "\n")
    for kk, g, b, lds in kernels:
        print(kk.name, "vgprs", kk.maxv, "lines", len(kk.lines))


if __name__ == "__main__":
    main()
```

```python
import math
import os
import sys

PROF = int(os.environ.get("PROF", "0"))
PRIO = int(os.environ.get("PRIO", "0"))

NAME = "concat_heads__grouped_kv_mqa__compressed_kv_cla__prompt"

KA_AX, KA_AWQ, KA_AWK, KA_AWV, KA_AWO = 0, 8, 16, 24, 32
KA_BX, KA_CKV, KA_BWQ, KA_WUK, KA_WUV, KA_BWO = 40, 48, 56, 64, 72, 80
KA_OUT, KA_DBG, KA_WS = 88, 96, 104

MB = 1 << 20
PREFETCH = int(os.environ.get("PREFETCH", "1"))
WS_QB, WS_KB, WS_VB, WS_CTX = 0, 16 * MB, 32 * MB, 48 * MB
WS_QA, WS_OA, WS_KA, WS_VA = 64 * MB, 68 * MB, 72 * MB, 73 * MB


def log2(x):
    r = int(math.log2(x))
    assert 1 << r == x, x
    return r


class K:
    def __init__(self, name):
        self.name = name
        self.lines = []
        self.vn = 1
        self.sn = 3
        self.maxv = 1
        self.uid = 0

    def v(self, n=1, align=1):
        if n > 1 and align == 1:
            align = 2
        self.vn = (self.vn + align - 1) // align * align
        r = self.vn
        self.vn += n
        self.maxv = max(self.maxv, self.vn)
        assert self.vn <= 256, "out of vgprs"
        return r

    def s(self, n=1, align=1):
        if n == 2:
            align = max(align, 2)
        if n == 4:
            align = max(align, 4)
        self.sn = (self.sn + align - 1) // align * align
        r = self.sn
        self.sn += n
        assert self.sn <= 100, "out of sgprs"
        return r

    def e(self, t):
        self.lines.append("    " + t)

    def c(self, t):
        self.lines.append("    ; " + t)

    def label(self, base):
        self.uid += 1
        return f"L_{self.name}_{base}_{self.uid}"

    def place(self, lab):
        self.lines.append(lab + ":")

    def text(self):
        return "\n".join(self.lines)


def vr(b, n):
    return f"v[{b}:{b + n - 1}]"


def sr(b, n):
    return f"s[{b}:{b + n - 1}]"


class Prof:
    def __init__(self, k, n):
        self.k = k
        self.n = n
        if not PROF:
            return
        self.t = k.s(2)
        self.prev = k.s()
        self.acc = [k.s() for _ in range(n)]
        for a in self.acc:
            k.e(f"s_mov_b32 s{a}, 0")

    def tot_start(self):
        if PROF != 2:
            return
        k = self.k
        k.e(f"s_memtime {sr(self.t, 2)}")
        k.e("s_waitcnt lgkmcnt(0)")
        k.e(f"s_mov_b32 s{self.acc[0]}, s{self.t}")
        k.e(f"s_memrealtime {sr(self.t, 2)}")
        k.e("s_waitcnt lgkmcnt(0)")
        k.e(f"s_mov_b32 s{self.acc[1]}, s{self.t}")

    def tot_end(self):
        if PROF != 2:
            return
        k = self.k
        k.e(f"s_memtime {sr(self.t, 2)}")
        k.e("s_waitcnt lgkmcnt(0)")
        k.e(f"s_sub_u32 s{self.acc[0]}, s{self.t}, s{self.acc[0]}")
        k.e(f"s_memrealtime {sr(self.t, 2)}")
        k.e("s_waitcnt lgkmcnt(0)")
        k.e(f"s_sub_u32 s{self.acc[1]}, s{self.t}, s{self.acc[1]}")

    def start(self):
        if PROF != 1:
            return
        k = self.k
        k.e(f"s_memtime {sr(self.t, 2)}")
        k.e("s_waitcnt lgkmcnt(0)")
        k.e(f"s_mov_b32 s{self.prev}, s{self.t}")

    def stamp(self, i):
        if PROF != 1:
            return
        k = self.k
        k.e(f"s_memtime {sr(self.t, 2)}")
        k.e("s_waitcnt lgkmcnt(0)")
        k.e(f"s_sub_u32 s{self.prev}, s{self.t}, s{self.prev}")
        k.e(f"s_add_u32 s{self.acc[i]}, s{self.acc[i]}, s{self.prev}")
        k.e(f"s_mov_b32 s{self.prev}, s{self.t}")

    def dump(self, pw, srd, vtmp, vtmp2):
        if not PROF or self.k.name != os.environ.get("PROFK", "attn_kernel"):
            return
        k = self.k
        make_srd(k, srd, pw, 80 * MB, 4 * MB)
        k.e(f"v_lshrrev_b32 v{vtmp}, 6, v0")
        k.e(f"v_lshlrev_b32 v{vtmp}, 6, v{vtmp}")
        k.e(f"s_lshl_b32 s{self.prev}, s2, 9")
        for i, a in enumerate(self.acc):
            k.e(f"v_mov_b32 v{vtmp2}, s{a}")
            k.e(f"buffer_store_dword v{vtmp2}, v{vtmp}, {sr(srd, 4)}, s{self.prev} offen offset:{4 * i}")
        k.e("s_waitcnt vmcnt(0)")


def load_ptr(k, sdst, off):
    k.e(f"s_load_dwordx2 {sr(sdst, 2)}, s[0:1], {off}")


def make_srd(k, srd, sptr, off, size):
    if off:
        k.e(f"s_add_u32 s{srd}, s{sptr}, {off:#x}")
        k.e(f"s_addc_u32 s{srd + 1}, s{sptr + 1}, 0")
        k.e(f"s_and_b32 s{srd + 1}, s{srd + 1}, 0xffff")
    else:
        k.e(f"s_mov_b32 s{srd}, s{sptr}")
        k.e(f"s_and_b32 s{srd + 1}, s{sptr + 1}, 0xffff")
    k.e(f"s_mov_b32 s{srd + 2}, {size:#x}")
    k.e(f"s_mov_b32 s{srd + 3}, 0x20000")


class GemmCtx:
    def __init__(self, k):
        self.k = k
        self.sX = k.s(4)
        self.sW = k.s(4)
        self.sO = k.s(4)
        self.ldx, self.ldw, self.nt, self.tm_off, self.tn_off = [k.s() for _ in range(5)]
        self.obase, self.ldo, self.scale = [k.s() for _ in range(3)]
        self.kxstep = None
        self.s_wave = k.s()
        self.s_t0, self.s_t1 = k.s(), k.s()
        self.v_lane = k.v()
        self.vt = [k.v() for _ in range(4)]
        self.voff = [[k.v() for _ in range(8)] for _ in range(2)]
        self.sset = [[k.s() for _ in range(14)] for _ in range(2)]
        self.vpf = k.v(4, 4)
        self.vpfo = k.v()
        self.shared_v = None
        self.flip = 0
        self.after_first = None

    def init_ids(self):
        k = self.k
        k.e(f"v_and_b32 v{self.v_lane}, 63, v0")
        k.e(f"v_lshrrev_b32 v{self.vt[0]}, 6, v0")
        k.e("s_nop 0")
        k.e(f"v_readfirstlane_b32 s{self.s_wave}, v{self.vt[0]}")
        k.e("s_nop 3")
        self.shared_v = k.vn


class Gemm:
    def __init__(self, G, WM, WN, TM, TN, BK, NSTAGE, ACROSS, form, epi):
        self.G, self.k = G, G.k
        self.WM, self.WN, self.TM, self.TN, self.BK, self.NSTAGE, self.ACROSS = WM, WN, TM, TN, BK, NSTAGE, ACROSS
        self.form, self.epi = form, epi
        self.NW = WM * WN
        self.BM, self.BN = WM * TM * 32, WN * TN * 32
        self.RX, self.RW = BK * 2, self.BN * 2
        self.CX = self.RX // 16
        self.SX = {64: 2, 128: 1}[self.RX]
        self.XB, self.WB = self.BM * self.RX, BK * self.RW
        self.STAGE = self.XB + self.WB
        self.KS = BK // 16
        self.NXI = self.XB // 1024 // self.NW
        self.NWI = self.WB // 1024 // self.NW
        assert self.NXI * 1024 * self.NW == self.XB and self.NWI * 1024 * self.NW == self.WB
        self.D = self.NXI + self.NWI
        assert self.D <= 8
        self.LEAD = NSTAGE - 1
        self.CERT = 2 if ACROSS else 1
        self.FULL = ACROSS == 2
        self.nstores = 2 * TM * TN

    def _wswz(self, vdst, vkrow):
        k = self.k
        if self.RW >= 256:
            k.e(f"v_and_b32 v{vdst}, 3, v{vkrow}")
        elif self.RW == 128:
            k.e(f"v_lshrrev_b32 v{vdst}, 1, v{vkrow}")
            k.e(f"v_and_b32 v{vdst}, 1, v{vdst}")
        else:
            k.e(f"v_mov_b32 v{vdst}, 0")

    def setup_dma(self):
        k, G = self.k, self.G
        v_lane = G.v_lane
        v_t0, v_t1, v_t2, v_t3 = G.vt
        s_t0, s_wave = G.s_t0, G.s_wave
        regs = G.voff[G.flip]
        sregs = G.sset[G.flip]
        G.flip ^= 1
        self.vox = regs[:self.NXI]
        self.vow = regs[self.NXI:self.NXI + self.NWI]
        LPR, RPI = self.RX // 16, 1024 // self.RX
        for j in range(self.NXI):
            k.e(f"s_mul_i32 s{s_t0}, s{s_wave}, {self.NXI * RPI}")
            k.e(f"s_add_u32 s{s_t0}, s{s_t0}, {j * RPI}")
            k.e(f"v_lshrrev_b32 v{v_t0}, {log2(LPR)}, v{v_lane}")
            k.e(f"v_add_u32 v{v_t0}, s{s_t0}, v{v_t0}")
            k.e(f"v_lshrrev_b32 v{v_t1}, {self.SX}, v{v_t0}")
            k.e(f"v_and_b32 v{v_t1}, {self.CX - 1}, v{v_t1}")
            k.e(f"v_and_b32 v{v_t2}, {LPR - 1}, v{v_lane}")
            k.e(f"v_xor_b32 v{v_t1}, v{v_t1}, v{v_t2}")
            k.e(f"v_mul_lo_u32 v{v_t0}, v{v_t0}, s{G.ldx}")
            k.e(f"v_lshl_add_u32 v{v_t0}, v{v_t1}, 4, v{v_t0}")
            k.e(f"v_add_u32 v{self.vox[j]}, s{G.tm_off}, v{v_t0}")
        LPRW, RPIW = self.RW // 16, 1024 // self.RW
        for j in range(self.NWI):
            k.e(f"s_mul_i32 s{s_t0}, s{s_wave}, {self.NWI * RPIW}")
            k.e(f"s_add_u32 s{s_t0}, s{s_t0}, {j * RPIW}")
            k.e(f"v_lshrrev_b32 v{v_t0}, {log2(LPRW)}, v{v_lane}")
            k.e(f"v_add_u32 v{v_t0}, s{s_t0}, v{v_t0}")
            self._wswz(v_t1, v_t0)
            k.e(f"v_lshlrev_b32 v{v_t1}, 2, v{v_t1}")
            k.e(f"v_and_b32 v{v_t2}, {LPRW - 1}, v{v_lane}")
            k.e(f"v_xor_b32 v{v_t1}, v{v_t1}, v{v_t2}")
            k.e(f"v_mul_lo_u32 v{v_t0}, v{v_t0}, s{G.ldw}")
            k.e(f"v_lshl_add_u32 v{v_t0}, v{v_t1}, 4, v{v_t0}")
            k.e(f"v_add_u32 v{self.vow[j]}, s{G.tn_off}, v{v_t0}")
        (self.s_kx, self.s_kw, self.s_dst, self.s_cur, self.s_nxt, self.s_cnt, self.s_xdst, self.s_wdst,
         self.s_kwstep, self.s_d0, self.s_d1, self.s_nt, self.s_wm, self.s_wn) = sregs
        k.e(f"s_mov_b32 s{self.s_kx}, {getattr(self, 'kx0', 0)}")
        k.e(f"s_mov_b32 s{self.s_kw}, {getattr(self, 'kw0', 0)}")
        k.e(f"s_mov_b32 s{self.s_dst}, 0")
        k.e(f"s_mov_b32 s{self.s_cur}, 0")
        k.e(f"s_mov_b32 s{self.s_nxt}, {self.STAGE}")
        k.e(f"s_mul_i32 s{self.s_xdst}, s{s_wave}, {self.NXI * 1024}")
        k.e(f"s_mul_i32 s{self.s_wdst}, s{s_wave}, {self.NWI * 1024}")
        k.e(f"s_add_u32 s{self.s_wdst}, s{self.s_wdst}, {self.XB}")
        k.e(f"s_mul_i32 s{self.s_kwstep}, s{G.ldw}, {self.BK}")
        k.e(f"s_mov_b32 s{self.s_nt}, s{G.nt}")

    def dma_list(self):
        G = self.G
        out = []
        for j in range(self.NXI):
            g = []
            if j == 0:
                g.append(f"s_add_u32 s{self.s_d0}, s{self.s_dst}, s{self.s_xdst}")
            g.append(f"s_add_u32 m0, s{self.s_d0}, {j * 1024}")
            g.append("s_nop 0")
            g.append(f"buffer_load_dwordx4 v{self.vox[j]}, {sr(G.sX, 4)}, s{self.s_kx} offen lds")
            out.append(g)
        for j in range(self.NWI):
            g = []
            if j == 0:
                g.append(f"s_add_u32 s{self.s_d1}, s{self.s_dst}, s{self.s_wdst}")
            g.append(f"s_add_u32 m0, s{self.s_d1}, {j * 1024}")
            g.append("s_nop 0")
            g.append(f"buffer_load_dwordx4 v{self.vow[j]}, {sr(G.sW, 4)}, s{self.s_kw} offen lds")
            out.append(g)
        out.append([
            f"s_add_u32 s{self.s_kx}, s{self.s_kx}, {G.kxstep or self.BK * 2}",
            f"s_add_u32 s{self.s_kw}, s{self.s_kw}, s{self.s_kwstep}",
            f"s_add_u32 s{self.s_dst}, s{self.s_dst}, {self.STAGE}",
            f"s_cmp_eq_u32 s{self.s_dst}, {self.NSTAGE * self.STAGE}",
            f"s_cselect_b32 s{self.s_dst}, 0, s{self.s_dst}",
        ])
        return out

    def issue_prologue(self):
        for t in range(self.LEAD):
            for g in self.dma_list():
                for ln in g:
                    self.k.e(ln)

    def setup_rest(self):
        k, G = self.k, self.G
        k.vn = G.shared_v
        v_lane = G.v_lane
        v_t0, v_t1, v_t2, v_t3 = G.vt
        s_t0 = G.s_t0
        TM, TN, KS, RX, RW = self.TM, self.TN, self.KS, self.RX, self.RW
        k.e(f"s_and_b32 s{self.s_wm}, s{G.s_wave}, {self.WM - 1}")
        k.e(f"s_lshr_b32 s{self.s_wn}, s{G.s_wave}, {log2(self.WM)}")
        self.bx = [k.v() for _ in range(KS)]
        self.bw = [k.v() for _ in range(TN)]
        k.e(f"s_mul_i32 s{s_t0}, s{self.s_wm}, {TM * 32}")
        k.e(f"v_and_b32 v{v_t0}, 31, v{v_lane}")
        k.e(f"v_add_u32 v{v_t0}, s{s_t0}, v{v_t0}")
        k.e(f"v_lshrrev_b32 v{v_t1}, {self.SX}, v{v_t0}")
        k.e(f"v_and_b32 v{v_t1}, {self.CX - 1}, v{v_t1}")
        k.e(f"v_lshrrev_b32 v{v_t2}, 5, v{v_lane}")
        k.e(f"v_xor_b32 v{v_t1}, v{v_t1}, v{v_t2}")
        k.e(f"v_lshlrev_b32 v{v_t0}, {log2(RX)}, v{v_t0}")
        for ks in range(KS):
            k.e(f"v_xor_b32 v{v_t2}, {2 * ks}, v{v_t1}")
            k.e(f"v_lshl_add_u32 v{self.bx[ks]}, v{v_t2}, 4, v{v_t0}")
        k.e(f"v_lshrrev_b32 v{v_t0}, 5, v{v_lane}")
        k.e(f"v_lshlrev_b32 v{v_t0}, 3, v{v_t0}")
        k.e(f"v_bfe_u32 v{v_t1}, v{v_lane}, 2, 2")
        k.e(f"v_add_u32 v{v_t0}, v{v_t0}, v{v_t1}")
        self._wswz(v_t1, v_t0)
        k.e(f"v_lshlrev_b32 v{v_t1}, 2, v{v_t1}")
        k.e(f"v_lshlrev_b32 v{v_t0}, {log2(RW)}, v{v_t0}")
        for f in range(TN):
            k.e(f"s_mul_i32 s{s_t0}, s{self.s_wn}, {TN * 4}")
            k.e(f"s_add_u32 s{s_t0}, s{s_t0}, {4 * f}")
            k.e(f"v_bfe_u32 v{v_t2}, v{v_lane}, 4, 1")
            k.e(f"v_lshlrev_b32 v{v_t2}, 1, v{v_t2}")
            k.e(f"v_bfe_u32 v{v_t3}, v{v_lane}, 1, 1")
            k.e(f"v_add3_u32 v{v_t2}, v{v_t2}, v{v_t3}, s{s_t0}")
            k.e(f"v_xor_b32 v{v_t2}, v{v_t2}, v{v_t1}")
            k.e(f"v_lshl_add_u32 v{v_t2}, v{v_t2}, 4, v{v_t0}")
            k.e(f"v_and_b32 v{v_t3}, 1, v{v_lane}")
            k.e(f"v_lshl_add_u32 v{v_t2}, v{v_t3}, 3, v{v_t2}")
            k.e(f"v_add_u32 v{self.bw[f]}, {self.XB}, v{v_t2}")
        self.acc = [[k.v(16, 4) for f in range(TN)] for i in range(TM)]
        NSET = 2 * KS if self.FULL else (2 if self.ACROSS else KS)
        self.fx = [[k.v(4, 4) for i in range(TM)] for s_ in range(NSET)]
        self.fw = [[k.v(4, 4) for f in range(TN)] for s_ in range(NSET)]
        self.ax = [k.v() for _ in range(KS)]
        self.aw_c = [k.v() for _ in range(TN)]
        self.aw_n = [k.v() for _ in range(TN)] if self.ACROSS else None
        self.end_vn = k.vn
        for i in range(TM):
            for f in range(TN):
                for r in range(16):
                    k.e(f"v_mov_b32 v{self.acc[i][f] + r}, 0")

    def reads(self, ks, st, axr, awr):
        out = []
        for i in range(self.TM):
            out.append(f"ds_read_b128 {vr(self.fx[st][i], 4)}, v{axr} offset:{i * 32 * self.RX}")
        for f in range(self.TN):
            for p in range(2):
                out.append(f"ds_read_b64_tr_b16 {vr(self.fw[st][f] + 2 * p, 2)}, v{awr[f]} offset:{(16 * ks + 4 * p) * self.RW}")
        return out

    def mfmas(self, st):
        out = []
        for i in range(self.TM):
            for f in range(self.TN):
                a, b = (self.fw[st][f], self.fx[st][i]) if self.form == "T" else (self.fx[st][i], self.fw[st][f])
                out.append(f"v_mfma_f32_32x32x16_bf16 {vr(self.acc[i][f], 16)}, {vr(a, 4)}, {vr(b, 4)}, {vr(self.acc[i][f], 16)}")
        return out

    def wait_prologue(self, extra=0):
        k = self.k
        k.e(f"s_waitcnt vmcnt({min(63, extra + (self.LEAD - self.CERT) * self.D)})")
        k.e("s_barrier")
        if self.FULL:
            for ks in range(self.KS):
                for ln in self.reads(ks, ks, self.bx[ks], self.bw):
                    k.e(ln)
        elif self.ACROSS:
            for f in range(self.TN):
                k.e(f"v_mov_b32 v{self.aw_c[f]}, v{self.bw[f]}")
            k.e(f"v_mov_b32 v{self.ax[0]}, v{self.bx[0]}")
            for ln in self.reads(0, 0, self.ax[0], self.aw_c):
                k.e(ln)

    def _interleave(self, main, fill, per=1):
        k = self.k
        fill = list(fill)
        for m in main:
            k.e(m)
            for _ in range(per):
                if fill:
                    it = fill.pop(0)
                    for ln in it if isinstance(it, list) else [it]:
                        k.e(ln)
        for it in fill:
            for ln in it if isinstance(it, list) else [it]:
                k.e(ln)

    def _body(self, with_dma):
        k = self.k
        TN, KS = self.TN, self.KS
        dm = self.dma_list() if with_dma else []
        if self.ACROSS:
            assert KS == 2
            k.e(f"v_add_u32 v{self.ax[1]}, s{self.s_cur}, v{self.bx[1]}")
            for f in range(TN):
                k.e(f"v_add_u32 v{self.aw_c[f]}, s{self.s_cur}, v{self.bw[f]}")
            k.e(f"v_add_u32 v{self.ax[0]}, s{self.s_nxt}, v{self.bx[0]}")
            for f in range(TN):
                k.e(f"v_add_u32 v{self.aw_n[f]}, s{self.s_nxt}, v{self.bw[f]}")
            k.e("s_waitcnt lgkmcnt(0)")
            self._interleave(self.mfmas(0), self.reads(1, 1, self.ax[1], self.aw_c), per=2)
            k.e("s_waitcnt lgkmcnt(0)")
            self._interleave(self.mfmas(1), self.reads(0, 0, self.ax[0], self.aw_n) + dm, per=2)
        else:
            for ks in range(KS):
                k.e(f"v_add_u32 v{self.ax[ks]}, s{self.s_cur}, v{self.bx[ks]}")
            for f in range(TN):
                k.e(f"v_add_u32 v{self.aw_c[f]}, s{self.s_cur}, v{self.bw[f]}")
            nr = self.TM + 2 * TN
            for ks in range(KS):
                for ln in self.reads(ks, ks, self.ax[ks], self.aw_c):
                    k.e(ln)
            for g in dm:
                for ln in g:
                    k.e(ln)
            for ks in range(KS):
                k.e(f"s_waitcnt lgkmcnt({min(15, (KS - 1 - ks) * nr)})")
                for ln in self.mfmas(ks):
                    k.e(ln)
        k.e(f"s_mov_b32 s{self.s_cur}, s{self.s_nxt}")
        k.e(f"s_add_u32 s{self.s_nxt}, s{self.s_nxt}, {self.STAGE}")
        k.e(f"s_cmp_eq_u32 s{self.s_nxt}, {self.NSTAGE * self.STAGE}")
        k.e(f"s_cselect_b32 s{self.s_nxt}, 0, s{self.s_nxt}")
        if with_dma:
            k.e(f"s_waitcnt vmcnt({(self.LEAD - self.CERT) * self.D})")
        else:
            k.e("s_waitcnt vmcnt(0)")
        k.e("s_barrier")

    def _body_full(self, par, with_dma):
        k = self.k
        TN, KS = self.TN, self.KS
        for ks in range(KS):
            k.e(f"v_add_u32 v{self.ax[ks]}, s{self.s_nxt}, v{self.bx[ks]}")
        for f in range(TN):
            k.e(f"v_add_u32 v{self.aw_c[f]}, s{self.s_nxt}, v{self.bw[f]}")
        k.e("s_waitcnt lgkmcnt(0)")
        rd = []
        for ks in range(KS):
            rd += self.reads(ks, (par ^ 1) * KS + ks, self.ax[ks], self.aw_c)
        mf = []
        for ks in range(KS):
            mf += self.mfmas(par * KS + ks)
        dm = self.dma_list() if with_dma else []
        fill = []
        nr, nd = len(rd), len(dm)
        di = 0
        for i, r in enumerate(rd):
            fill.append(r)
            while di < nd and (di + 1) * nr <= (i + 1) * nd:
                fill.append(dm[di])
                di += 1
        fill += dm[di:]
        per = (len(fill) + len(mf) - 1) // len(mf)
        self._interleave(mf, fill, per=per)
        k.e(f"s_add_u32 s{self.s_nxt}, s{self.s_nxt}, {self.STAGE}")
        k.e(f"s_cmp_eq_u32 s{self.s_nxt}, {self.NSTAGE * self.STAGE}")
        k.e(f"s_cselect_b32 s{self.s_nxt}, 0, s{self.s_nxt}")
        if with_dma:
            k.e(f"s_waitcnt vmcnt({(self.LEAD - self.CERT) * self.D})")
        else:
            k.e("s_waitcnt vmcnt(0)")
        k.e("s_barrier")

    def loop(self):
        k = self.k
        if self.FULL:
            assert self.LEAD % 2 == 0
            k.e(f"s_sub_u32 s{self.s_cnt}, s{self.s_nt}, {self.LEAD}")
            L1 = k.label("main")
            k.place(L1)
            self._body_full(0, True)
            self._body_full(1, True)
            k.e(f"s_sub_u32 s{self.s_cnt}, s{self.s_cnt}, 2")
            k.e(f"s_cmp_lg_u32 s{self.s_cnt}, 0")
            k.e(f"s_cbranch_scc1 {L1}")
            k.e(f"s_mov_b32 s{self.s_cnt}, {self.LEAD}")
            L2 = k.label("tail")
            k.place(L2)
            self._body_full(0, False)
            self._body_full(1, False)
            k.e(f"s_sub_u32 s{self.s_cnt}, s{self.s_cnt}, 2")
            k.e(f"s_cmp_lg_u32 s{self.s_cnt}, 0")
            k.e(f"s_cbranch_scc1 {L2}")
            k.e("s_waitcnt lgkmcnt(0)")
            k.e("s_nop 15")
            return
        k.e(f"s_sub_u32 s{self.s_cnt}, s{self.s_nt}, {self.LEAD}")
        L1 = k.label("main")
        k.place(L1)
        self._body(True)
        k.e(f"s_sub_u32 s{self.s_cnt}, s{self.s_cnt}, 1")
        k.e(f"s_cmp_lg_u32 s{self.s_cnt}, 0")
        k.e(f"s_cbranch_scc1 {L1}")
        k.e(f"s_mov_b32 s{self.s_cnt}, {self.LEAD}")
        L2 = k.label("tail")
        k.place(L2)
        self._body(False)
        k.e(f"s_sub_u32 s{self.s_cnt}, s{self.s_cnt}, 1")
        k.e(f"s_cmp_lg_u32 s{self.s_cnt}, 0")
        k.e(f"s_cbranch_scc1 {L2}")
        k.e("s_waitcnt lgkmcnt(0)")
        k.e("s_nop 15")

    def epilogue(self):
        k = self.k
        save = k.vn
        k.vn = self.end_vn
        self.epi(k, self.G, self)
        k.vn = max(save, self.G.shared_v)


def run_chain(k, G, jobs):
    prev = None
    pg = getattr(G, "prof", None)
    for ji, (set_in, set_out, g) in enumerate(jobs):
        set_in()
        g.setup_dma()
        g.issue_prologue()
        extra = 0
        if prev is None and G.after_first is not None:
            extra = G.after_first()
        if prev is not None:
            prev.epilogue()
            extra = prev.nstores
        set_out()
        g.setup_rest()
        g.wait_prologue(extra)
        if pg:
            pg.stamp(2 * ji)
        g.loop()
        if pg:
            pg.stamp(2 * ji + 1)
        prev = g
    return prev


def lds_epi_setup(k, G, RB, row_stride_sreg=None, row_stride_shift=None):
    vl = G.v_lane
    vw, vrd, vgo, vt = k.v(), k.v(), k.v(), k.v()
    CPR = RB // 16
    RPI = 64 // CPR
    s0 = G.s_t0
    k.e(f"s_lshl_b32 s{s0}, s{G.s_wave}, 12")
    k.e(f"s_add_u32 s{s0}, s{s0}, {G.epi_base}")
    k.e(f"v_and_b32 v{vt}, 31, v{vl}")
    k.e(f"v_lshlrev_b32 v{vw}, {log2(RB)}, v{vt}")
    k.e(f"v_add_u32 v{vw}, s{s0}, v{vw}")
    k.e(f"v_and_b32 v{vt}, {CPR - 1}, v{vt}")
    k.e(f"v_lshrrev_b32 v{vrd}, 5, v{vl}")
    k.e(f"v_xor_b32 v{vt}, v{vt}, v{vrd}")
    k.e(f"v_lshl_add_u32 v{vw}, v{vt}, 4, v{vw}")
    k.e(f"v_lshrrev_b32 v{vt}, {log2(CPR)}, v{vl}")
    k.e(f"v_xor_b32 v{vrd}, v{vt}, v{vl}")
    k.e(f"v_and_b32 v{vrd}, {CPR - 1}, v{vrd}")
    k.e(f"v_lshlrev_b32 v{vrd}, 4, v{vrd}")
    k.e(f"v_lshl_add_u32 v{vrd}, v{vt}, {log2(RB)}, v{vrd}")
    k.e(f"v_add_u32 v{vrd}, s{s0}, v{vrd}")
    if row_stride_sreg is not None:
        k.e(f"v_mul_lo_u32 v{vgo}, v{vt}, s{row_stride_sreg}")
    else:
        k.e(f"v_lshlrev_b32 v{vgo}, {row_stride_shift}, v{vt}")
    k.e(f"v_and_b32 v{vt}, {CPR - 1}, v{vl}")
    k.e(f"v_lshl_add_u32 v{vgo}, v{vt}, 4, v{vgo}")
    return vw, vrd, vgo, vt


def epi_rowmajor(k, G, g):
    TM, TN = g.TM, g.TN
    acc = g.acc
    s0, s1 = G.s_t0, G.s_t1
    RB = TN * 64
    CPR = RB // 16
    RPI = 64 // CPR
    NQ = 32 // RPI
    k.c("---- epilogue row-major")
    vw, vrd, vgo, vt = lds_epi_setup(k, G, RB, row_stride_sreg=G.ldo)
    s2_ = k.s()
    k.e(f"s_mul_i32 s{s0}, s{g.s_wm}, {TM * 32}")
    k.e(f"s_mul_i32 s{s0}, s{s0}, s{G.ldo}")
    k.e(f"s_add_u32 s{s0}, s{s0}, s{G.obase}")
    k.e(f"s_mul_i32 s{s1}, s{g.s_wn}, {TN * 64}")
    k.e(f"s_add_u32 s{s0}, s{s0}, s{s1}")
    k.e(f"s_mul_i32 s{s1}, s{G.ldo}, {RPI}")
    for i in range(TM):
        for f in range(TN):
            a = acc[i][f]
            t = a
            for r in range(16):
                k.e(f"v_mul_f32 v{a + r}, s{G.scale}, v{a + r}")
            for j in range(8):
                k.e(f"v_cvt_pk_bf16_f32 v{t + j}, v{a + 2 * j}, v{a + 2 * j + 1}")
            k.e("s_nop 1")
            k.e(f"v_permlane32_swap_b32 v{t}, v{t + 2}")
            k.e(f"v_permlane32_swap_b32 v{t + 1}, v{t + 3}")
            k.e(f"v_permlane32_swap_b32 v{t + 4}, v{t + 6}")
            k.e(f"v_permlane32_swap_b32 v{t + 5}, v{t + 7}")
            for jj in range(2):
                c2 = 4 * f + 2 * jj
                if c2:
                    k.e(f"v_xor_b32 v{vt}, {c2 << 4}, v{vw}")
                    k.e(f"ds_write_b128 v{vt}, {vr(t + 4 * jj, 4)}")
                else:
                    k.e("s_nop 0")
                    k.e(f"ds_write_b128 v{vw}, {vr(t + 4 * jj, 4)}")
        k.e("s_waitcnt lgkmcnt(0)")
        dst = [acc[i][q // 2] + 8 + 4 * (q % 2) for q in range(NQ)]
        for q in range(NQ):
            k.e(f"ds_read_b128 {vr(dst[q], 4)}, v{vrd} offset:{q * RPI * RB}")
        for q in range(NQ):
            k.e(f"s_waitcnt lgkmcnt({NQ - 1 - q})")
            k.e(f"buffer_store_dwordx4 {vr(dst[q], 4)}, v{vgo}, {sr(G.sO, 4)}, s{s0} offen")
            k.e(f"s_add_u32 s{s0}, s{s0}, s{s1}")
    k.e("s_nop 1")
    k.sn -= 1


def make_epi_vt(KPB, FS, BS):
    def epi(k, G, g):
        TM, TN = g.TM, g.TN
        acc = g.acc
        s0, s1 = G.s_t0, G.s_t1
        RB = KPB * 2
        assert RB == FS
        CPR = RB // 16
        RPI = 64 // CPR
        NQ = 32 // RPI
        IPB = KPB // 32
        k.c("---- epilogue V^T")
        vw, vrd, vgo, vt = lds_epi_setup(k, G, RB, row_stride_shift=log2(FS))
        assert (TM * 32) % KPB == 0
        k.e(f"s_mul_i32 s{s0}, s{g.s_wm}, {TM * 32 // KPB * BS}")
        k.e(f"s_add_u32 s{s0}, s{s0}, s{G.obase}")
        k.e(f"s_mul_i32 s{s1}, s{g.s_wn}, {TN * 32 * FS}")
        k.e(f"s_add_u32 s{s0}, s{s0}, s{s1}")
        for f in range(TN):
            for blk in range(TM // IPB):
                for ii in range(IPB):
                    a = acc[blk * IPB + ii][f]
                    t = a
                    for j in range(8):
                        k.e(f"v_cvt_pk_bf16_f32 v{t + j}, v{a + 2 * j}, v{a + 2 * j + 1}")
                    for jj in range(2):
                        c2 = 4 * ii + 2 * jj
                        if c2:
                            k.e(f"v_xor_b32 v{vt}, {c2 << 4}, v{vw}")
                            k.e(f"ds_write_b128 v{vt}, {vr(t + 4 * jj, 4)}")
                        else:
                            k.e("s_nop 0")
                            k.e(f"ds_write_b128 v{vw}, {vr(t + 4 * jj, 4)}")
                k.e("s_waitcnt lgkmcnt(0)")
                dst = [acc[blk * IPB + q // 2][f] + 8 + 4 * (q % 2) for q in range(NQ)]
                for q in range(NQ):
                    k.e(f"ds_read_b128 {vr(dst[q], 4)}, v{vrd} offset:{q * RPI * RB}")
                for q in range(NQ):
                    k.e(f"s_add_u32 s{s1}, s{s0}, {blk * BS + f * 32 * FS + q * RPI * FS}")
                    k.e(f"s_waitcnt lgkmcnt({NQ - 1 - q})")
                    k.e(f"buffer_store_dwordx4 {vr(dst[q], 4)}, v{vgo}, {sr(G.sO, 4)}, s{s1} offen")
        k.e("s_nop 1")

    return epi


def kern_proj():
    k = K("proj_kernel")
    G = GemmCtx(k)
    G.epi_base = 128 * 1024
    pBX, pBWQ, pCKV, pWUK, pWUV, pAX, pAWQ, pAWK, pAWV, pWS = [k.s(2) for _ in range(10)]
    s_id, s_tm, s_tn, s_t = k.s(), k.s(), k.s(), k.s()
    Lend, Lkv = k.label("end"), k.label("kv")
    k.e("s_cmp_ge_u32 s2, 256")
    k.e(f"s_cbranch_scc1 {Lend}")
    for p, off in ((pBX, KA_BX), (pBWQ, KA_BWQ), (pCKV, KA_CKV), (pWUK, KA_WUK), (pWUV, KA_WUV), (pAX, KA_AX),
                   (pAWQ, KA_AWQ), (pAWK, KA_AWK), (pAWV, KA_AWV), (pWS, KA_WS)):
        load_ptr(k, p, off)
    G.init_ids()
    k.e(f"s_and_b32 s{s_id}, s2, 127")
    k.e(f"s_and_b32 s{s_tm}, s{s_id}, 1")
    k.e(f"s_lshl_b32 s{s_tm}, s{s_tm}, 2")
    k.e(f"s_bfe_u32 s{s_t}, s{s_id}, 0x20003")
    k.e(f"s_add_u32 s{s_tm}, s{s_tm}, s{s_t}")
    k.e(f"s_bfe_u32 s{s_tn}, s{s_id}, 0x20001")
    k.e(f"s_lshl_b32 s{s_tn}, s{s_tn}, 2")
    k.e(f"s_lshr_b32 s{s_t}, s{s_id}, 5")
    k.e(f"s_add_u32 s{s_tn}, s{s_tn}, s{s_t}")
    k.e("s_waitcnt lgkmcnt(0)")
    G.prof = Prof(k, 6)
    G.prof.start()
    G.prof.tot_start()

    def big_in(px, xsz, pw_, wsz, ldx, nt, tmshift):
        def f():
            make_srd(k, G.sX, px, 0, xsz)
            make_srd(k, G.sW, pw_, 0, wsz)
            k.e(f"s_mov_b32 s{G.ldx}, {ldx}")
            k.e(f"s_mov_b32 s{G.ldw}, 8192")
            k.e(f"s_mov_b32 s{G.nt}, {nt}")
            k.e(f"s_lshl_b32 s{G.tm_off}, s{s_tm}, {tmshift}")
            k.e(f"s_lshl_b32 s{G.tn_off}, s{s_tn}, 9")
        return f

    def big_out(wsoff, scale, fix):
        def f():
            make_srd(k, G.sO, pWS, wsoff, 16 * MB)
            k.e(f"s_mov_b32 s{G.scale}, {scale}")
            k.e(f"s_mov_b32 s{G.ldo}, 256")
            k.e(f"s_lshl_b32 s{G.obase}, s{s_tn}, 20")
            k.e(f"s_lshl_b32 s{s_t}, s{s_tm}, 16")
            k.e(f"s_add_u32 s{G.obase}, s{G.obase}, s{s_t}")
            k.e(f"s_lshr_b32 s{s_t}, s{G.s_wave}, 2")
            k.e(f"s_mul_i32 s{s_t}, s{s_t}, {fix}")
            k.e(f"s_add_u32 s{G.obase}, s{G.obase}, s{s_t}")
        return f

    def qa_in():
        make_srd(k, G.sX, pAX, 0, 2048 * 1024 * 2)
        make_srd(k, G.sW, pAWQ, 0, 1024 * 1024 * 2)
        k.e(f"s_mov_b32 s{G.ldx}, 2048")
        k.e(f"s_mov_b32 s{G.ldw}, 2048")
        k.e(f"s_mov_b32 s{G.nt}, 16")
        k.e(f"s_and_b32 s{s_t}, s2, 15")
        k.e(f"s_lshl_b32 s{G.tm_off}, s{s_t}, 18")
        k.e(f"s_lshr_b32 s{s_t}, s2, 4")
        k.e(f"s_lshl_b32 s{G.tn_off}, s{s_t}, 8")

    def qa_out():
        make_srd(k, G.sO, pWS, WS_QA, 4 * MB)
        k.e(f"s_mov_b32 s{G.scale}, {f32hex(CA)}")
        k.e(f"s_mov_b32 s{G.ldo}, 2048")
        k.e(f"s_add_u32 s{G.obase}, s{G.tm_off}, s{G.tn_off}")

    def kva_in(pw_):
        def f():
            make_srd(k, G.sX, pAX, 0, 2048 * 1024 * 2)
            make_srd(k, G.sW, pw_, 0, 1024 * 32 * 2)
            k.e(f"s_mov_b32 s{G.ldx}, 2048")
            k.e(f"s_mov_b32 s{G.ldw}, 64")
            k.e(f"s_mov_b32 s{G.nt}, 16")
            k.e(f"s_and_b32 s{s_t}, s2, 15")
            k.e(f"s_lshl_b32 s{G.tm_off}, s{s_t}, 18")
            k.e(f"s_mov_b32 s{G.tn_off}, 0")
        return f

    def kva_out(wsoff):
        def f():
            make_srd(k, G.sO, pWS, wsoff, 2048 * 64)
            k.e(f"s_mov_b32 s{G.scale}, 1.0")
            k.e(f"s_mov_b32 s{G.ldo}, 64")
            k.e(f"s_and_b32 s{s_t}, s2, 15")
            k.e(f"s_lshl_b32 s{G.obase}, s{s_t}, 13")
        return f

    sPF = k.s(4)

    def coop_prefetch():
        n = 0
        k.e(f"v_lshlrev_b32 v{G.vpfo}, 4, v0")
        for p, mb in ((pBX, 4), (pBWQ, 8), (pCKV, 2), (pWUK, 4), (pWUV, 4), (pAX, 4), (pAWQ, 2)):
            make_srd(k, sPF, p, 0, mb * MB)
            rounds = mb * MB // 256 // 8192
            k.e(f"s_mul_i32 s{s_t}, s2, {rounds * 8192}")
            for r in range(rounds):
                k.e(f"buffer_load_dwordx4 {vr(G.vpf, 4)}, v{G.vpfo}, {sr(sPF, 4)}, s{s_t} offen")
                k.e(f"s_add_u32 s{s_t}, s{s_t}, 8192")
                n += 1
        return n

    if PREFETCH:
        G.after_first = coop_prefetch
    BIG = (2, 4, 4, 2, 32, 4, True)
    MINI = (4, 2, 1, 2, 64, 4, True)
    MINI = (4, 2, 1, 2, 32, 5, 2)
    KVA = (4, 1, 1, 1, 64, 5, 2)
    save_s = k.sn

    k.e("s_cmp_ge_u32 s2, 128")
    k.e(f"s_cbranch_scc1 {Lkv}")

    def qa_in2():
        qa_in()
        k.e(f"s_mov_b32 s{G.nt}, 32")

    last = run_chain(k, G, [(big_in(pBX, 2048 * 1024 * 2, pBWQ, 1024 * 4096 * 2, 2048, 32, 19),
                             big_out(WS_QB, f32hex(CB), 524288 - 256), Gemm(G, *BIG, "T", epi_rowmajor)),
                            (qa_in2, qa_out, Gemm(G, *MINI, "T", epi_rowmajor))])
    last.epilogue()
    G.prof.tot_end()
    G.prof.dump(pWS, G.sX, G.vt[0], G.vt[1])
    k.e(f"s_branch {Lend}")
    k.place(Lkv)
    k.sn = save_s

    def v_out():
        make_srd(k, G.sO, pWS, WS_VB, 16 * MB)
        k.e(f"s_lshl_b32 s{G.obase}, s{s_tn}, 20")
        k.e(f"s_lshl_b32 s{s_t}, s{s_tm}, 16")
        k.e(f"s_add_u32 s{G.obase}, s{G.obase}, s{s_t}")
        k.e(f"s_lshr_b32 s{s_t}, s{G.s_wave}, 2")
        k.e(f"s_mul_i32 s{s_t}, s{s_t}, {524288 - 16384}")
        k.e(f"s_add_u32 s{G.obase}, s{G.obase}, s{s_t}")

    last = run_chain(k, G, [(big_in(pCKV, 2048 * 512 * 2, pWUK, 512 * 4096 * 2, 1024, 16, 18),
                             big_out(WS_KB, "1.0", 524288 - 256), Gemm(G, *BIG, "T", epi_rowmajor)),
                            (big_in(pCKV, 2048 * 512 * 2, pWUV, 512 * 4096 * 2, 1024, 16, 18),
                             v_out, Gemm(G, *BIG, "N", make_epi_vt(64, 128, 16384)))])
    last.epilogue()
    G.prof.tot_end()
    G.prof.dump(pWS, G.sX, G.vt[0], G.vt[1])
    G.prof = None
    G.after_first = None
    Lidle, Lv = k.label("idle"), k.label("va")
    k.e("s_cmp_ge_u32 s2, 160")
    k.e(f"s_cbranch_scc1 {Lend}")
    k.e(f"s_cmp_ge_u32 s{G.s_wave}, 4")
    k.e(f"s_cbranch_scc1 {Lidle}")
    k.e("s_cmp_ge_u32 s2, 144")
    k.e(f"s_cbranch_scc1 {Lv}")
    k.sn = save_s
    run_chain(k, G, [(kva_in(pAWK), kva_out(WS_KA), Gemm(G, *KVA, "T", epi_rowmajor))]).epilogue()
    k.e(f"s_branch {Lend}")
    k.place(Lv)
    k.sn = save_s
    run_chain(k, G, [(kva_in(pAWV), kva_out(WS_VA), Gemm(G, *KVA, "N", make_epi_vt(32, 64, 2048)))]).epilogue()
    k.e(f"s_branch {Lend}")
    k.place(Lidle)
    k.e(f"s_mov_b32 s{s_t}, 17")
    Lb = k.label("idlel")
    k.place(Lb)
    k.e("s_barrier")
    k.e(f"s_sub_u32 s{s_t}, s{s_t}, 1")
    k.e(f"s_cmp_lg_u32 s{s_t}, 0")
    k.e(f"s_cbranch_scc1 {Lb}")
    k.place(Lend)
    k.e("s_endpgm")
    return k


def kern_out():
    k = K("outp_kernel")
    G = GemmCtx(k)
    G.epi_base = 0
    G.kxstep = 16384
    pWS, pOUT, pBWO, pAWO = [k.s(2) for _ in range(4)]
    s_tm, s_tn, s_t, s_id = k.s(), k.s(), k.s(), k.s()
    Lend, La = k.label("end"), k.label("a")
    k.e("s_cmp_ge_u32 s2, 256")
    k.e(f"s_cbranch_scc1 {Lend}")
    for p, off in ((pWS, KA_WS), (pOUT, KA_OUT), (pBWO, KA_BWO), (pAWO, KA_AWO)):
        load_ptr(k, p, off)
    G.init_ids()
    k.e(f"s_and_b32 s{s_id}, s2, 127")
    k.e(f"s_and_b32 s{s_tm}, s{s_id}, 3")
    k.e(f"s_lshl_b32 s{s_tm}, s{s_tm}, 2")
    k.e(f"s_bfe_u32 s{s_t}, s{s_id}, 0x20003")
    k.e(f"s_add_u32 s{s_tm}, s{s_tm}, s{s_t}")
    k.e(f"s_bfe_u32 s{s_tn}, s{s_id}, 0x10002")
    k.e(f"s_lshl_b32 s{s_tn}, s{s_tn}, 2")
    k.e(f"s_lshr_b32 s{s_t}, s{s_id}, 5")
    k.e(f"s_add_u32 s{s_tn}, s{s_tn}, s{s_t}")
    k.e("s_waitcnt lgkmcnt(0)")
    G.prof = Prof(k, 6)
    G.prof.start()
    G.prof.tot_start()

    def j_in(wsoff, xsz, pw_, wsz, ldx, nt, sh):
        def f():
            make_srd(k, G.sX, pWS, wsoff, xsz)
            make_srd(k, G.sW, pw_, 0, wsz)
            k.e(f"s_mov_b32 s{G.ldx}, {ldx}")
            k.e(f"s_mov_b32 s{G.ldw}, 2048")
            k.e(f"s_mov_b32 s{G.nt}, {nt}")
            k.e(f"s_lshl_b32 s{G.tm_off}, s{s_tm}, {sh}")
            k.e(f"s_lshl_b32 s{G.tn_off}, s{s_tn}, 8")
        return f

    def j_out(col):
        def f():
            make_srd(k, G.sO, pOUT, 0, 2048 * 2048 * 2)
            k.e(f"s_mov_b32 s{G.scale}, 1.0")
            k.e(f"s_mov_b32 s{G.ldo}, 4096")
            k.e(f"s_lshl_b32 s{G.obase}, s{s_tm}, 19")
            k.e(f"s_lshl_b32 s{s_t}, s{s_tn}, 8")
            k.e(f"s_add_u32 s{G.obase}, s{G.obase}, s{s_t}")
            if col:
                k.e(f"s_add_u32 s{G.obase}, s{G.obase}, {col}")
        return f

    CFG = (2, 2, 2, 2, 64, 5, 2)
    Lgo = k.label("go")
    k.e("s_cmp_ge_u32 s2, 128")
    k.e(f"s_cbranch_scc1 {La}")
    j_in(WS_CTX, 16 * MB, pBWO, 4096 * 1024 * 2, 128, 64, 20)()
    j_out(2048)()
    k.e(f"s_branch {Lgo}")
    k.place(La)
    j_in(WS_OA, 4 * MB, pAWO, 1024 * 1024 * 2, 128, 16, 18)()
    j_out(0)()
    k.place(Lgo)
    nop = lambda: None
    last = run_chain(k, G, [(nop, nop, Gemm(G, *CFG, "T", epi_rowmajor))])
    last.epilogue()
    G.prof.tot_end()
    G.prof.dump(pWS, G.sX, G.vt[0], G.vt[1])
    k.place(Lend)
    k.e("s_endpgm")
    return k


WS_PART = 96 * MB
N1_OUT = 44


def kern_out_split():
    k = K("outp_kernel")
    G = GemmCtx(k)
    G.epi_base = 0
    G.kxstep = 16384
    pWS, pOUT, pBWO, pAWO, pDBG = [k.s(2) for _ in range(5)]
    s_tm, s_tn, s_t, s_id = k.s(), k.s(), k.s(), k.s()
    sP, sD = k.s(4), k.s(4)
    Lend, Lc = k.label("end"), k.label("cons")
    k.e("s_cmp_ge_u32 s2, 256")
    k.e(f"s_cbranch_scc1 {Lend}")
    for p, off in ((pWS, KA_WS), (pOUT, KA_OUT), (pBWO, KA_BWO), (pAWO, KA_AWO), (pDBG, KA_DBG)):
        load_ptr(k, p, off)
    G.init_ids()
    k.e(f"s_and_b32 s{s_id}, s2, 127")
    k.e(f"s_and_b32 s{s_tm}, s{s_id}, 3")
    k.e(f"s_lshl_b32 s{s_tm}, s{s_tm}, 2")
    k.e(f"s_bfe_u32 s{s_t}, s{s_id}, 0x20003")
    k.e(f"s_add_u32 s{s_tm}, s{s_tm}, s{s_t}")
    k.e(f"s_bfe_u32 s{s_tn}, s{s_id}, 0x10002")
    k.e(f"s_lshl_b32 s{s_tn}, s{s_tn}, 2")
    k.e(f"s_lshr_b32 s{s_t}, s{s_id}, 5")
    k.e(f"s_add_u32 s{s_tn}, s{s_tn}, s{s_t}")
    k.e("s_waitcnt lgkmcnt(0)")
    make_srd(k, sP, pWS, WS_PART, 8 * MB)
    make_srd(k, sD, pDBG, 0, 256)
    G.prof = Prof(k, 6)
    G.prof.start()
    G.prof.tot_start()

    def j_in(wsoff, xsz, pw_, wsz, nt, sh):
        def f():
            make_srd(k, G.sX, pWS, wsoff, xsz)
            make_srd(k, G.sW, pw_, 0, wsz)
            k.e(f"s_mov_b32 s{G.ldx}, 128")
            k.e(f"s_mov_b32 s{G.ldw}, 2048")
            k.e(f"s_mov_b32 s{G.nt}, {nt}")
            k.e(f"s_lshl_b32 s{G.tm_off}, s{s_tm}, {sh}")
            k.e(f"s_lshl_b32 s{G.tn_off}, s{s_tn}, 8")
        return f

    def j_out(col):
        def f():
            make_srd(k, G.sO, pOUT, 0, 2048 * 2048 * 2)
            k.e(f"s_mov_b32 s{G.scale}, 1.0")
            k.e(f"s_mov_b32 s{G.ldo}, 4096")
            k.e(f"s_lshl_b32 s{G.obase}, s{s_tm}, 19")
            k.e(f"s_lshl_b32 s{s_t}, s{s_tn}, 8")
            k.e(f"s_add_u32 s{G.obase}, s{G.obase}, s{s_t}")
            if col:
                k.e(f"s_add_u32 s{G.obase}, s{G.obase}, {col}")
        return f

    def part_addr(k, G):
        vo = k.v()
        k.e(f"v_lshlrev_b32 v{vo}, 4, v{G.v_lane}")
        k.e(f"s_lshl_b32 s{G.s_t0}, s{s_id}, 16")
        k.e(f"s_lshl_b32 s{G.s_t1}, s{G.s_wave}, 14")
        k.e(f"s_add_u32 s{G.s_t0}, s{G.s_t0}, s{G.s_t1}")
        return vo

    def flag_regs(k):
        vf, vb = k.v(), k.v()
        k.e(f"s_lshr_b32 s{G.s_t1}, s{s_id}, 1")
        k.e(f"s_lshl_b32 s{G.s_t1}, s{G.s_t1}, 2")
        k.e(f"v_mov_b32 v{vf}, s{G.s_t1}")
        k.e(f"s_and_b32 s{G.s_t1}, s{s_id}, 1")
        k.e(f"s_lshl_b32 s{G.s_t1}, s{G.s_t1}, 4")
        k.e(f"s_lshl_b32 s{G.s_t1}, 1, s{G.s_t1}")
        k.e(f"v_mov_b32 v{vb}, s{G.s_t1}")
        return vf, vb

    def epi_partial(k, G, g):
        vo = part_addr(k, G)
        n = 0
        for i in range(g.TM):
            for f in range(g.TN):
                for q in range(4):
                    k.e(f"buffer_store_dwordx4 {vr(g.acc[i][f] + 4 * q, 4)}, v{vo}, {sr(sP, 4)}, s{G.s_t0} offen offset:{q * 1024} sc1")
                k.e(f"s_add_u32 s{G.s_t0}, s{G.s_t0}, 4096")
        k.e("s_waitcnt vmcnt(0)")
        k.e("s_barrier")
        vf, vb = flag_regs(k)
        Ls = k.label("noflag")
        k.e(f"s_cmp_lg_u32 s{G.s_wave}, 0")
        k.e(f"s_cbranch_scc1 {Ls}")
        k.e("s_mov_b64 exec, 1")
        k.e(f"buffer_atomic_or v{vb}, v{vf}, {sr(sD, 4)}, 0 offen")
        k.e("s_mov_b64 exec, -1")
        k.place(Ls)

    def epi_final(k, G, g):
        vf, vb = flag_regs(k)
        vr_ = k.v()
        Lp, Lok = k.label("poll"), k.label("ok")
        k.e(f"s_mov_b32 s{G.s_t0}, 0x400000")
        k.place(Lp)
        k.e(f"buffer_load_dword v{vr_}, v{vf}, {sr(sD, 4)}, 0 offen sc1")
        k.e("s_waitcnt vmcnt(0)")
        k.e(f"v_and_b32 v{vr_}, v{vr_}, v{vb}")
        k.e(f"v_cmp_ne_u32 vcc, 0, v{vr_}")
        k.e(f"s_cbranch_vccnz {Lok}")
        k.e("s_sleep 2")
        k.e(f"s_sub_u32 s{G.s_t0}, s{G.s_t0}, 1")
        k.e(f"s_cmp_lg_u32 s{G.s_t0}, 0")
        k.e(f"s_cbranch_scc1 {Lp}")
        k.place(Lok)
        k.e("s_barrier")
        vo = part_addr(k, G)
        tmp = g.fx[0][0]
        frag = [r for st in g.fx for r in st] + [r for st in g.fw for r in st]
        idx = 0
        loads = []
        for i in range(g.TM):
            for f in range(g.TN):
                for q in range(4):
                    d = frag[idx]
                    idx += 1
                    k.e(f"buffer_load_dwordx4 {vr(d, 4)}, v{vo}, {sr(sP, 4)}, s{G.s_t0} offen offset:{q * 1024} sc1")
                    loads.append((g.acc[i][f] + 4 * q, d))
                k.e(f"s_add_u32 s{G.s_t0}, s{G.s_t0}, 4096")
        for n, (a, d) in enumerate(loads):
            k.e(f"s_waitcnt vmcnt({len(loads) - 1 - n})")
            for r in range(4):
                k.e(f"v_add_f32 v{a + r}, v{a + r}, v{d + r}")
        epi_rowmajor(k, G, g)

    CFG = (2, 2, 2, 2, 64, 5, 2)
    k.e("s_cmp_ge_u32 s2, 128")
    k.e(f"s_cbranch_scc1 {Lc}")
    g1 = Gemm(G, *CFG, "T", epi_partial)
    g1.kx0, g1.kw0 = N1_OUT * 16384, N1_OUT * 64 * 2048
    g1.nstores = 0
    last = run_chain(k, G, [
        (j_in(WS_CTX, 16 * MB, pBWO, 4096 * 1024 * 2, 64 - N1_OUT, 20), lambda: None, g1),
        (j_in(WS_OA, 4 * MB, pAWO, 1024 * 1024 * 2, 16, 18), j_out(0), Gemm(G, *CFG, "T", epi_rowmajor)),
    ])
    last.epilogue()
    G.prof.tot_end()
    G.prof.dump(pWS, G.sX, G.vt[0], G.vt[1])
    k.e(f"s_branch {Lend}")
    k.place(Lc)
    last = run_chain(k, G, [
        (j_in(WS_CTX, 16 * MB, pBWO, 4096 * 1024 * 2, N1_OUT, 20), j_out(2048), Gemm(G, *CFG, "T", epi_final)),
    ])
    last.epilogue()
    G.prof.tot_end()
    G.prof.dump(pWS, G.sX, G.vt[0], G.vt[1])
    k.place(Lend)
    k.e("s_endpgm")
    return k


def kern_out_full(nw):
    k = K("outp_kernel")
    G = GemmCtx(k)
    G.epi_base = 120 * 1024
    G.kxstep = 16384
    pWS, pOUT, pBWO, pAWO = [k.s(2) for _ in range(4)]
    s_tm, s_tn, s_t = k.s(), k.s(), k.s()
    Lend = k.label("end")
    k.e("s_cmp_ge_u32 s2, 256")
    k.e(f"s_cbranch_scc1 {Lend}")
    for p, off in ((pWS, KA_WS), (pOUT, KA_OUT), (pBWO, KA_BWO), (pAWO, KA_AWO)):
        load_ptr(k, p, off)
    G.init_ids()
    k.e(f"s_and_b32 s{s_tm}, s2, 3")
    k.e(f"s_lshl_b32 s{s_tm}, s{s_tm}, 2")
    k.e(f"s_bfe_u32 s{s_t}, s2, 0x20003")
    k.e(f"s_add_u32 s{s_tm}, s{s_tm}, s{s_t}")
    k.e(f"s_bfe_u32 s{s_tn}, s2, 0x10002")
    k.e(f"s_lshl_b32 s{s_tn}, s{s_tn}, 3")
    k.e(f"s_lshr_b32 s{s_t}, s2, 5")
    k.e(f"s_add_u32 s{s_tn}, s{s_tn}, s{s_t}")
    k.e("s_waitcnt lgkmcnt(0)")
    G.prof = Prof(k, 6)
    G.prof.start()
    G.prof.tot_start()

    def j_in(wsoff, xsz, pw_, wsz, ldx, nt, sh):
        def f():
            make_srd(k, G.sX, pWS, wsoff, xsz)
            make_srd(k, G.sW, pw_, 0, wsz)
            k.e(f"s_mov_b32 s{G.ldx}, {ldx}")
            k.e(f"s_mov_b32 s{G.ldw}, 2048")
            k.e(f"s_mov_b32 s{G.nt}, {nt}")
            k.e(f"s_lshl_b32 s{G.tm_off}, s{s_tm}, {sh}")
            k.e(f"s_lshl_b32 s{G.tn_off}, s{s_tn}, 7")
        return f

    def j_out(col):
        def f():
            make_srd(k, G.sO, pOUT, 0, 2048 * 2048 * 2)
            k.e(f"s_mov_b32 s{G.scale}, 1.0")
            k.e(f"s_mov_b32 s{G.ldo}, 4096")
            k.e(f"s_lshl_b32 s{G.obase}, s{s_tm}, 19")
            k.e(f"s_lshl_b32 s{s_t}, s{s_tn}, 7")
            k.e(f"s_add_u32 s{G.obase}, s{G.obase}, s{s_t}")
            if col:
                k.e(f"s_add_u32 s{G.obase}, s{G.obase}, {col}")
        return f

    CFG = (4, 2, 1, 1, 64, 5, 2) if nw == 8 else (2, 2, 2, 1, 64, 5, 2)
    last = run_chain(k, G, [
        (j_in(WS_CTX, 16 * MB, pBWO, 4096 * 1024 * 2, 128, 64, 20), j_out(2048), Gemm(G, *CFG, "T", epi_rowmajor)),
        (j_in(WS_OA, 4 * MB, pAWO, 1024 * 1024 * 2, 128, 16, 18), j_out(0), Gemm(G, *CFG, "T", epi_rowmajor)),
    ])
    last.epilogue()
    G.prof.tot_end()
    G.prof.dump(pWS, G.sX, G.vt[0], G.vt[1])
    k.place(Lend)
    k.e("s_endpgm")
    return k


NEG_INF = "0xff800000"
NWG_A = 512
CB = math.log2(math.e) / math.sqrt(128.0)
CA = math.log2(math.e) / math.sqrt(32.0)
THR = float(os.environ.get("THR", "32"))


def f32hex(x):
    import struct

    return "0x%08x" % struct.unpack("<I", struct.pack("<f", x))[0]


def weave(k, main, fills):
    for ln in fills.get(-1, []):
        k.e(ln)
    for i, m in enumerate(main):
        k.e(m)
        for ln in fills.get(i, []):
            k.e(ln)


def max_tree(S, n, vt):
    out = [f"v_max3_f32 v{vt}, v{S}, v{S + 1}, v{S + 2}"]
    i = 3
    while i + 1 < n:
        out.append(f"v_max3_f32 v{vt}, v{vt}, v{S + i}, v{S + i + 1}")
        i += 2
    if i < n:
        out.append(f"v_max_f32 v{vt}, v{vt}, v{S + i}")
    return out


def xhalf_max(k, vt0, vt1):
    k.e(f"v_mov_b32 v{vt1}, v{vt0}")
    k.e("s_nop 1")
    k.e(f"v_permlane32_swap_b32 v{vt0}, v{vt1}")
    k.e("s_nop 1")
    k.e(f"v_max_f32 v{vt0}, v{vt0}, v{vt1}")


def first_tile_norm(k, S, CI, vt0, vt1):
    for ln in max_tree(S, 32, vt0):
        k.e(ln)
    xhalf_max(k, vt0, vt1)
    for r in range(32):
        k.e(f"v_sub_f32 v{S + r}, v{S + r}, v{vt0}")
    k.e(f"v_sub_f32 v{vt1}, 0, v{vt0}")
    for r in range(16):
        k.e(f"v_mov_b32 v{CI + r}, v{vt1}")


def check_rescale(k, Sn, CI, O, nO, lacc, vt0, vt1, lsum_mfma=False):
    xhalf_max(k, vt0, vt1)
    k.e(f"v_cmp_lt_f32 vcc, {THR}, v{vt0}") if THR in (0.5, 1.0, 2.0, 4.0) else k.e(
        f"v_cmp_lt_f32 vcc, {f32hex(THR)}, v{vt0}")
    Ls = k.label("nors")
    k.e(f"s_cbranch_vccz {Ls}")
    k.e(f"v_max_f32 v{vt0}, 0, v{vt0}")
    k.e(f"v_sub_f32 v{vt1}, 0, v{vt0}")
    k.e(f"v_exp_f32 v{vt1}, v{vt1}")
    for r in range(32):
        k.e(f"v_sub_f32 v{Sn + r}, v{Sn + r}, v{vt0}")
    for r in range(16):
        k.e(f"v_sub_f32 v{CI + r}, v{CI + r}, v{vt0}")
    k.e("s_nop 7")
    k.e(f"v_mul_f32 v{lacc}, v{lacc}, v{vt1}")
    if not lsum_mfma:
        k.e(f"v_mul_f32 v{lacc + 1}, v{lacc + 1}, v{vt1}")
    for r in range(nO):
        k.e(f"v_mul_f32 v{O + r}, v{O + r}, v{vt1}")
    k.e("s_nop 1")
    k.place(Ls)


def finish_store(k, O, ntile, lacc, vt0, vt1, vo, srd, soff, lsum_mfma=False, s_bad=None, lowchk=False, soff2=None):
    def chk(v):
        if s_bad is None:
            return
        k.e(f"v_mov_b32 v{vt1}, {f32hex(LSAFE)}")
        k.e(f"v_cmp_nlt_f32 vcc, v{v}, v{vt1}")
        k.e("s_nop 1")
        k.e(f"s_or_b32 s{s_bad}, s{s_bad}, vcc_lo")
        k.e(f"s_or_b32 s{s_bad}, s{s_bad}, vcc_hi")
        if lowchk:
            k.e(f"v_mov_b32 v{vt1}, {f32hex(2.0 ** -60)}")
            k.e(f"v_cmp_ngt_f32 vcc, v{v}, v{vt1}")
            k.e("s_nop 1")
            k.e(f"s_or_b32 s{s_bad}, s{s_bad}, vcc_lo")
            k.e(f"s_or_b32 s{s_bad}, s{s_bad}, vcc_hi")

    if lsum_mfma:
        chk(lacc)
        k.e(f"v_rcp_f32 v{vt0}, v{lacc}")
    else:
        k.e(f"v_add_f32 v{vt0}, v{lacc}, v{lacc + 1}")
        k.e(f"v_mov_b32 v{vt1}, v{vt0}")
        k.e("s_nop 1")
        k.e(f"v_permlane32_swap_b32 v{vt0}, v{vt1}")
        k.e("s_nop 1")
        k.e(f"v_add_f32 v{vt0}, v{vt0}, v{vt1}")
        chk(vt0)
        k.e(f"v_rcp_f32 v{vt0}, v{vt0}")
    k.e("s_nop 0")
    for dt in range(ntile):
        a = O + 16 * dt
        tt = a
        for r in range(16):
            k.e(f"v_mul_f32 v{a + r}, v{a + r}, v{vt0}")
        for j in range(8):
            k.e(f"v_cvt_pk_bf16_f32 v{tt + j}, v{a + 2 * j}, v{a + 2 * j + 1}")
        k.e("s_nop 1")
        k.e(f"v_permlane32_swap_b32 v{tt}, v{tt + 2}")
        k.e(f"v_permlane32_swap_b32 v{tt + 1}, v{tt + 3}")
        k.e(f"v_permlane32_swap_b32 v{tt + 4}, v{tt + 6}")
        k.e(f"v_permlane32_swap_b32 v{tt + 5}, v{tt + 7}")
        k.e("s_nop 1")
        so = soff if dt < 2 else soff2
        k.e(f"buffer_store_dwordx4 {vr(tt, 4)}, v{vo}, {sr(srd, 4)}, s{so} offen offset:{(dt & 1) * 64}")
        k.e(f"buffer_store_dwordx4 {vr(tt + 4, 4)}, v{vo}, {sr(srd, 4)}, s{so} offen offset:{(dt & 1) * 64 + 32}")
    k.e("s_nop 1")


KT = 16640
ABASE = 4 * KT
VOTE_OFF = 0
ATTN_LDS = ABASE + 3 * 16384
FASTMAX = int(os.environ.get("FASTMAX", "1"))
AONES = int(os.environ.get("AONES", "0"))
PREFETCH = int(os.environ.get("PREFETCH", "1"))
LSAFE = float(os.environ.get("LSAFE", str(2.0 ** 100)))


def kern_attn():
    k = K("attn_kernel")
    Lend = k.label("end")
    k.e("s_cmp_ge_u32 s2, 256")
    k.e(f"s_cbranch_scc1 {Lend}")
    pw = k.s(2)
    load_ptr(k, pw, KA_WS)
    pf0, pf1 = k.s(2), k.s(2)
    load_ptr(k, pf0, KA_BWO)
    load_ptr(k, pf1, KA_AWO)
    sQ, sK, sV, sO = k.s(4), k.s(4), k.s(4), k.s(4)
    s_wave = k.s()
    s_t0, s_t1 = k.s(), k.s()
    s_pass = k.s()
    s_wave0, s_bad = k.s(), k.s()
    v_lane, vt0, vt1, vt2 = k.v(), k.v(), k.v(), k.v()
    k.e(f"v_and_b32 v{v_lane}, 63, v0")
    k.e(f"v_lshrrev_b32 v{vt0}, 6, v0")
    k.e("s_nop 0")
    k.e(f"v_readfirstlane_b32 s{s_wave0}, v{vt0}")
    k.e(f"s_mov_b32 s{s_bad}, 0")
    k.e("s_waitcnt lgkmcnt(0)")
    save_v, save_s = k.vn, k.sn
    AST = 16384

    def role_b(fast, Ldone):
        if PRIO < 0:
            k.e(f"s_setprio {-PRIO}")
        k.e(f"s_mov_b32 s{s_wave}, s{s_wave0}")
        make_srd(k, sQ, pw, WS_QB, 16 * MB)
        make_srd(k, sK, pw, WS_KB, 16 * MB)
        make_srd(k, sV, pw, WS_VB, 16 * MB)
        make_srd(k, sO, pw, WS_CTX, 16 * MB)
        s_head, s_qb, s_q0, s_nt, s_kt, s_koff, s_voff, s_mdst = [k.s() for _ in range(8)]
        sm = [k.s(2) for _ in range(4)]
        pr = Prof(k, 6)
        pr.tot_start()
        k.e(f"s_and_b32 s{s_head}, s2, 31")
        k.e(f"s_lshr_b32 s{s_qb}, s2, 5")
        k.e(f"s_sub_u32 s{s_qb}, 15, s{s_qb}")
        Q = k.v(32, 4)
        O = k.v(64, 4)
        SS = [k.v(32, 4), k.v(32, 4)]
        P = k.v(16, 4)
        CI = k.v(16, 4)
        F = [k.v(4, 4) for _ in range(8)]
        lacc = k.v(2, 2)
        vq, vh4, vdiff = k.v(), k.v(), k.v()
        vdk, vdv, ak, avh = k.v(), k.v(), k.v(), k.v()
        k.e(f"v_lshrrev_b32 v{vt2}, 5, v{v_lane}")
        k.e(f"v_lshlrev_b32 v{vh4}, 2, v{vt2}")
        k.e(f"v_lshrrev_b32 v{vt0}, 4, v{v_lane}")
        k.e(f"v_lshlrev_b32 v{vt0}, 12, v{vt0}")
        k.e(f"v_and_b32 v{vt1}, 15, v{v_lane}")
        k.e(f"v_lshl_add_u32 v{vt0}, v{vt1}, 4, v{vt0}")
        k.e(f"s_lshl_b32 s{s_t0}, s{s_wave}, 10")
        k.e(f"v_add_u32 v{vdk}, s{s_t0}, v{vt0}")
        k.e(f"v_lshrrev_b32 v{vt0}, 4, v{v_lane}")
        k.e(f"v_lshlrev_b32 v{vt0}, 4, v{vt0}")
        k.e(f"v_bfe_u32 v{vt1}, v{v_lane}, 3, 1")
        k.e(f"v_lshl_add_u32 v{vt0}, v{vt1}, 6, v{vt0}")
        k.e(f"s_lshl_b32 s{s_t0}, s{s_wave}, 2")
        k.e(f"v_lshlrev_b32 v{vt1}, 3, v{vt1}")
        k.e(f"v_add_u32 v{vt1}, s{s_t0}, v{vt1}")
        k.e(f"v_and_b32 v{vt1}, 15, v{vt1}")
        k.e(f"v_add_u32 v{vt0}, v{vt0}, v{vt1}")
        k.e(f"v_lshlrev_b32 v{vt0}, 7, v{vt0}")
        k.e(f"v_and_b32 v{vt1}, 7, v{v_lane}")
        k.e(f"v_lshl_add_u32 v{vdv}, v{vt1}, 4, v{vt0}")
        k.e(f"v_and_b32 v{vt0}, 15, v{v_lane}")
        k.e(f"v_mul_u32_u24 v{vt1}, 1040, v{vt0}")
        k.e(f"v_bfe_u32 v{vt2}, v{v_lane}, 4, 1")
        k.e(f"v_lshlrev_b32 v{vt2}, 8, v{vt2}")
        k.e(f"v_lshl_add_u32 v{vt2}, v{vh4}, 2, v{vt2}")
        k.e(f"v_add_u32 v{ak}, v{vt1}, v{vt2}")
        k.e(f"v_add_u32 v{vt0}, 8, v{vt0}")
        k.e(f"v_and_b32 v{vt0}, 15, v{vt0}")
        k.e(f"v_mul_u32_u24 v{vt1}, 1040, v{vt0}")
        k.e(f"v_add_u32 v{vt1}, {2 * KT + 128}, v{vt1}")
        k.e(f"v_add_u32 v{avh}, v{vt1}, v{vt2}")
        k.e(f"s_mul_i32 s{s_mdst}, s{s_wave}, {4 * 1040}")

        def dmaK(st):
            out = []
            for jj in range(4):
                out.append([f"s_add_u32 m0, s{s_mdst}, {st * KT + jj * 1040 - jj * 256}", "s_nop 0",
                            f"buffer_load_dwordx4 v{vdk}, {sr(sK, 4)}, s{s_koff} offen offset:{jj * 256} lds"])
            out[-1].append(f"s_add_u32 s{s_koff}, s{s_koff}, 16384")
            return out

        def dmaV(st):
            out = []
            for jj in range(4):
                out.append([f"s_add_u32 m0, s{s_mdst}, {(2 + st) * KT + jj * 1040 - jj * 128}", "s_nop 0",
                            f"buffer_load_dwordx4 v{vdv}, {sr(sV, 4)}, s{s_voff} offen offset:{jj * 128} lds"])
            out[-1].append(f"s_add_u32 s{s_voff}, s{s_voff}, 16384")
            return out

        def block_loads():
            k.e(f"s_lshl_b32 s{s_q0}, s{s_qb}, 7")
            k.e(f"s_lshl_b32 s{s_t0}, s{s_wave}, 5")
            k.e(f"s_add_u32 s{s_q0}, s{s_q0}, s{s_t0}")
            k.e(f"s_lshl_b32 s{s_koff}, s{s_head}, 19")
            k.e(f"s_mov_b32 s{s_voff}, s{s_koff}")
            k.e(f"v_and_b32 v{vt0}, 31, v{v_lane}")
            k.e(f"v_add_u32 v{vt0}, s{s_q0}, v{vt0}")
            k.e(f"v_lshlrev_b32 v{vt1}, 8, v{vt0}")
            k.e(f"v_lshl_add_u32 v{vt1}, v{vh4}, 2, v{vt1}")
            for ds in range(8):
                k.e(f"buffer_load_dwordx4 {vr(Q + 4 * ds, 4)}, v{vt1}, {sr(sQ, 4)}, s{s_koff} offen offset:{ds * 32}")
            for g in dmaK(0) + dmaK(1) + dmaV(0):
                for ln in g:
                    k.e(ln)

        def kread(n, st):
            kk, ds = n // 8, n % 8
            return f"ds_read_b128 {vr(F[n % 8], 4)}, v{ak} offset:{st * KT + kk * 512 + ds * 32}"

        vseq = [(dt, g) for g in range(4) for dt in range(4)]

        def vread(n, st):
            dt, g = vseq[n]
            if dt < 2:
                return f"ds_read_b128 {vr(F[n % 8], 4)}, v{ak} offset:{(2 + st) * KT + dt * 512 + g * 32}"
            return f"ds_read_b128 {vr(F[n % 8], 4)}, v{avh} offset:{st * KT + (dt - 2) * 512 + g * 32}"

        def qk_mfma(n, Sd, cinit):
            kk, ds = n // 8, n % 8
            cin = cinit if ds == 0 else vr(Sd + 16 * kk, 16)
            return f"v_mfma_f32_32x32x16_bf16 {vr(Sd + 16 * kk, 16)}, {vr(F[n % 8], 4)}, {vr(Q + 4 * ds, 4)}, {cin}"

        def pv_mfma(n):
            dt, g = vseq[n]
            return f"v_mfma_f32_32x32x16_bf16 {vr(O + 16 * dt, 16)}, {vr(F[n % 8], 4)}, {vr(P + 4 * g, 4)}, {vr(O + 16 * dt, 16)}"

        def mask_ops(Sn):
            out = [f"v_subrev_u32 v{vdiff}, s{s_t1}, v{vq}", f"v_sub_u32 v{vdiff}, v{vdiff}, v{vh4}",
                   f"v_mov_b32 v{vt2}, {NEG_INF}"]
            for q in range(8):
                for j in range(4):
                    r = 4 * q + j
                    cst = 32 * (r >> 4) + 8 * ((r & 15) >> 2) + (r & 3)
                    out.append(f"v_cmp_gt_i32 {sr(sm[j], 2)}, {cst}, v{vdiff}")
                for j in range(4):
                    r = 4 * q + j
                    out.append(f"v_cndmask_b32 v{Sn + r}, v{Sn + r}, v{vt2}, {sr(sm[j], 2)}")
            return out

        def phase_qk(Sn, stK, Sc, cinit, dm=()):
            dm = list(dm)
            for n in range(8):
                k.e(kread(n, stK))
            for n in range(16):
                if n % 4 == 0:
                    k.e("s_waitcnt lgkmcnt(4)" if n < 12 else "s_waitcnt lgkmcnt(0)")
                k.e(qk_mfma(n, Sn, cinit))
                if n % 4 == 3 and n + 5 < 16:
                    for m in range(n + 5, n + 9):
                        k.e(kread(m, stK))
                if n % 4 != 3 and dm:
                    for ln in dm.pop(0):
                        k.e(ln)
                if Sc is not None:
                    k.e(f"v_exp_f32 v{Sc + 2 * n}, v{Sc + 2 * n}")
                    k.e(f"v_exp_f32 v{Sc + 2 * n + 1}, v{Sc + 2 * n + 1}")
                    if n > 0:
                        k.e(f"v_cvt_pk_bf16_f32 v{P + n - 1}, v{Sc + 2 * n - 2}, v{Sc + 2 * n - 1}")
            if Sc is not None:
                k.e(f"v_cvt_pk_bf16_f32 v{P + 15}, v{Sc + 30}, v{Sc + 31}")

        def phase_pv(Sc, stV, Sn, masked):
            for n in range(8):
                k.e(vread(n, stV))
            mt = max_tree(Sn, 32, vt0) if (Sn is not None and not fast) else []
            mk = mask_ops(Sn) if masked else []
            for n in range(16):
                if n % 4 == 0:
                    k.e("s_waitcnt lgkmcnt(4)" if n < 12 else "s_waitcnt lgkmcnt(0)")
                k.e(pv_mfma(n))
                if n % 4 == 3 and n + 5 < 16:
                    for m in range(n + 5, n + 9):
                        k.e(vread(m, stV))
                k.e(f"v_add_f32 v{lacc}, v{lacc}, v{Sc + 2 * n}")
                k.e(f"v_add_f32 v{lacc + 1}, v{lacc + 1}, v{Sc + 2 * n + 1}")
                if masked:
                    if n == 6:
                        for ln in mk:
                            k.e(ln)
                    if n >= 7:
                        for _ in range(2):
                            if mt:
                                k.e(mt.pop(0))
                elif n >= 4:
                    for _ in range(2 if n < 8 else 1):
                        if mt:
                            k.e(mt.pop(0))
            for ln in mt:
                k.e(ln)

        def full(par):
            Sc, Sn = SS[par], SS[par ^ 1]
            phase_qk(Sn, par ^ 1, Sc, vr(CI, 16), dmaK(par) + dmaV(par ^ 1))
            pr.stamp(0)
            Lm, Lj = k.label("msk"), k.label("join")
            k.e(f"s_add_u32 s{s_t0}, s{s_kt}, 3")
            k.e(f"s_cmp_ge_u32 s{s_t0}, s{s_nt}")
            k.e(f"s_cbranch_scc1 {Lm}")
            phase_pv(Sc, par, Sn, False)
            k.e(f"s_branch {Lj}")
            k.place(Lm)
            k.e(f"s_lshl_b32 s{s_t1}, s{s_kt}, 6")
            k.e(f"s_add_u32 s{s_t1}, s{s_t1}, 64")
            phase_pv(Sc, par, Sn, True)
            k.place(Lj)
            pr.stamp(1)
            if not fast:
                check_rescale(k, Sn, CI, O, 64, lacc, vt0, vt1)
            k.e(f"s_add_u32 s{s_kt}, s{s_kt}, 1")
            pr.stamp(2)
            k.e("s_waitcnt vmcnt(0)")
            pr.stamp(3)
            k.e("s_barrier")
            pr.stamp(4)

        block_loads()
        LBtop = k.label("btop")
        k.place(LBtop)
        k.e(f"v_and_b32 v{vt0}, 31, v{v_lane}")
        k.e(f"v_add_u32 v{vq}, s{s_q0}, v{vt0}")
        k.e(f"s_lshl_b32 s{s_nt}, s{s_qb}, 1")
        k.e(f"s_add_u32 s{s_nt}, s{s_nt}, 2")
        for r in range(64):
            k.e(f"v_mov_b32 v{O + r}, 0")
        k.e(f"v_mov_b32 v{lacc}, 0")
        k.e(f"v_mov_b32 v{lacc + 1}, 0")
        k.e(f"s_mov_b32 s{s_kt}, 0")
        k.e("s_waitcnt vmcnt(0)")
        k.e("s_barrier")
        phase_qk(SS[0], 0, None, "0")
        k.e("s_nop 15")
        Lnm = k.label("nm0")
        k.e(f"s_cmp_lg_u32 s{s_nt}, 2")
        k.e(f"s_cbranch_scc1 {Lnm}")
        k.e(f"s_mov_b32 s{s_t1}, 0")
        for ln in mask_ops(SS[0]):
            k.e(ln)
        k.place(Lnm)
        first_tile_norm(k, SS[0], CI, vt0, vt1)
        k.e("s_barrier")
        Lloop, Llast = k.label("bloop"), k.label("blast")
        pr.start()
        k.e(f"s_cmp_eq_u32 s{s_nt}, 2")
        k.e(f"s_cbranch_scc1 {Llast}")
        k.place(Lloop)
        full(0)
        full(1)
        k.e(f"s_add_u32 s{s_t0}, s{s_kt}, 2")
        k.e(f"s_cmp_lt_u32 s{s_t0}, s{s_nt}")
        k.e(f"s_cbranch_scc1 {Lloop}")
        k.place(Llast)
        full(0)
        Lnp = k.label("nopf")
        k.e(f"s_sub_u32 s{s_qb}, 15, s{s_qb}")
        k.e(f"s_cmp_lg_u32 s{s_pass}, 0")
        k.e(f"s_cbranch_scc1 {Lnp}")
        block_loads()
        k.place(Lnp)
        Sc = SS[1]
        for n in range(16):
            k.e(f"v_exp_f32 v{Sc + 2 * n}, v{Sc + 2 * n}")
            k.e(f"v_exp_f32 v{Sc + 2 * n + 1}, v{Sc + 2 * n + 1}")
            if n > 0:
                k.e(f"v_cvt_pk_bf16_f32 v{P + n - 1}, v{Sc + 2 * n - 2}, v{Sc + 2 * n - 1}")
        k.e("s_nop 0")
        k.e(f"v_cvt_pk_bf16_f32 v{P + 15}, v{Sc + 30}, v{Sc + 31}")
        phase_pv(Sc, 1, None, False)
        k.e("s_nop 15")
        k.e(f"v_lshrrev_b32 v{vt0}, 7, v{vq}")
        k.e(f"v_lshlrev_b32 v{vdiff}, 20, v{vt0}")
        k.e(f"v_and_b32 v{vt0}, 127, v{vq}")
        k.e(f"v_lshl_add_u32 v{vdiff}, v{vt0}, 7, v{vdiff}")
        k.e(f"v_lshl_add_u32 v{vdiff}, v{vh4}, 2, v{vdiff}")
        k.e(f"s_lshl_b32 s{s_t0}, s{s_head}, 15")
        k.e(f"s_add_u32 s{s_t1}, s{s_t0}, 16384")
        finish_store(k, O, 4, lacc, vt0, vt1, vdiff, sO, s_t0, s_bad=s_bad if fast else None, soff2=s_t1)
        k.e(f"s_add_u32 s{s_pass}, s{s_pass}, 1")
        k.e(f"s_cmp_lt_u32 s{s_pass}, 2")
        k.e(f"s_cbranch_scc1 {LBtop}")
        pr.tot_end()
        pr.dump(pw, sQ, vt0, vt1)
        k.e(f"s_branch {Ldone}")
        k.vn, k.sn = save_v, save_s

    def role_a(fast, Ldone):
        if PRIO > 0:
            k.e(f"s_setprio {PRIO}")
        k.e(f"s_sub_u32 s{s_wave}, s{s_wave0}, 4")
        make_srd(k, sQ, pw, WS_QA, 4 * MB)
        make_srd(k, sK, pw, WS_KA, 2048 * 64)
        make_srd(k, sV, pw, WS_VA, 2048 * 64)
        make_srd(k, sO, pw, WS_OA, 4 * MB)
        s_hg, s_q0, s_kb, s_go, s_ho, s_dst, s_cur, s_nxt, s_wdst = [k.s() for _ in range(9)]
        pa = Prof(k, 6)
        pa.tot_start()
        NH = 2 if fast else 1
        Q = [k.v(8, 4) for _ in range(NH)]
        O = [k.v(16, 4) for _ in range(NH)]
        LS = [k.v(16, 4) for _ in range(NH)]
        SS = [k.v(32, 4), k.v(32, 4)]
        P2 = [k.v(16, 4) for _ in range(NH)]
        CI = k.v(16, 4)
        KF = k.v(16, 4)
        VF = k.v(16, 4)
        ONES = k.v(4, 4)
        vqo, vdm = k.v(), k.v()
        ba = [k.v(), k.v()]
        ac = [k.v(), k.v()]
        an = [k.v(), k.v()]
        LAtop = k.label("atop")
        k.place(LAtop)
        k.e(f"s_and_b32 s{s_q0}, s2, 15")
        k.e(f"s_lshr_b32 s{s_hg}, s2, 4")
        k.e(f"s_lshl_b32 s{s_hg}, s{s_hg}, 1")
        k.e(f"s_add_u32 s{s_hg}, s{s_hg}, s{s_pass}")
        k.e(f"s_lshl_b32 s{s_q0}, s{s_q0}, 7")
        k.e(f"s_lshl_b32 s{s_t0}, s{s_wave}, 5")
        k.e(f"s_add_u32 s{s_q0}, s{s_q0}, s{s_t0}")
        k.e(f"s_lshl_b32 s{s_ho}, s{s_hg}, 6")
        k.e(f"v_and_b32 v{vt0}, 31, v{v_lane}")
        k.e(f"v_lshrrev_b32 v{vt2}, 5, v{v_lane}")
        k.e(f"v_add_u32 v{vt1}, s{s_q0}, v{vt0}")
        k.e(f"v_lshlrev_b32 v{vt1}, 11, v{vt1}")
        k.e(f"v_lshl_add_u32 v{vqo}, v{vt2}, 4, v{vt1}")
        for h in range(NH):
            for ks in range(2):
                k.e(f"buffer_load_dwordx4 {vr(Q[h] + 4 * ks, 4)}, v{vqo}, {sr(sQ, 4)}, s{s_ho} offen offset:{h * 64 + ks * 32}")
        k.e(f"v_bfe_u32 v{vt1}, v{v_lane}, 2, 2")
        k.e(f"v_xor_b32 v{vt1}, v{vt1}, v{vt2}")
        k.e(f"v_lshlrev_b32 v{vt0}, 6, v{vt0}")
        for x in range(2):
            k.e(f"v_xor_b32 v{vt2}, {2 * x}, v{vt1}")
            k.e(f"v_lshl_add_u32 v{ba[x]}, v{vt2}, 4, v{vt0}")
        k.e(f"v_lshrrev_b32 v{vt0}, 2, v{v_lane}")
        k.e(f"v_lshrrev_b32 v{vt1}, 4, v{v_lane}")
        k.e(f"v_xor_b32 v{vt1}, v{vt1}, v{v_lane}")
        k.e(f"v_and_b32 v{vt1}, 3, v{vt1}")
        k.e(f"v_lshlrev_b32 v{vt0}, 6, v{vt0}")
        k.e(f"v_lshl_add_u32 v{vt0}, v{vt1}, 4, v{vt0}")
        k.e(f"s_lshl_b32 s{s_wdst}, s{s_wave}, 11")
        k.e(f"v_add_u32 v{vdm}, s{s_wdst}, v{vt0}")
        k.e(f"s_mov_b32 s{s_kb}, 0")
        k.e(f"s_mov_b32 s{s_go}, 0")
        k.e(f"s_mov_b32 s{s_dst}, {ABASE}")
        k.e(f"s_mov_b32 s{s_cur}, {ABASE}")
        k.e(f"s_mov_b32 s{s_nxt}, {ABASE + AST}")

        def dmaA():
            out = [[f"s_add_u32 s{s_t0}, s{s_dst}, s{s_wdst}"]]
            for j in range(2):
                out.append([f"s_mov_b32 m0, s{s_t0}", "s_nop 0",
                            f"buffer_load_dwordx4 v{vdm}, {sr(sK, 4)}, s{s_go} offen offset:{j * 1024} lds"])
            for j in range(2):
                out.append([f"s_add_u32 m0, s{s_t0}, 8192", "s_nop 0",
                            f"buffer_load_dwordx4 v{vdm}, {sr(sV, 4)}, s{s_go} offen offset:{j * 1024} lds"])
            out.append([f"s_add_u32 s{s_go}, s{s_go}, 8192", f"s_add_u32 s{s_dst}, s{s_dst}, {AST}",
                        f"s_cmp_eq_u32 s{s_dst}, {ABASE + 3 * AST}", f"s_cselect_b32 s{s_dst}, {ABASE}, s{s_dst}"])
            return out

        for _ in range(2):
            for g in dmaA():
                for ln in g:
                    k.e(ln)
        for h in range(NH):
            for r in range(16):
                k.e(f"v_mov_b32 v{O[h] + r}, 0")
                k.e(f"v_mov_b32 v{LS[h] + r}, 0")
        for r in range(4):
            k.e(f"v_mov_b32 v{ONES + r}, 0x3f803f80")

        def kreads_l(adr, half):
            return [f"ds_read_b128 {vr(KF + 8 * kk + 4 * ks, 4)}, v{adr[ks]} offset:{half * 4096 + kk * 2048}"
                    for kk in range(2) for ks in range(2)]

        def vreads_l(adr, half):
            return [f"ds_read_b128 {vr(VF + 4 * g, 4)}, v{adr[g & 1]} offset:{8192 + half * 4096 + (g >> 1) * 2048}"
                    for g in range(4)]

        def pv_l(h, Pp):
            out = []
            for g in range(4):
                out.append(f"v_mfma_f32_32x32x16_bf16 {vr(O[h], 16)}, {vr(VF + 4 * g, 4)}, {vr(Pp + 4 * g, 4)}, {vr(O[h], 16)}")
                if AONES or not fast:
                    out.append(f"v_mfma_f32_32x32x16_bf16 {vr(LS[h], 16)}, {vr(ONES, 4)}, {vr(Pp + 4 * g, 4)}, {vr(LS[h], 16)}")
            return out

        def qk_l(h, Sb, cinit):
            out = []
            for kk in range(2):
                for ks in range(2):
                    cin = cinit if ks == 0 else vr(Sb + 16 * kk, 16)
                    out.append(f"v_mfma_f32_32x32x16_bf16 {vr(Sb + 16 * kk, 16)}, {vr(KF + 8 * kk + 4 * ks, 4)}, {vr(Q[h] + 4 * ks, 4)}, {cin}")
            return out

        def oa_addr():
            k.e(f"v_and_b32 v{vt0}, 31, v{v_lane}")
            k.e(f"v_add_u32 v{vt0}, s{s_q0}, v{vt0}")
            k.e(f"v_lshrrev_b32 v{vt1}, 7, v{vt0}")
            k.e(f"v_lshlrev_b32 v{vdm}, 18, v{vt1}")
            k.e(f"v_and_b32 v{vt0}, 127, v{vt0}")
            k.e(f"v_lshl_add_u32 v{vdm}, v{vt0}, 7, v{vdm}")
            k.e(f"v_lshrrev_b32 v{vt1}, 5, v{v_lane}")
            k.e(f"v_lshl_add_u32 v{vdm}, v{vt1}, 4, v{vdm}")
            k.e(f"s_lshr_b32 s{s_t1}, s{s_hg}, 1")
            k.e(f"s_lshl_b32 s{s_t1}, s{s_t1}, 14")
            k.e(f"s_and_b32 s{s_t0}, s{s_hg}, 1")
            k.e(f"s_lshl_b32 s{s_t0}, s{s_t0}, 6")
            k.e(f"s_add_u32 s{s_t1}, s{s_t1}, s{s_t0}")

        def set_addr():
            for x in range(2):
                k.e(f"v_add_u32 v{ac[x]}, s{s_cur}, v{ba[x]}")
                k.e(f"v_add_u32 v{an[x]}, s{s_nxt}, v{ba[x]}")

        def adv():
            k.e(f"s_mov_b32 s{s_cur}, s{s_nxt}")
            k.e(f"s_add_u32 s{s_nxt}, s{s_nxt}, {AST}")
            k.e(f"s_cmp_eq_u32 s{s_nxt}, {ABASE + 3 * AST}")
            k.e(f"s_cselect_b32 s{s_nxt}, {ABASE}, s{s_nxt}")

        def expcvt(Sc, Pc, slots, dm=(), la=None):
            dm = list(dm)
            for n in range(16):
                k.e(f"v_exp_f32 v{Sc + 2 * n}, v{Sc + 2 * n}")
                k.e(f"v_exp_f32 v{Sc + 2 * n + 1}, v{Sc + 2 * n + 1}")
                if n > 0:
                    k.e(f"v_cvt_pk_bf16_f32 v{Pc + n - 1}, v{Sc + 2 * n - 2}, v{Sc + 2 * n - 1}")
                    if la is not None:
                        k.e(f"v_add_f32 v{la}, v{la}, v{Sc + 2 * n - 2}")
                        k.e(f"v_add_f32 v{la + 1}, v{la + 1}, v{Sc + 2 * n - 1}")
                for ln in slots.get(n, []):
                    k.e(ln)
                if n >= 12 and dm:
                    for ln in dm.pop(0):
                        k.e(ln)
            for g in dm:
                for ln in g:
                    k.e(ln)
            k.e("s_nop 0")
            k.e(f"v_cvt_pk_bf16_f32 v{Pc + 15}, v{Sc + 30}, v{Sc + 31}")
            if la is not None:
                k.e(f"v_add_f32 v{la}, v{la}, v{Sc + 30}")
                k.e(f"v_add_f32 v{la + 1}, v{la + 1}, v{Sc + 31}")

        k.e("s_waitcnt vmcnt(0)")
        k.e("s_barrier")
        set_addr()
        for ln in kreads_l(ac, 0):
            k.e(ln)
        k.e("s_waitcnt lgkmcnt(0)")
        if fast:
            for h in range(2):
                for ln in qk_l(h, SS[h], "0"):
                    k.e(ln)
            k.e("s_nop 15")
            for ln in max_tree(SS[0], 32, vt0):
                k.e(ln)
            for ln in max_tree(SS[1], 32, vt2):
                k.e(ln)
            k.e(f"v_max_f32 v{vt0}, v{vt0}, v{vt2}")
            xhalf_max(k, vt0, vt1)
            for h in range(2):
                for r in range(32):
                    k.e(f"v_sub_f32 v{SS[h] + r}, v{SS[h] + r}, v{vt0}")
            k.e(f"v_sub_f32 v{vt1}, 0, v{vt0}")
            for r in range(16):
                k.e(f"v_mov_b32 v{CI + r}, v{vt1}")

            def it(h, half, do_pv=True, do_qk=True, rd=None, dm=()):
                slots = {}
                if h == 1:
                    k.e("s_waitcnt lgkmcnt(0)")
                if do_pv:
                    for i, ln in enumerate(pv_l(h ^ 1, P2[h ^ 1])):
                        slots.setdefault(i if AONES else 2 * i, []).append(ln)
                if do_qk:
                    for i, ln in enumerate(qk_l(h ^ 1, SS[h ^ 1], vr(CI, 16))):
                        slots.setdefault(8 + i, []).append(ln)
                if rd:
                    slots.setdefault(12, []).extend(rd)
                expcvt(SS[h], P2[h], slots, dm, la=None if AONES else LS[h])

            sPF = k.s(4)
            s_pfo = k.s()
            vpf = LS[0] + 8
            if PREFETCH:
                make_srd(k, sPF, pf0, 0, 4096 * 1024 * 2)
                k.e(f"s_lshl_b32 s{s_pfo}, s2, 15")
                k.e(f"s_lshl_b32 s{s_t0}, s{s_wave}, 10")
                k.e(f"s_add_u32 s{s_pfo}, s{s_pfo}, s{s_t0}")
                k.e(f"v_lshlrev_b32 v{vpf}, 4, v{v_lane}")

            def prefetch():
                if not PREFETCH:
                    return
                Lsw = k.label("pfsw")
                k.e(f"s_cmp_lg_u32 s{s_kb}, 8")
                k.e(f"s_cbranch_scc1 {Lsw}")
                make_srd(k, sPF, pf1, 0, 1024 * 1024 * 2)
                k.e(f"s_lshl_b32 s{s_pfo}, s2, 13")
                k.e(f"s_lshl_b32 s{s_t0}, s{s_wave}, 10")
                k.e(f"s_add_u32 s{s_pfo}, s{s_pfo}, s{s_t0}")
                k.place(Lsw)
                k.e(f"buffer_load_dwordx4 {vr(LS[0] + 4, 4)}, v{vpf}, {sr(sPF, 4)}, s{s_pfo} offen")
                k.e(f"s_add_u32 s{s_pfo}, s{s_pfo}, 4096")

            def stage_iter(first, last):
                if not last:
                    prefetch()
                it(0, 0, do_pv=not first, do_qk=not first, rd=vreads_l(ac, 0) + kreads_l(ac, 1))
                it(1, 0, dm=dmaA() if not last else ())
                k.e("s_barrier")
                it(0, 1, rd=vreads_l(ac, 1) + ([] if last else kreads_l(an, 0)))
                it(1, 1, do_qk=not last)
                if not last:
                    adv()
                    set_addr()
                    k.e(f"s_add_u32 s{s_kb}, s{s_kb}, 1")
                    k.e("s_waitcnt vmcnt(0) lgkmcnt(0)")
                k.e("s_barrier")

            for _ in range(3):
                k.e("s_barrier")
            pa.start()
            stage_iter(True, False)
            Lloop = k.label("aloop")
            k.place(Lloop)
            stage_iter(False, False)
            k.e(f"s_cmp_lt_u32 s{s_kb}, 15")
            k.e(f"s_cbranch_scc1 {Lloop}")
            stage_iter(False, True)
            k.e("s_nop 1")
            for ln in pv_l(1, P2[1]):
                k.e(ln)
            k.e("s_nop 15")
            oa_addr()
            for h in range(2):
                k.e(f"s_add_u32 s{s_t0}, s{s_t1}, {h * 64}")
                finish_store(k, O[h], 1, LS[h], vt0, vt1, vdm, sO, s_t0, lsum_mfma=bool(AONES), s_bad=s_bad, lowchk=True)
        else:
            for ln in qk_l(0, SS[0], "0"):
                k.e(ln)
            k.e("s_nop 15")
            first_tile_norm(k, SS[0], CI, vt0, vt1)
            k.e("s_barrier")
            P = P2[0]

            def a_iter(par, last, dm):
                Sc, Sn = SS[par], SS[par ^ 1]
                if not last:
                    for ln in kreads_l(ac if par == 0 else an, par ^ 1):
                        k.e(ln)
                for ln in vreads_l(ac, par):
                    k.e(ln)
                if not last:
                    k.e("s_waitcnt lgkmcnt(4)")
                    for ln in qk_l(0, Sn, vr(CI, 16)):
                        k.e(ln)
                expcvt(Sc, P, {}, dm)
                k.e("s_waitcnt lgkmcnt(0)")
                k.e("s_nop 0")
                for ln in pv_l(0, P):
                    k.e(ln)
                if not last:
                    for ln in max_tree(Sn, 32, vt0):
                        k.e(ln)
                    check_rescale(k, Sn, CI, O[0], 16, LS[0], vt0, vt1, lsum_mfma=True)

            Lloop = k.label("aloop")
            k.place(Lloop)
            a_iter(0, False, dmaA())
            a_iter(1, False, [])
            adv()
            set_addr()
            k.e(f"s_add_u32 s{s_kb}, s{s_kb}, 1")
            k.e("s_waitcnt vmcnt(0) lgkmcnt(0)")
            k.e("s_barrier")
            k.e(f"s_cmp_lt_u32 s{s_kb}, 15")
            k.e(f"s_cbranch_scc1 {Lloop}")
            a_iter(0, False, [])
            a_iter(1, True, [])
            k.e("s_nop 15")
            oa_addr()
            finish_store(k, O[0], 1, LS[0], vt0, vt1, vdm, sO, s_t1, lsum_mfma=True)
            k.e("s_barrier")
            k.e(f"s_add_u32 s{s_pass}, s{s_pass}, 1")
            k.e(f"s_cmp_lt_u32 s{s_pass}, 2")
            k.e(f"s_cbranch_scc1 {LAtop}")
        pa.tot_end()
        pa.dump(pw, sQ, vt0, vt1)
        k.e(f"s_branch {Ldone}")
        k.vn, k.sn = save_v, save_s

    def emit_mode(fast, Ldone):
        LA = k.label("attnA")
        k.e(f"s_mov_b32 s{s_pass}, 0")
        k.e(f"s_cmp_ge_u32 s{s_wave0}, 4")
        k.e(f"s_cbranch_scc1 {LA}")
        role_b(fast, Ldone)
        k.place(LA)
        role_a(fast, Ldone)

    Lvote = k.label("vote")
    if FASTMAX:
        emit_mode(True, Lvote)
        k.place(Lvote)
        k.e("s_barrier")
        k.e(f"v_mov_b32 v{vt0}, s{s_bad}")
        k.e(f"s_lshl_b32 s{s_t0}, s{s_wave0}, 2")
        k.e(f"v_mov_b32 v{vt1}, s{s_t0}")
        k.e(f"ds_write_b32 v{vt1}, v{vt0} offset:{VOTE_OFF}")
        k.e("s_waitcnt lgkmcnt(0)")
        k.e("s_barrier")
        k.e(f"v_and_b32 v{vt1}, 7, v{v_lane}")
        k.e(f"v_lshlrev_b32 v{vt1}, 2, v{vt1}")
        k.e(f"ds_read_b32 v{vt0}, v{vt1} offset:{VOTE_OFF}")
        k.e("s_waitcnt lgkmcnt(0)")
        k.e(f"v_cmp_ne_u32 vcc, 0, v{vt0}")
        k.e("s_barrier")
        k.e(f"s_cbranch_vccz {Lend}")
    emit_mode(False, Lend)
    k.place(Lend)
    k.e("s_endpgm")
    return k


def main():
    kernels = [
        (kern_proj(), 256, 512, 160 * 1024),
        (kern_attn(), 256, 512, ATTN_LDS),
        {"half": lambda: (kern_out(), 256, 256, 160 * 1024),
         "split": lambda: (kern_out_split(), 256, 256, 160 * 1024),
         "f8": lambda: (kern_out_full(8), 256, 512, 152 * 1024),
         "f4": lambda: (kern_out_full(4), 256, 256, 152 * 1024)}[os.environ.get("OUTMODE", "split")](),
    ]
    out = []
    for kk, g, b, lds in kernels:
        out.append(f"; @launch kernel={kk.name} grid=({g},1,1) block=({b},1,1) lds={lds}")
    out.append('.amdgcn_target "amdgcn-amd-amdhsa--gfx950"')
    out.append(".text")
    for kk, g, b, lds in kernels:
        out.append(f".globl {kk.name}")
        out.append(".p2align 8")
        out.append(f".type {kk.name},@function")
        out.append(f"{kk.name}:")
        out.append(kk.text())
    out.append('.section .rodata,"a"')
    for kk, g, b, lds in kernels:
        nv = (kk.maxv + 7) // 8 * 8
        out.append(".p2align 6")
        out.append(f".amdhsa_kernel {kk.name}")
        out.append(f"  .amdhsa_next_free_vgpr {nv}")
        out.append("  .amdhsa_next_free_sgpr 102")
        out.append(f"  .amdhsa_accum_offset {nv}")
        out.append("  .amdhsa_group_segment_fixed_size 0")
        out.append("  .amdhsa_kernarg_size 112")
        out.append("  .amdhsa_user_sgpr_count 2")
        out.append("  .amdhsa_user_sgpr_kernarg_segment_ptr 1")
        out.append("  .amdhsa_system_sgpr_workgroup_id_x 1")
        out.append(".end_amdhsa_kernel")
    path = sys.argv[1] if len(sys.argv) > 1 else f"cdna_kernels/{NAME}.s"
    open(path, "w").write("\n".join(out) + "\n")
    for kk, g, b, lds in kernels:
        print(kk.name, "vgprs", kk.maxv, "lines", len(kk.lines))


if __name__ == "__main__":
    main()
```

```python
import math
import os
import sys

PROF = int(os.environ.get("PROF", "0"))
PRIO = int(os.environ.get("PRIO", "0"))

NAME = "concat_heads__grouped_kv_mqa__compressed_kv_cla__prompt"

KA_AX, KA_AWQ, KA_AWK, KA_AWV, KA_AWO = 0, 8, 16, 24, 32
KA_BX, KA_CKV, KA_BWQ, KA_WUK, KA_WUV, KA_BWO = 40, 48, 56, 64, 72, 80
KA_OUT, KA_DBG, KA_WS = 88, 96, 104

MB = 1 << 20
PREFETCH = int(os.environ.get("PREFETCH", "1"))
WS_QB, WS_KB, WS_VB, WS_CTX = 0, 16 * MB, 32 * MB, 48 * MB
WS_QA, WS_OA, WS_KA, WS_VA = 64 * MB, 68 * MB, 72 * MB, 73 * MB


def log2(x):
    r = int(math.log2(x))
    assert 1 << r == x, x
    return r


class K:
    def __init__(self, name):
        self.name = name
        self.lines = []
        self.vn = 1
        self.sn = 3
        self.maxv = 1
        self.uid = 0

    def v(self, n=1, align=1):
        if n > 1 and align == 1:
            align = 2
        self.vn = (self.vn + align - 1) // align * align
        r = self.vn
        self.vn += n
        self.maxv = max(self.maxv, self.vn)
        assert self.vn <= 256, "out of vgprs"
        return r

    def s(self, n=1, align=1):
        if n == 2:
            align = max(align, 2)
        if n == 4:
            align = max(align, 4)
        self.sn = (self.sn + align - 1) // align * align
        r = self.sn
        self.sn += n
        assert self.sn <= 100, "out of sgprs"
        return r

    def e(self, t):
        self.lines.append("    " + t)

    def c(self, t):
        self.lines.append("    ; " + t)

    def label(self, base):
        self.uid += 1
        return f"L_{self.name}_{base}_{self.uid}"

    def place(self, lab):
        self.lines.append(lab + ":")

    def text(self):
        return "\n".join(self.lines)


def vr(b, n):
    return f"v[{b}:{b + n - 1}]"


def sr(b, n):
    return f"s[{b}:{b + n - 1}]"


class Prof:
    def __init__(self, k, n):
        self.k = k
        self.n = n
        if not PROF:
            return
        self.t = k.s(2)
        self.prev = k.s()
        self.acc = [k.s() for _ in range(n)]
        for a in self.acc:
            k.e(f"s_mov_b32 s{a}, 0")

    def tot_start(self):
        if PROF != 2:
            return
        k = self.k
        k.e(f"s_memtime {sr(self.t, 2)}")
        k.e("s_waitcnt lgkmcnt(0)")
        k.e(f"s_mov_b32 s{self.acc[0]}, s{self.t}")
        k.e(f"s_memrealtime {sr(self.t, 2)}")
        k.e("s_waitcnt lgkmcnt(0)")
        k.e(f"s_mov_b32 s{self.acc[1]}, s{self.t}")

    def tot_end(self):
        if PROF != 2:
            return
        k = self.k
        k.e(f"s_memtime {sr(self.t, 2)}")
        k.e("s_waitcnt lgkmcnt(0)")
        k.e(f"s_sub_u32 s{self.acc[0]}, s{self.t}, s{self.acc[0]}")
        k.e(f"s_memrealtime {sr(self.t, 2)}")
        k.e("s_waitcnt lgkmcnt(0)")
        k.e(f"s_sub_u32 s{self.acc[1]}, s{self.t}, s{self.acc[1]}")

    def start(self):
        if PROF != 1:
            return
        k = self.k
        k.e(f"s_memtime {sr(self.t, 2)}")
        k.e("s_waitcnt lgkmcnt(0)")
        k.e(f"s_mov_b32 s{self.prev}, s{self.t}")

    def stamp(self, i):
        if PROF != 1:
            return
        k = self.k
        k.e(f"s_memtime {sr(self.t, 2)}")
        k.e("s_waitcnt lgkmcnt(0)")
        k.e(f"s_sub_u32 s{self.prev}, s{self.t}, s{self.prev}")
        k.e(f"s_add_u32 s{self.acc[i]}, s{self.acc[i]}, s{self.prev}")
        k.e(f"s_mov_b32 s{self.prev}, s{self.t}")

    def dump(self, pw, srd, vtmp, vtmp2):
        if not PROF or self.k.name != os.environ.get("PROFK", "attn_kernel"):
            return
        k = self.k
        make_srd(k, srd, pw, 80 * MB, 4 * MB)
        k.e(f"v_lshrrev_b32 v{vtmp}, 6, v0")
        k.e(f"v_lshlrev_b32 v{vtmp}, 6, v{vtmp}")
        k.e(f"s_lshl_b32 s{self.prev}, s2, 9")
        for i, a in enumerate(self.acc):
            k.e(f"v_mov_b32 v{vtmp2}, s{a}")
            k.e(f"buffer_store_dword v{vtmp2}, v{vtmp}, {sr(srd, 4)}, s{self.prev} offen offset:{4 * i}")
        k.e("s_waitcnt vmcnt(0)")


def load_ptr(k, sdst, off):
    k.e(f"s_load_dwordx2 {sr(sdst, 2)}, s[0:1], {off}")


def make_srd(k, srd, sptr, off, size):
    if off:
        k.e(f"s_add_u32 s{srd}, s{sptr}, {off:#x}")
        k.e(f"s_addc_u32 s{srd + 1}, s{sptr + 1}, 0")
        k.e(f"s_and_b32 s{srd + 1}, s{srd + 1}, 0xffff")
    else:
        k.e(f"s_mov_b32 s{srd}, s{sptr}")
        k.e(f"s_and_b32 s{srd + 1}, s{sptr + 1}, 0xffff")
    k.e(f"s_mov_b32 s{srd + 2}, {size:#x}")
    k.e(f"s_mov_b32 s{srd + 3}, 0x20000")


class GemmCtx:
    def __init__(self, k):
        self.k = k
        self.sX = k.s(4)
        self.sW = k.s(4)
        self.sO = k.s(4)
        self.ldx, self.ldw, self.nt, self.tm_off, self.tn_off = [k.s() for _ in range(5)]
        self.obase, self.ldo, self.scale = [k.s() for _ in range(3)]
        self.kxstep = None
        self.s_wave = k.s()
        self.s_t0, self.s_t1 = k.s(), k.s()
        self.v_lane = k.v()
        self.vt = [k.v() for _ in range(4)]
        self.voff = [[k.v() for _ in range(8)] for _ in range(2)]
        self.sset = [[k.s() for _ in range(14)] for _ in range(2)]
        self.vpf = k.v(4, 4)
        self.vpfo = k.v()
        self.vpx, self.vpw = k.v(), k.v()
        self.s_pkw = k.s()
        self.shared_v = None
        self.flip = 0
        self.after_first = None

    def init_ids(self):
        k = self.k
        k.e(f"v_and_b32 v{self.v_lane}, 63, v0")
        k.e(f"v_lshrrev_b32 v{self.vt[0]}, 6, v0")
        k.e("s_nop 0")
        k.e(f"v_readfirstlane_b32 s{self.s_wave}, v{self.vt[0]}")
        k.e("s_nop 3")
        self.shared_v = k.vn


class Gemm:
    def __init__(self, G, WM, WN, TM, TN, BK, NSTAGE, ACROSS, form, epi):
        self.G, self.k = G, G.k
        self.WM, self.WN, self.TM, self.TN, self.BK, self.NSTAGE, self.ACROSS = WM, WN, TM, TN, BK, NSTAGE, ACROSS
        self.form, self.epi = form, epi
        self.NW = WM * WN
        self.BM, self.BN = WM * TM * 32, WN * TN * 32
        self.RX, self.RW = BK * 2, self.BN * 2
        self.CX = self.RX // 16
        self.SX = {64: 2, 128: 1}[self.RX]
        self.XB, self.WB = self.BM * self.RX, BK * self.RW
        self.STAGE = self.XB + self.WB
        self.KS = BK // 16
        self.NXI = self.XB // 1024 // self.NW
        self.NWI = self.WB // 1024 // self.NW
        assert self.NXI * 1024 * self.NW == self.XB and self.NWI * 1024 * self.NW == self.WB
        self.D = self.NXI + self.NWI
        assert self.D <= 8
        self.LEAD = NSTAGE - 1
        self.CERT = 2 if ACROSS else 1
        self.FULL = ACROSS == 2
        self.nstores = 2 * TM * TN
        self.ahead = 0

    def _wswz(self, vdst, vkrow):
        k = self.k
        if self.RW >= 256:
            k.e(f"v_and_b32 v{vdst}, 3, v{vkrow}")
        elif self.RW == 128:
            k.e(f"v_lshrrev_b32 v{vdst}, 1, v{vkrow}")
            k.e(f"v_and_b32 v{vdst}, 1, v{vdst}")
        else:
            k.e(f"v_mov_b32 v{vdst}, 0")

    def setup_dma(self):
        k, G = self.k, self.G
        v_lane = G.v_lane
        v_t0, v_t1, v_t2, v_t3 = G.vt
        s_t0, s_wave = G.s_t0, G.s_wave
        regs = G.voff[G.flip]
        sregs = G.sset[G.flip]
        G.flip ^= 1
        self.vox = regs[:self.NXI]
        self.vow = regs[self.NXI:self.NXI + self.NWI]
        LPR, RPI = self.RX // 16, 1024 // self.RX
        for j in range(self.NXI):
            k.e(f"s_mul_i32 s{s_t0}, s{s_wave}, {self.NXI * RPI}")
            k.e(f"s_add_u32 s{s_t0}, s{s_t0}, {j * RPI}")
            k.e(f"v_lshrrev_b32 v{v_t0}, {log2(LPR)}, v{v_lane}")
            k.e(f"v_add_u32 v{v_t0}, s{s_t0}, v{v_t0}")
            k.e(f"v_lshrrev_b32 v{v_t1}, {self.SX}, v{v_t0}")
            k.e(f"v_and_b32 v{v_t1}, {self.CX - 1}, v{v_t1}")
            k.e(f"v_and_b32 v{v_t2}, {LPR - 1}, v{v_lane}")
            k.e(f"v_xor_b32 v{v_t1}, v{v_t1}, v{v_t2}")
            k.e(f"v_mul_lo_u32 v{v_t0}, v{v_t0}, s{G.ldx}")
            k.e(f"v_lshl_add_u32 v{v_t0}, v{v_t1}, 4, v{v_t0}")
            k.e(f"v_add_u32 v{self.vox[j]}, s{G.tm_off}, v{v_t0}")
        LPRW, RPIW = self.RW // 16, 1024 // self.RW
        for j in range(self.NWI):
            k.e(f"s_mul_i32 s{s_t0}, s{s_wave}, {self.NWI * RPIW}")
            k.e(f"s_add_u32 s{s_t0}, s{s_t0}, {j * RPIW}")
            k.e(f"v_lshrrev_b32 v{v_t0}, {log2(LPRW)}, v{v_lane}")
            k.e(f"v_add_u32 v{v_t0}, s{s_t0}, v{v_t0}")
            self._wswz(v_t1, v_t0)
            k.e(f"v_lshlrev_b32 v{v_t1}, 2, v{v_t1}")
            k.e(f"v_and_b32 v{v_t2}, {LPRW - 1}, v{v_lane}")
            k.e(f"v_xor_b32 v{v_t1}, v{v_t1}, v{v_t2}")
            k.e(f"v_mul_lo_u32 v{v_t0}, v{v_t0}, s{G.ldw}")
            k.e(f"v_lshl_add_u32 v{v_t0}, v{v_t1}, 4, v{v_t0}")
            k.e(f"v_add_u32 v{self.vow[j]}, s{G.tn_off}, v{v_t0}")
        (self.s_kx, self.s_kw, self.s_dst, self.s_cur, self.s_nxt, self.s_cnt, self.s_xdst, self.s_wdst,
         self.s_kwstep, self.s_d0, self.s_d1, self.s_nt, self.s_wm, self.s_wn) = sregs
        k.e(f"s_mov_b32 s{self.s_kx}, {getattr(self, 'kx0', 0)}")
        k.e(f"s_mov_b32 s{self.s_kw}, {getattr(self, 'kw0', 0)}")
        k.e(f"s_mov_b32 s{self.s_dst}, 0")
        k.e(f"s_mov_b32 s{self.s_cur}, 0")
        k.e(f"s_mov_b32 s{self.s_nxt}, {self.STAGE}")
        k.e(f"s_mul_i32 s{self.s_xdst}, s{s_wave}, {self.NXI * 1024}")
        k.e(f"s_mul_i32 s{self.s_wdst}, s{s_wave}, {self.NWI * 1024}")
        k.e(f"s_add_u32 s{self.s_wdst}, s{self.s_wdst}, {self.XB}")
        k.e(f"s_mul_i32 s{self.s_kwstep}, s{G.ldw}, {self.BK}")
        k.e(f"s_mov_b32 s{self.s_nt}, s{G.nt}")
        if self.ahead:
            k.e(f"s_and_b32 s{s_t0}, s{G.s_ptn}, 1")
            k.e(f"s_cmp_eq_u32 s{s_t0}, 0")
            k.e(f"s_cselect_b64 vcc, -1, 0")
            k.e(f"v_cndmask_b32 v{G.vpx}, v{self.vox[1]}, v{self.vox[0]}, vcc")
            k.e(f"s_and_b32 s{s_t0}, s{G.s_ptm}, 1")
            k.e(f"s_cmp_eq_u32 s{s_t0}, 0")
            k.e(f"s_cselect_b64 vcc, -1, 0")
            k.e(f"v_cndmask_b32 v{G.vpw}, v{self.vow[1]}, v{self.vow[0]}, vcc")
            k.e(f"s_mul_i32 s{G.s_pkw}, s{self.s_kwstep}, {self.ahead}")

    def pf_list(self):
        G = self.G
        if not self.ahead:
            return []
        return [[f"s_add_u32 s{G.s_t1}, s{self.s_kx}, {self.ahead * self.BK * 2}",
                 f"buffer_load_dwordx4 {vr(G.vpf, 4)}, v{G.vpx}, {sr(G.sX, 4)}, s{G.s_t1} offen"],
                [f"s_add_u32 s{G.s_t1}, s{self.s_kw}, s{G.s_pkw}",
                 f"buffer_load_dwordx4 {vr(G.vpf, 4)}, v{G.vpw}, {sr(G.sW, 4)}, s{G.s_t1} offen"]]

    def dma_list(self):
        G = self.G
        out = []
        for j in range(self.NXI):
            g = []
            if j == 0:
                g.append(f"s_add_u32 s{self.s_d0}, s{self.s_dst}, s{self.s_xdst}")
            g.append(f"s_add_u32 m0, s{self.s_d0}, {j * 1024}")
            g.append("s_nop 0")
            g.append(f"buffer_load_dwordx4 v{self.vox[j]}, {sr(G.sX, 4)}, s{self.s_kx} offen lds")
            out.append(g)
        for j in range(self.NWI):
            g = []
            if j == 0:
                g.append(f"s_add_u32 s{self.s_d1}, s{self.s_dst}, s{self.s_wdst}")
            g.append(f"s_add_u32 m0, s{self.s_d1}, {j * 1024}")
            g.append("s_nop 0")
            g.append(f"buffer_load_dwordx4 v{self.vow[j]}, {sr(G.sW, 4)}, s{self.s_kw} offen lds")
            out.append(g)
        out.append([
            f"s_add_u32 s{self.s_kx}, s{self.s_kx}, {G.kxstep or self.BK * 2}",
            f"s_add_u32 s{self.s_kw}, s{self.s_kw}, s{self.s_kwstep}",
            f"s_add_u32 s{self.s_dst}, s{self.s_dst}, {self.STAGE}",
            f"s_cmp_eq_u32 s{self.s_dst}, {self.NSTAGE * self.STAGE}",
            f"s_cselect_b32 s{self.s_dst}, 0, s{self.s_dst}",
        ])
        return out

    def issue_prologue(self):
        for t in range(self.LEAD):
            for g in self.dma_list():
                for ln in g:
                    self.k.e(ln)

    def setup_rest(self):
        k, G = self.k, self.G
        k.vn = G.shared_v
        v_lane = G.v_lane
        v_t0, v_t1, v_t2, v_t3 = G.vt
        s_t0 = G.s_t0
        TM, TN, KS, RX, RW = self.TM, self.TN, self.KS, self.RX, self.RW
        k.e(f"s_and_b32 s{self.s_wm}, s{G.s_wave}, {self.WM - 1}")
        k.e(f"s_lshr_b32 s{self.s_wn}, s{G.s_wave}, {log2(self.WM)}")
        self.bx = [k.v() for _ in range(KS)]
        self.bw = [k.v() for _ in range(TN)]
        k.e(f"s_mul_i32 s{s_t0}, s{self.s_wm}, {TM * 32}")
        k.e(f"v_and_b32 v{v_t0}, 31, v{v_lane}")
        k.e(f"v_add_u32 v{v_t0}, s{s_t0}, v{v_t0}")
        k.e(f"v_lshrrev_b32 v{v_t1}, {self.SX}, v{v_t0}")
        k.e(f"v_and_b32 v{v_t1}, {self.CX - 1}, v{v_t1}")
        k.e(f"v_lshrrev_b32 v{v_t2}, 5, v{v_lane}")
        k.e(f"v_xor_b32 v{v_t1}, v{v_t1}, v{v_t2}")
        k.e(f"v_lshlrev_b32 v{v_t0}, {log2(RX)}, v{v_t0}")
        for ks in range(KS):
            k.e(f"v_xor_b32 v{v_t2}, {2 * ks}, v{v_t1}")
            k.e(f"v_lshl_add_u32 v{self.bx[ks]}, v{v_t2}, 4, v{v_t0}")
        k.e(f"v_lshrrev_b32 v{v_t0}, 5, v{v_lane}")
        k.e(f"v_lshlrev_b32 v{v_t0}, 3, v{v_t0}")
        k.e(f"v_bfe_u32 v{v_t1}, v{v_lane}, 2, 2")
        k.e(f"v_add_u32 v{v_t0}, v{v_t0}, v{v_t1}")
        self._wswz(v_t1, v_t0)
        k.e(f"v_lshlrev_b32 v{v_t1}, 2, v{v_t1}")
        k.e(f"v_lshlrev_b32 v{v_t0}, {log2(RW)}, v{v_t0}")
        for f in range(TN):
            k.e(f"s_mul_i32 s{s_t0}, s{self.s_wn}, {TN * 4}")
            k.e(f"s_add_u32 s{s_t0}, s{s_t0}, {4 * f}")
            k.e(f"v_bfe_u32 v{v_t2}, v{v_lane}, 4, 1")
            k.e(f"v_lshlrev_b32 v{v_t2}, 1, v{v_t2}")
            k.e(f"v_bfe_u32 v{v_t3}, v{v_lane}, 1, 1")
            k.e(f"v_add3_u32 v{v_t2}, v{v_t2}, v{v_t3}, s{s_t0}")
            k.e(f"v_xor_b32 v{v_t2}, v{v_t2}, v{v_t1}")
            k.e(f"v_lshl_add_u32 v{v_t2}, v{v_t2}, 4, v{v_t0}")
            k.e(f"v_and_b32 v{v_t3}, 1, v{v_lane}")
            k.e(f"v_lshl_add_u32 v{v_t2}, v{v_t3}, 3, v{v_t2}")
            k.e(f"v_add_u32 v{self.bw[f]}, {self.XB}, v{v_t2}")
        self.acc = [[k.v(16, 4) for f in range(TN)] for i in range(TM)]
        NSET = 2 * KS if self.FULL else (2 if self.ACROSS else KS)
        self.fx = [[k.v(4, 4) for i in range(TM)] for s_ in range(NSET)]
        self.fw = [[k.v(4, 4) for f in range(TN)] for s_ in range(NSET)]
        self.ax = [k.v() for _ in range(KS)]
        self.aw_c = [k.v() for _ in range(TN)]
        self.aw_n = [k.v() for _ in range(TN)] if self.ACROSS else None
        self.end_vn = k.vn
        for i in range(TM):
            for f in range(TN):
                for r in range(16):
                    k.e(f"v_mov_b32 v{self.acc[i][f] + r}, 0")

    def reads(self, ks, st, axr, awr):
        out = []
        for i in range(self.TM):
            out.append(f"ds_read_b128 {vr(self.fx[st][i], 4)}, v{axr} offset:{i * 32 * self.RX}")
        for f in range(self.TN):
            for p in range(2):
                out.append(f"ds_read_b64_tr_b16 {vr(self.fw[st][f] + 2 * p, 2)}, v{awr[f]} offset:{(16 * ks + 4 * p) * self.RW}")
        return out

    def mfmas(self, st):
        out = []
        for i in range(self.TM):
            for f in range(self.TN):
                a, b = (self.fw[st][f], self.fx[st][i]) if self.form == "T" else (self.fx[st][i], self.fw[st][f])
                out.append(f"v_mfma_f32_32x32x16_bf16 {vr(self.acc[i][f], 16)}, {vr(a, 4)}, {vr(b, 4)}, {vr(self.acc[i][f], 16)}")
        return out

    def wait_prologue(self, extra=0):
        k = self.k
        k.e(f"s_waitcnt vmcnt({min(63, extra + (self.LEAD - self.CERT) * self.D)})")
        k.e("s_barrier")
        if self.FULL:
            for ks in range(self.KS):
                for ln in self.reads(ks, ks, self.bx[ks], self.bw):
                    k.e(ln)
        elif self.ACROSS:
            for f in range(self.TN):
                k.e(f"v_mov_b32 v{self.aw_c[f]}, v{self.bw[f]}")
            k.e(f"v_mov_b32 v{self.ax[0]}, v{self.bx[0]}")
            for ln in self.reads(0, 0, self.ax[0], self.aw_c):
                k.e(ln)

    def _interleave(self, main, fill, per=1):
        k = self.k
        fill = list(fill)
        for m in main:
            k.e(m)
            for _ in range(per):
                if fill:
                    it = fill.pop(0)
                    for ln in it if isinstance(it, list) else [it]:
                        k.e(ln)
        for it in fill:
            for ln in it if isinstance(it, list) else [it]:
                k.e(ln)

    def _body(self, with_dma):
        k = self.k
        TN, KS = self.TN, self.KS
        dm = self.dma_list() + self.pf_list() if with_dma else []
        if self.ACROSS:
            assert KS == 2
            k.e(f"v_add_u32 v{self.ax[1]}, s{self.s_cur}, v{self.bx[1]}")
            for f in range(TN):
                k.e(f"v_add_u32 v{self.aw_c[f]}, s{self.s_cur}, v{self.bw[f]}")
            k.e(f"v_add_u32 v{self.ax[0]}, s{self.s_nxt}, v{self.bx[0]}")
            for f in range(TN):
                k.e(f"v_add_u32 v{self.aw_n[f]}, s{self.s_nxt}, v{self.bw[f]}")
            k.e("s_waitcnt lgkmcnt(0)")
            self._interleave(self.mfmas(0), self.reads(1, 1, self.ax[1], self.aw_c), per=2)
            k.e("s_waitcnt lgkmcnt(0)")
            self._interleave(self.mfmas(1), self.reads(0, 0, self.ax[0], self.aw_n) + dm, per=2)
        else:
            for ks in range(KS):
                k.e(f"v_add_u32 v{self.ax[ks]}, s{self.s_cur}, v{self.bx[ks]}")
            for f in range(TN):
                k.e(f"v_add_u32 v{self.aw_c[f]}, s{self.s_cur}, v{self.bw[f]}")
            nr = self.TM + 2 * TN
            for ks in range(KS):
                for ln in self.reads(ks, ks, self.ax[ks], self.aw_c):
                    k.e(ln)
            for g in dm:
                for ln in g:
                    k.e(ln)
            for ks in range(KS):
                k.e(f"s_waitcnt lgkmcnt({min(15, (KS - 1 - ks) * nr)})")
                for ln in self.mfmas(ks):
                    k.e(ln)
        k.e(f"s_mov_b32 s{self.s_cur}, s{self.s_nxt}")
        k.e(f"s_add_u32 s{self.s_nxt}, s{self.s_nxt}, {self.STAGE}")
        k.e(f"s_cmp_eq_u32 s{self.s_nxt}, {self.NSTAGE * self.STAGE}")
        k.e(f"s_cselect_b32 s{self.s_nxt}, 0, s{self.s_nxt}")
        if with_dma:
            np_ = 2 if self.ahead else 0
            k.e(f"s_waitcnt vmcnt({(self.LEAD - self.CERT) * (self.D + np_) + np_})")
        else:
            k.e("s_waitcnt vmcnt(0)")
        k.e("s_barrier")

    def _body_full(self, par, with_dma):
        k = self.k
        TN, KS = self.TN, self.KS
        for ks in range(KS):
            k.e(f"v_add_u32 v{self.ax[ks]}, s{self.s_nxt}, v{self.bx[ks]}")
        for f in range(TN):
            k.e(f"v_add_u32 v{self.aw_c[f]}, s{self.s_nxt}, v{self.bw[f]}")
        k.e("s_waitcnt lgkmcnt(0)")
        rd = []
        for ks in range(KS):
            rd += self.reads(ks, (par ^ 1) * KS + ks, self.ax[ks], self.aw_c)
        mf = []
        for ks in range(KS):
            mf += self.mfmas(par * KS + ks)
        dm = self.dma_list() if with_dma else []
        fill = []
        nr, nd = len(rd), len(dm)
        di = 0
        for i, r in enumerate(rd):
            fill.append(r)
            while di < nd and (di + 1) * nr <= (i + 1) * nd:
                fill.append(dm[di])
                di += 1
        fill += dm[di:]
        per = (len(fill) + len(mf) - 1) // len(mf)
        self._interleave(mf, fill, per=per)
        k.e(f"s_add_u32 s{self.s_nxt}, s{self.s_nxt}, {self.STAGE}")
        k.e(f"s_cmp_eq_u32 s{self.s_nxt}, {self.NSTAGE * self.STAGE}")
        k.e(f"s_cselect_b32 s{self.s_nxt}, 0, s{self.s_nxt}")
        if with_dma:
            k.e(f"s_waitcnt vmcnt({(self.LEAD - self.CERT) * self.D})")
        else:
            k.e("s_waitcnt vmcnt(0)")
        k.e("s_barrier")

    def loop(self):
        k = self.k
        if self.FULL:
            assert self.LEAD % 2 == 0
            k.e(f"s_sub_u32 s{self.s_cnt}, s{self.s_nt}, {self.LEAD}")
            L1 = k.label("main")
            k.place(L1)
            self._body_full(0, True)
            self._body_full(1, True)
            k.e(f"s_sub_u32 s{self.s_cnt}, s{self.s_cnt}, 2")
            k.e(f"s_cmp_lg_u32 s{self.s_cnt}, 0")
            k.e(f"s_cbranch_scc1 {L1}")
            k.e(f"s_mov_b32 s{self.s_cnt}, {self.LEAD}")
            L2 = k.label("tail")
            k.place(L2)
            self._body_full(0, False)
            self._body_full(1, False)
            k.e(f"s_sub_u32 s{self.s_cnt}, s{self.s_cnt}, 2")
            k.e(f"s_cmp_lg_u32 s{self.s_cnt}, 0")
            k.e(f"s_cbranch_scc1 {L2}")
            k.e("s_waitcnt lgkmcnt(0)")
            k.e("s_nop 15")
            return
        k.e(f"s_sub_u32 s{self.s_cnt}, s{self.s_nt}, {self.LEAD}")
        L1 = k.label("main")
        k.place(L1)
        self._body(True)
        k.e(f"s_sub_u32 s{self.s_cnt}, s{self.s_cnt}, 1")
        k.e(f"s_cmp_lg_u32 s{self.s_cnt}, 0")
        k.e(f"s_cbranch_scc1 {L1}")
        k.e(f"s_mov_b32 s{self.s_cnt}, {self.LEAD}")
        L2 = k.label("tail")
        k.place(L2)
        self._body(False)
        k.e(f"s_sub_u32 s{self.s_cnt}, s{self.s_cnt}, 1")
        k.e(f"s_cmp_lg_u32 s{self.s_cnt}, 0")
        k.e(f"s_cbranch_scc1 {L2}")
        k.e("s_waitcnt lgkmcnt(0)")
        k.e("s_nop 15")

    def epilogue(self):
        k = self.k
        save = k.vn
        k.vn = self.end_vn
        self.epi(k, self.G, self)
        k.vn = max(save, self.G.shared_v)


def run_chain(k, G, jobs):
    prev = None
    pg = getattr(G, "prof", None)
    for ji, (set_in, set_out, g) in enumerate(jobs):
        set_in()
        g.setup_dma()
        g.issue_prologue()
        extra = 0
        if prev is None and G.after_first is not None:
            extra = G.after_first()
        if prev is not None:
            prev.epilogue()
            extra = prev.nstores
        set_out()
        g.setup_rest()
        g.wait_prologue(extra)
        if pg:
            pg.stamp(2 * ji)
        g.loop()
        if pg:
            pg.stamp(2 * ji + 1)
        prev = g
    return prev


def lds_epi_setup(k, G, RB, row_stride_sreg=None, row_stride_shift=None):
    vl = G.v_lane
    vw, vrd, vgo, vt = k.v(), k.v(), k.v(), k.v()
    CPR = RB // 16
    RPI = 64 // CPR
    s0 = G.s_t0
    k.e(f"s_lshl_b32 s{s0}, s{G.s_wave}, 12")
    k.e(f"s_add_u32 s{s0}, s{s0}, {G.epi_base}")
    k.e(f"v_and_b32 v{vt}, 31, v{vl}")
    k.e(f"v_lshlrev_b32 v{vw}, {log2(RB)}, v{vt}")
    k.e(f"v_add_u32 v{vw}, s{s0}, v{vw}")
    k.e(f"v_and_b32 v{vt}, {CPR - 1}, v{vt}")
    k.e(f"v_lshrrev_b32 v{vrd}, 5, v{vl}")
    k.e(f"v_xor_b32 v{vt}, v{vt}, v{vrd}")
    k.e(f"v_lshl_add_u32 v{vw}, v{vt}, 4, v{vw}")
    k.e(f"v_lshrrev_b32 v{vt}, {log2(CPR)}, v{vl}")
    k.e(f"v_xor_b32 v{vrd}, v{vt}, v{vl}")
    k.e(f"v_and_b32 v{vrd}, {CPR - 1}, v{vrd}")
    k.e(f"v_lshlrev_b32 v{vrd}, 4, v{vrd}")
    k.e(f"v_lshl_add_u32 v{vrd}, v{vt}, {log2(RB)}, v{vrd}")
    k.e(f"v_add_u32 v{vrd}, s{s0}, v{vrd}")
    if row_stride_sreg is not None:
        k.e(f"v_mul_lo_u32 v{vgo}, v{vt}, s{row_stride_sreg}")
    else:
        k.e(f"v_lshlrev_b32 v{vgo}, {row_stride_shift}, v{vt}")
    k.e(f"v_and_b32 v{vt}, {CPR - 1}, v{vl}")
    k.e(f"v_lshl_add_u32 v{vgo}, v{vt}, 4, v{vgo}")
    return vw, vrd, vgo, vt


def epi_rowmajor(k, G, g):
    TM, TN = g.TM, g.TN
    acc = g.acc
    s0, s1 = G.s_t0, G.s_t1
    RB = TN * 64
    CPR = RB // 16
    RPI = 64 // CPR
    NQ = 32 // RPI
    k.c("---- epilogue row-major")
    vw, vrd, vgo, vt = lds_epi_setup(k, G, RB, row_stride_sreg=G.ldo)
    s2_ = k.s()
    k.e(f"s_mul_i32 s{s0}, s{g.s_wm}, {TM * 32}")
    k.e(f"s_mul_i32 s{s0}, s{s0}, s{G.ldo}")
    k.e(f"s_add_u32 s{s0}, s{s0}, s{G.obase}")
    k.e(f"s_mul_i32 s{s1}, s{g.s_wn}, {TN * 64}")
    k.e(f"s_add_u32 s{s0}, s{s0}, s{s1}")
    k.e(f"s_mul_i32 s{s1}, s{G.ldo}, {RPI}")
    for i in range(TM):
        for f in range(TN):
            a = acc[i][f]
            t = a
            if getattr(g, "scaled", False):
                for r in range(16):
                    k.e(f"v_mul_f32 v{a + r}, s{G.scale}, v{a + r}")
            for j in range(8):
                k.e(f"v_cvt_pk_bf16_f32 v{t + j}, v{a + 2 * j}, v{a + 2 * j + 1}")
            k.e("s_nop 1")
            k.e(f"v_permlane32_swap_b32 v{t}, v{t + 2}")
            k.e(f"v_permlane32_swap_b32 v{t + 1}, v{t + 3}")
            k.e(f"v_permlane32_swap_b32 v{t + 4}, v{t + 6}")
            k.e(f"v_permlane32_swap_b32 v{t + 5}, v{t + 7}")
            for jj in range(2):
                c2 = 4 * f + 2 * jj
                if c2:
                    k.e(f"v_xor_b32 v{vt}, {c2 << 4}, v{vw}")
                    k.e(f"ds_write_b128 v{vt}, {vr(t + 4 * jj, 4)}")
                else:
                    k.e("s_nop 0")
                    k.e(f"ds_write_b128 v{vw}, {vr(t + 4 * jj, 4)}")
        k.e("s_waitcnt lgkmcnt(0)")
        dst = [acc[i][q // 2] + 8 + 4 * (q % 2) for q in range(NQ)]
        for q in range(NQ):
            k.e(f"ds_read_b128 {vr(dst[q], 4)}, v{vrd} offset:{q * RPI * RB}")
        for q in range(NQ):
            k.e(f"s_waitcnt lgkmcnt({NQ - 1 - q})")
            k.e(f"buffer_store_dwordx4 {vr(dst[q], 4)}, v{vgo}, {sr(G.sO, 4)}, s{s0} offen")
            k.e(f"s_add_u32 s{s0}, s{s0}, s{s1}")
    k.e("s_nop 1")
    k.sn -= 1


def make_epi_vt(KPB, FS, BS):
    def epi(k, G, g):
        TM, TN = g.TM, g.TN
        acc = g.acc
        s0, s1 = G.s_t0, G.s_t1
        RB = KPB * 2
        assert RB == FS
        CPR = RB // 16
        RPI = 64 // CPR
        NQ = 32 // RPI
        IPB = KPB // 32
        k.c("---- epilogue V^T")
        vw, vrd, vgo, vt = lds_epi_setup(k, G, RB, row_stride_shift=log2(FS))
        assert (TM * 32) % KPB == 0
        k.e(f"s_mul_i32 s{s0}, s{g.s_wm}, {TM * 32 // KPB * BS}")
        k.e(f"s_add_u32 s{s0}, s{s0}, s{G.obase}")
        k.e(f"s_mul_i32 s{s1}, s{g.s_wn}, {TN * 32 * FS}")
        k.e(f"s_add_u32 s{s0}, s{s0}, s{s1}")
        for f in range(TN):
            for blk in range(TM // IPB):
                for ii in range(IPB):
                    a = acc[blk * IPB + ii][f]
                    t = a
                    for j in range(8):
                        k.e(f"v_cvt_pk_bf16_f32 v{t + j}, v{a + 2 * j}, v{a + 2 * j + 1}")
                    for jj in range(2):
                        c2 = 4 * ii + 2 * jj
                        if c2:
                            k.e(f"v_xor_b32 v{vt}, {c2 << 4}, v{vw}")
                            k.e(f"ds_write_b128 v{vt}, {vr(t + 4 * jj, 4)}")
                        else:
                            k.e("s_nop 0")
                            k.e(f"ds_write_b128 v{vw}, {vr(t + 4 * jj, 4)}")
                k.e("s_waitcnt lgkmcnt(0)")
                dst = [acc[blk * IPB + q // 2][f] + 8 + 4 * (q % 2) for q in range(NQ)]
                for q in range(NQ):
                    k.e(f"ds_read_b128 {vr(dst[q], 4)}, v{vrd} offset:{q * RPI * RB}")
                for q in range(NQ):
                    k.e(f"s_add_u32 s{s1}, s{s0}, {blk * BS + f * 32 * FS + q * RPI * FS}")
                    k.e(f"s_waitcnt lgkmcnt({NQ - 1 - q})")
                    k.e(f"buffer_store_dwordx4 {vr(dst[q], 4)}, v{vgo}, {sr(G.sO, 4)}, s{s1} offen")
        k.e("s_nop 1")

    return epi


def kern_proj():
    k = K("proj_kernel")
    G = GemmCtx(k)
    G.epi_base = 128 * 1024
    pBX, pBWQ, pCKV, pWUK, pWUV, pAX, pAWQ, pAWK, pAWV, pWS = [k.s(2) for _ in range(10)]
    s_id, s_tm, s_tn, s_t = k.s(), k.s(), k.s(), k.s()
    Lend, Lkv = k.label("end"), k.label("kv")
    k.e("s_cmp_ge_u32 s2, 256")
    k.e(f"s_cbranch_scc1 {Lend}")
    for p, off in ((pBX, KA_BX), (pBWQ, KA_BWQ), (pCKV, KA_CKV), (pWUK, KA_WUK), (pWUV, KA_WUV), (pAX, KA_AX),
                   (pAWQ, KA_AWQ), (pAWK, KA_AWK), (pAWV, KA_AWV), (pWS, KA_WS)):
        load_ptr(k, p, off)
    G.init_ids()
    k.e(f"s_and_b32 s{s_id}, s2, 127")
    k.e(f"s_and_b32 s{s_tm}, s{s_id}, 1")
    k.e(f"s_lshl_b32 s{s_tm}, s{s_tm}, 2")
    k.e(f"s_bfe_u32 s{s_t}, s{s_id}, 0x20003")
    k.e(f"s_add_u32 s{s_tm}, s{s_tm}, s{s_t}")
    k.e(f"s_bfe_u32 s{s_tn}, s{s_id}, 0x20001")
    k.e(f"s_lshl_b32 s{s_tn}, s{s_tn}, 2")
    k.e(f"s_lshr_b32 s{s_t}, s{s_id}, 5")
    k.e(f"s_add_u32 s{s_tn}, s{s_tn}, s{s_t}")
    k.e("s_waitcnt lgkmcnt(0)")
    G.prof = Prof(k, 6)
    G.prof.start()
    G.prof.tot_start()

    def big_in(px, xsz, pw_, wsz, ldx, nt, tmshift):
        def f():
            make_srd(k, G.sX, px, 0, xsz)
            make_srd(k, G.sW, pw_, 0, wsz)
            k.e(f"s_mov_b32 s{G.ldx}, {ldx}")
            k.e(f"s_mov_b32 s{G.ldw}, 8192")
            k.e(f"s_mov_b32 s{G.nt}, {nt}")
            k.e(f"s_lshl_b32 s{G.tm_off}, s{s_tm}, {tmshift}")
            k.e(f"s_lshl_b32 s{G.tn_off}, s{s_tn}, 9")
        return f

    def big_out(wsoff, scale, fix):
        def f():
            make_srd(k, G.sO, pWS, wsoff, 16 * MB)
            k.e(f"s_mov_b32 s{G.scale}, {scale}")
            k.e(f"s_mov_b32 s{G.ldo}, 256")
            k.e(f"s_lshl_b32 s{G.obase}, s{s_tn}, 20")
            k.e(f"s_lshl_b32 s{s_t}, s{s_tm}, 16")
            k.e(f"s_add_u32 s{G.obase}, s{G.obase}, s{s_t}")
            k.e(f"s_lshr_b32 s{s_t}, s{G.s_wave}, 2")
            k.e(f"s_mul_i32 s{s_t}, s{s_t}, {fix}")
            k.e(f"s_add_u32 s{G.obase}, s{G.obase}, s{s_t}")
        return f

    def qa_in():
        make_srd(k, G.sX, pAX, 0, 2048 * 1024 * 2)
        make_srd(k, G.sW, pAWQ, 0, 1024 * 1024 * 2)
        k.e(f"s_mov_b32 s{G.ldx}, 2048")
        k.e(f"s_mov_b32 s{G.ldw}, 2048")
        k.e(f"s_mov_b32 s{G.nt}, 16")
        k.e(f"s_and_b32 s{s_t}, s2, 15")
        k.e(f"s_lshl_b32 s{G.tm_off}, s{s_t}, 18")
        k.e(f"s_lshr_b32 s{s_t}, s2, 4")
        k.e(f"s_lshl_b32 s{G.tn_off}, s{s_t}, 8")

    def qa_out():
        make_srd(k, G.sO, pWS, WS_QA, 4 * MB)
        k.e(f"s_mov_b32 s{G.scale}, {f32hex(CA)}")
        k.e(f"s_mov_b32 s{G.ldo}, 2048")
        k.e(f"s_add_u32 s{G.obase}, s{G.tm_off}, s{G.tn_off}")

    def kva_in(pw_):
        def f():
            make_srd(k, G.sX, pAX, 0, 2048 * 1024 * 2)
            make_srd(k, G.sW, pw_, 0, 1024 * 32 * 2)
            k.e(f"s_mov_b32 s{G.ldx}, 2048")
            k.e(f"s_mov_b32 s{G.ldw}, 64")
            k.e(f"s_mov_b32 s{G.nt}, 16")
            k.e(f"s_and_b32 s{s_t}, s2, 15")
            k.e(f"s_lshl_b32 s{G.tm_off}, s{s_t}, 18")
            k.e(f"s_mov_b32 s{G.tn_off}, 0")
        return f

    def kva_out(wsoff):
        def f():
            make_srd(k, G.sO, pWS, wsoff, 2048 * 64)
            k.e(f"s_mov_b32 s{G.scale}, 1.0")
            k.e(f"s_mov_b32 s{G.ldo}, 64")
            k.e(f"s_and_b32 s{s_t}, s2, 15")
            k.e(f"s_lshl_b32 s{G.obase}, s{s_t}, 13")
        return f

    sPF = k.s(4)
    G.s_ptm, G.s_ptn = s_tm, s_tn
    AHEAD = int(os.environ.get("AHEAD", "0"))
    COOP = ((pAX, 4), (pAWQ, 2)) if AHEAD else ((pBX, 4), (pBWQ, 8), (pCKV, 2), (pWUK, 4), (pWUV, 4), (pAX, 4), (pAWQ, 2))

    def coop_prefetch():
        n = 0
        k.e(f"v_lshlrev_b32 v{G.vpfo}, 4, v0")
        for p, mb in COOP:
            make_srd(k, sPF, p, 0, mb * MB)
            rounds = mb * MB // 256 // 8192
            k.e(f"s_mul_i32 s{s_t}, s2, {rounds * 8192}")
            for r in range(rounds):
                k.e(f"buffer_load_dwordx4 {vr(G.vpf, 4)}, v{G.vpfo}, {sr(sPF, 4)}, s{s_t} offen")
                k.e(f"s_add_u32 s{s_t}, s{s_t}, 8192")
                n += 1
        return n

    if PREFETCH:
        G.after_first = coop_prefetch
    BIG = (2, 4, 4, 2, 32, 4, True)
    MINI = (4, 2, 1, 2, 64, 4, True)
    MINI = (4, 2, 1, 2, 32, 5, 2)
    KVA = (4, 1, 1, 1, 64, 5, 2)
    save_s = k.sn

    k.e("s_cmp_ge_u32 s2, 128")
    k.e(f"s_cbranch_scc1 {Lkv}")

    def qa_in2():
        qa_in()
        k.e(f"s_mov_b32 s{G.nt}, 32")

    gq1, gq2 = Gemm(G, *BIG, "T", epi_rowmajor), Gemm(G, *MINI, "T", epi_rowmajor)
    gq1.scaled = gq2.scaled = True
    gq1.ahead = AHEAD
    last = run_chain(k, G, [(big_in(pBX, 2048 * 1024 * 2, pBWQ, 1024 * 4096 * 2, 2048, 32, 19),
                             big_out(WS_QB, f32hex(CB), 524288 - 256), gq1),
                            (qa_in2, qa_out, gq2)])
    last.epilogue()
    G.prof.tot_end()
    G.prof.dump(pWS, G.sX, G.vt[0], G.vt[1])
    k.e(f"s_branch {Lend}")
    k.place(Lkv)
    k.sn = save_s

    def v_out():
        make_srd(k, G.sO, pWS, WS_VB, 16 * MB)
        k.e(f"s_lshl_b32 s{G.obase}, s{s_tn}, 20")
        k.e(f"s_lshl_b32 s{s_t}, s{s_tm}, 16")
        k.e(f"s_add_u32 s{G.obase}, s{G.obase}, s{s_t}")
        k.e(f"s_lshr_b32 s{s_t}, s{G.s_wave}, 2")
        k.e(f"s_mul_i32 s{s_t}, s{s_t}, {524288 - 16384}")
        k.e(f"s_add_u32 s{G.obase}, s{G.obase}, s{s_t}")

    gk1, gk2 = Gemm(G, *BIG, "T", epi_rowmajor), Gemm(G, *BIG, "N", make_epi_vt(64, 128, 16384))
    gk1.ahead = gk2.ahead = AHEAD
    last = run_chain(k, G, [(big_in(pCKV, 2048 * 512 * 2, pWUK, 512 * 4096 * 2, 1024, 16, 18),
                             big_out(WS_KB, "1.0", 524288 - 256), gk1),
                            (big_in(pCKV, 2048 * 512 * 2, pWUV, 512 * 4096 * 2, 1024, 16, 18),
                             v_out, gk2)])
    last.epilogue()
    G.prof.tot_end()
    G.prof.dump(pWS, G.sX, G.vt[0], G.vt[1])
    G.prof = None
    G.after_first = None
    Lidle, Lv = k.label("idle"), k.label("va")
    k.e("s_cmp_ge_u32 s2, 160")
    k.e(f"s_cbranch_scc1 {Lend}")
    k.e(f"s_cmp_ge_u32 s{G.s_wave}, 4")
    k.e(f"s_cbranch_scc1 {Lidle}")
    k.e("s_cmp_ge_u32 s2, 144")
    k.e(f"s_cbranch_scc1 {Lv}")
    k.sn = save_s
    run_chain(k, G, [(kva_in(pAWK), kva_out(WS_KA), Gemm(G, *KVA, "T", epi_rowmajor))]).epilogue()
    k.e(f"s_branch {Lend}")
    k.place(Lv)
    k.sn = save_s
    run_chain(k, G, [(kva_in(pAWV), kva_out(WS_VA), Gemm(G, *KVA, "N", make_epi_vt(32, 64, 2048)))]).epilogue()
    k.e(f"s_branch {Lend}")
    k.place(Lidle)
    k.e(f"s_mov_b32 s{s_t}, 17")
    Lb = k.label("idlel")
    k.place(Lb)
    k.e("s_barrier")
    k.e(f"s_sub_u32 s{s_t}, s{s_t}, 1")
    k.e(f"s_cmp_lg_u32 s{s_t}, 0")
    k.e(f"s_cbranch_scc1 {Lb}")
    k.place(Lend)
    k.e("s_endpgm")
    return k


def kern_out():
    k = K("outp_kernel")
    G = GemmCtx(k)
    G.epi_base = 0
    G.kxstep = 16384
    pWS, pOUT, pBWO, pAWO = [k.s(2) for _ in range(4)]
    s_tm, s_tn, s_t, s_id = k.s(), k.s(), k.s(), k.s()
    Lend, La = k.label("end"), k.label("a")
    k.e("s_cmp_ge_u32 s2, 256")
    k.e(f"s_cbranch_scc1 {Lend}")
    for p, off in ((pWS, KA_WS), (pOUT, KA_OUT), (pBWO, KA_BWO), (pAWO, KA_AWO)):
        load_ptr(k, p, off)
    G.init_ids()
    k.e(f"s_and_b32 s{s_id}, s2, 127")
    k.e(f"s_and_b32 s{s_tm}, s{s_id}, 3")
    k.e(f"s_lshl_b32 s{s_tm}, s{s_tm}, 2")
    k.e(f"s_bfe_u32 s{s_t}, s{s_id}, 0x20003")
    k.e(f"s_add_u32 s{s_tm}, s{s_tm}, s{s_t}")
    k.e(f"s_bfe_u32 s{s_tn}, s{s_id}, 0x10002")
    k.e(f"s_lshl_b32 s{s_tn}, s{s_tn}, 2")
    k.e(f"s_lshr_b32 s{s_t}, s{s_id}, 5")
    k.e(f"s_add_u32 s{s_tn}, s{s_tn}, s{s_t}")
    k.e("s_waitcnt lgkmcnt(0)")
    G.prof = Prof(k, 6)
    G.prof.start()
    G.prof.tot_start()

    def j_in(wsoff, xsz, pw_, wsz, ldx, nt, sh):
        def f():
            make_srd(k, G.sX, pWS, wsoff, xsz)
            make_srd(k, G.sW, pw_, 0, wsz)
            k.e(f"s_mov_b32 s{G.ldx}, {ldx}")
            k.e(f"s_mov_b32 s{G.ldw}, 2048")
            k.e(f"s_mov_b32 s{G.nt}, {nt}")
            k.e(f"s_lshl_b32 s{G.tm_off}, s{s_tm}, {sh}")
            k.e(f"s_lshl_b32 s{G.tn_off}, s{s_tn}, 8")
        return f

    def j_out(col):
        def f():
            make_srd(k, G.sO, pOUT, 0, 2048 * 2048 * 2)
            k.e(f"s_mov_b32 s{G.scale}, 1.0")
            k.e(f"s_mov_b32 s{G.ldo}, 4096")
            k.e(f"s_lshl_b32 s{G.obase}, s{s_tm}, 19")
            k.e(f"s_lshl_b32 s{s_t}, s{s_tn}, 8")
            k.e(f"s_add_u32 s{G.obase}, s{G.obase}, s{s_t}")
            if col:
                k.e(f"s_add_u32 s{G.obase}, s{G.obase}, {col}")
        return f

    CFG = (2, 2, 2, 2, 64, 5, 2)
    Lgo = k.label("go")
    k.e("s_cmp_ge_u32 s2, 128")
    k.e(f"s_cbranch_scc1 {La}")
    j_in(WS_CTX, 16 * MB, pBWO, 4096 * 1024 * 2, 128, 64, 20)()
    j_out(2048)()
    k.e(f"s_branch {Lgo}")
    k.place(La)
    j_in(WS_OA, 4 * MB, pAWO, 1024 * 1024 * 2, 128, 16, 18)()
    j_out(0)()
    k.place(Lgo)
    nop = lambda: None
    last = run_chain(k, G, [(nop, nop, Gemm(G, *CFG, "T", epi_rowmajor))])
    last.epilogue()
    G.prof.tot_end()
    G.prof.dump(pWS, G.sX, G.vt[0], G.vt[1])
    k.place(Lend)
    k.e("s_endpgm")
    return k


WS_PART = 96 * MB
N1_OUT = 44


def kern_out_split():
    k = K("outp_kernel")
    G = GemmCtx(k)
    G.epi_base = 0
    G.kxstep = 16384
    pWS, pOUT, pBWO, pAWO, pDBG = [k.s(2) for _ in range(5)]
    s_tm, s_tn, s_t, s_id = k.s(), k.s(), k.s(), k.s()
    sP, sD = k.s(4), k.s(4)
    Lend, Lc = k.label("end"), k.label("cons")
    k.e("s_cmp_ge_u32 s2, 256")
    k.e(f"s_cbranch_scc1 {Lend}")
    for p, off in ((pWS, KA_WS), (pOUT, KA_OUT), (pBWO, KA_BWO), (pAWO, KA_AWO), (pDBG, KA_DBG)):
        load_ptr(k, p, off)
    G.init_ids()
    k.e(f"s_and_b32 s{s_id}, s2, 127")
    k.e(f"s_and_b32 s{s_tm}, s{s_id}, 3")
    k.e(f"s_lshl_b32 s{s_tm}, s{s_tm}, 2")
    k.e(f"s_bfe_u32 s{s_t}, s{s_id}, 0x20003")
    k.e(f"s_add_u32 s{s_tm}, s{s_tm}, s{s_t}")
    k.e(f"s_bfe_u32 s{s_tn}, s{s_id}, 0x10002")
    k.e(f"s_lshl_b32 s{s_tn}, s{s_tn}, 2")
    k.e(f"s_lshr_b32 s{s_t}, s{s_id}, 5")
    k.e(f"s_add_u32 s{s_tn}, s{s_tn}, s{s_t}")
    k.e("s_waitcnt lgkmcnt(0)")
    make_srd(k, sP, pWS, WS_PART, 8 * MB)
    make_srd(k, sD, pDBG, 0, 256)
    G.prof = Prof(k, 6)
    G.prof.start()
    G.prof.tot_start()

    def j_in(wsoff, xsz, pw_, wsz, nt, sh):
        def f():
            make_srd(k, G.sX, pWS, wsoff, xsz)
            make_srd(k, G.sW, pw_, 0, wsz)
            k.e(f"s_mov_b32 s{G.ldx}, 128")
            k.e(f"s_mov_b32 s{G.ldw}, 2048")
            k.e(f"s_mov_b32 s{G.nt}, {nt}")
            k.e(f"s_lshl_b32 s{G.tm_off}, s{s_tm}, {sh}")
            k.e(f"s_lshl_b32 s{G.tn_off}, s{s_tn}, 8")
        return f

    def j_out(col):
        def f():
            make_srd(k, G.sO, pOUT, 0, 2048 * 2048 * 2)
            k.e(f"s_mov_b32 s{G.scale}, 1.0")
            k.e(f"s_mov_b32 s{G.ldo}, 4096")
            k.e(f"s_lshl_b32 s{G.obase}, s{s_tm}, 19")
            k.e(f"s_lshl_b32 s{s_t}, s{s_tn}, 8")
            k.e(f"s_add_u32 s{G.obase}, s{G.obase}, s{s_t}")
            if col:
                k.e(f"s_add_u32 s{G.obase}, s{G.obase}, {col}")
        return f

    def part_addr(k, G):
        vo = k.v()
        k.e(f"v_lshlrev_b32 v{vo}, 4, v{G.v_lane}")
        k.e(f"s_lshl_b32 s{G.s_t0}, s{s_id}, 16")
        k.e(f"s_lshl_b32 s{G.s_t1}, s{G.s_wave}, 14")
        k.e(f"s_add_u32 s{G.s_t0}, s{G.s_t0}, s{G.s_t1}")
        return vo

    def flag_regs(k):
        vf, vb = k.v(), k.v()
        k.e(f"s_lshr_b32 s{G.s_t1}, s{s_id}, 1")
        k.e(f"s_lshl_b32 s{G.s_t1}, s{G.s_t1}, 2")
        k.e(f"v_mov_b32 v{vf}, s{G.s_t1}")
        k.e(f"s_and_b32 s{G.s_t1}, s{s_id}, 1")
        k.e(f"s_lshl_b32 s{G.s_t1}, s{G.s_t1}, 4")
        k.e(f"s_lshl_b32 s{G.s_t1}, 1, s{G.s_t1}")
        k.e(f"v_mov_b32 v{vb}, s{G.s_t1}")
        return vf, vb

    def epi_partial(k, G, g):
        vo = part_addr(k, G)
        n = 0
        for i in range(g.TM):
            for f in range(g.TN):
                for q in range(4):
                    k.e(f"buffer_store_dwordx4 {vr(g.acc[i][f] + 4 * q, 4)}, v{vo}, {sr(sP, 4)}, s{G.s_t0} offen offset:{q * 1024} sc1")
                k.e(f"s_add_u32 s{G.s_t0}, s{G.s_t0}, 4096")
        k.e("s_waitcnt vmcnt(0)")
        k.e("s_barrier")
        vf, vb = flag_regs(k)
        Ls = k.label("noflag")
        k.e(f"s_cmp_lg_u32 s{G.s_wave}, 0")
        k.e(f"s_cbranch_scc1 {Ls}")
        k.e("s_mov_b64 exec, 1")
        k.e(f"buffer_atomic_or v{vb}, v{vf}, {sr(sD, 4)}, 0 offen")
        k.e("s_mov_b64 exec, -1")
        k.place(Ls)

    def epi_final(k, G, g):
        vf, vb = flag_regs(k)
        vr_ = k.v()
        Lp, Lok = k.label("poll"), k.label("ok")
        k.e(f"s_mov_b32 s{G.s_t0}, 0x400000")
        k.place(Lp)
        k.e(f"buffer_load_dword v{vr_}, v{vf}, {sr(sD, 4)}, 0 offen sc1")
        k.e("s_waitcnt vmcnt(0)")
        k.e(f"v_and_b32 v{vr_}, v{vr_}, v{vb}")
        k.e(f"v_cmp_ne_u32 vcc, 0, v{vr_}")
        k.e(f"s_cbranch_vccnz {Lok}")
        k.e("s_sleep 2")
        k.e(f"s_sub_u32 s{G.s_t0}, s{G.s_t0}, 1")
        k.e(f"s_cmp_lg_u32 s{G.s_t0}, 0")
        k.e(f"s_cbranch_scc1 {Lp}")
        k.place(Lok)
        k.e("s_barrier")
        vo = part_addr(k, G)
        tmp = g.fx[0][0]
        frag = [r for st in g.fx for r in st] + [r for st in g.fw for r in st]
        idx = 0
        loads = []
        for i in range(g.TM):
            for f in range(g.TN):
                for q in range(4):
                    d = frag[idx]
                    idx += 1
                    k.e(f"buffer_load_dwordx4 {vr(d, 4)}, v{vo}, {sr(sP, 4)}, s{G.s_t0} offen offset:{q * 1024} sc1")
                    loads.append((g.acc[i][f] + 4 * q, d))
                k.e(f"s_add_u32 s{G.s_t0}, s{G.s_t0}, 4096")
        for n, (a, d) in enumerate(loads):
            k.e(f"s_waitcnt vmcnt({len(loads) - 1 - n})")
            for r in range(4):
                k.e(f"v_add_f32 v{a + r}, v{a + r}, v{d + r}")
        epi_rowmajor(k, G, g)

    CFG = (2, 2, 2, 2, 64, 5, 2)
    k.e("s_cmp_ge_u32 s2, 128")
    k.e(f"s_cbranch_scc1 {Lc}")
    g1 = Gemm(G, *CFG, "T", epi_partial)
    g1.kx0, g1.kw0 = N1_OUT * 16384, N1_OUT * 64 * 2048
    g1.nstores = 0
    last = run_chain(k, G, [
        (j_in(WS_CTX, 16 * MB, pBWO, 4096 * 1024 * 2, 64 - N1_OUT, 20), lambda: None, g1),
        (j_in(WS_OA, 4 * MB, pAWO, 1024 * 1024 * 2, 16, 18), j_out(0), Gemm(G, *CFG, "T", epi_rowmajor)),
    ])
    last.epilogue()
    G.prof.tot_end()
    G.prof.dump(pWS, G.sX, G.vt[0], G.vt[1])
    k.e(f"s_branch {Lend}")
    k.place(Lc)
    last = run_chain(k, G, [
        (j_in(WS_CTX, 16 * MB, pBWO, 4096 * 1024 * 2, N1_OUT, 20), j_out(2048), Gemm(G, *CFG, "T", epi_final)),
    ])
    last.epilogue()
    G.prof.tot_end()
    G.prof.dump(pWS, G.sX, G.vt[0], G.vt[1])
    k.place(Lend)
    k.e("s_endpgm")
    return k


def kern_out_full(nw):
    k = K("outp_kernel")
    G = GemmCtx(k)
    G.epi_base = 120 * 1024
    G.kxstep = 16384
    pWS, pOUT, pBWO, pAWO = [k.s(2) for _ in range(4)]
    s_tm, s_tn, s_t = k.s(), k.s(), k.s()
    Lend = k.label("end")
    k.e("s_cmp_ge_u32 s2, 256")
    k.e(f"s_cbranch_scc1 {Lend}")
    for p, off in ((pWS, KA_WS), (pOUT, KA_OUT), (pBWO, KA_BWO), (pAWO, KA_AWO)):
        load_ptr(k, p, off)
    G.init_ids()
    k.e(f"s_and_b32 s{s_tm}, s2, 3")
    k.e(f"s_lshl_b32 s{s_tm}, s{s_tm}, 2")
    k.e(f"s_bfe_u32 s{s_t}, s2, 0x20003")
    k.e(f"s_add_u32 s{s_tm}, s{s_tm}, s{s_t}")
    k.e(f"s_bfe_u32 s{s_tn}, s2, 0x10002")
    k.e(f"s_lshl_b32 s{s_tn}, s{s_tn}, 3")
    k.e(f"s_lshr_b32 s{s_t}, s2, 5")
    k.e(f"s_add_u32 s{s_tn}, s{s_tn}, s{s_t}")
    k.e("s_waitcnt lgkmcnt(0)")
    G.prof = Prof(k, 6)
    G.prof.start()
    G.prof.tot_start()

    def j_in(wsoff, xsz, pw_, wsz, ldx, nt, sh):
        def f():
            make_srd(k, G.sX, pWS, wsoff, xsz)
            make_srd(k, G.sW, pw_, 0, wsz)
            k.e(f"s_mov_b32 s{G.ldx}, {ldx}")
            k.e(f"s_mov_b32 s{G.ldw}, 2048")
            k.e(f"s_mov_b32 s{G.nt}, {nt}")
            k.e(f"s_lshl_b32 s{G.tm_off}, s{s_tm}, {sh}")
            k.e(f"s_lshl_b32 s{G.tn_off}, s{s_tn}, 7")
        return f

    def j_out(col):
        def f():
            make_srd(k, G.sO, pOUT, 0, 2048 * 2048 * 2)
            k.e(f"s_mov_b32 s{G.scale}, 1.0")
            k.e(f"s_mov_b32 s{G.ldo}, 4096")
            k.e(f"s_lshl_b32 s{G.obase}, s{s_tm}, 19")
            k.e(f"s_lshl_b32 s{s_t}, s{s_tn}, 7")
            k.e(f"s_add_u32 s{G.obase}, s{G.obase}, s{s_t}")
            if col:
                k.e(f"s_add_u32 s{G.obase}, s{G.obase}, {col}")
        return f

    CFG = (4, 2, 1, 1, 64, 5, 2) if nw == 8 else (2, 2, 2, 1, 64, 5, 2)
    last = run_chain(k, G, [
        (j_in(WS_CTX, 16 * MB, pBWO, 4096 * 1024 * 2, 128, 64, 20), j_out(2048), Gemm(G, *CFG, "T", epi_rowmajor)),
        (j_in(WS_OA, 4 * MB, pAWO, 1024 * 1024 * 2, 128, 16, 18), j_out(0), Gemm(G, *CFG, "T", epi_rowmajor)),
    ])
    last.epilogue()
    G.prof.tot_end()
    G.prof.dump(pWS, G.sX, G.vt[0], G.vt[1])
    k.place(Lend)
    k.e("s_endpgm")
    return k


NEG_INF = "0xff800000"
NWG_A = 512
CB = math.log2(math.e) / math.sqrt(128.0)
CA = math.log2(math.e) / math.sqrt(32.0)
THR = float(os.environ.get("THR", "32"))


def f32hex(x):
    import struct

    return "0x%08x" % struct.unpack("<I", struct.pack("<f", x))[0]


def weave(k, main, fills):
    for ln in fills.get(-1, []):
        k.e(ln)
    for i, m in enumerate(main):
        k.e(m)
        for ln in fills.get(i, []):
            k.e(ln)


def max_tree(S, n, vt):
    out = [f"v_max3_f32 v{vt}, v{S}, v{S + 1}, v{S + 2}"]
    i = 3
    while i + 1 < n:
        out.append(f"v_max3_f32 v{vt}, v{vt}, v{S + i}, v{S + i + 1}")
        i += 2
    if i < n:
        out.append(f"v_max_f32 v{vt}, v{vt}, v{S + i}")
    return out


def xhalf_max(k, vt0, vt1):
    k.e(f"v_mov_b32 v{vt1}, v{vt0}")
    k.e("s_nop 1")
    k.e(f"v_permlane32_swap_b32 v{vt0}, v{vt1}")
    k.e("s_nop 1")
    k.e(f"v_max_f32 v{vt0}, v{vt0}, v{vt1}")


def first_tile_norm(k, S, CI, vt0, vt1):
    for ln in max_tree(S, 32, vt0):
        k.e(ln)
    xhalf_max(k, vt0, vt1)
    for r in range(32):
        k.e(f"v_sub_f32 v{S + r}, v{S + r}, v{vt0}")
    k.e(f"v_sub_f32 v{vt1}, 0, v{vt0}")
    for r in range(16):
        k.e(f"v_mov_b32 v{CI + r}, v{vt1}")


def check_rescale(k, Sn, CI, O, nO, lacc, vt0, vt1, lsum_mfma=False):
    xhalf_max(k, vt0, vt1)
    k.e(f"v_cmp_lt_f32 vcc, {THR}, v{vt0}") if THR in (0.5, 1.0, 2.0, 4.0) else k.e(
        f"v_cmp_lt_f32 vcc, {f32hex(THR)}, v{vt0}")
    Ls = k.label("nors")
    k.e(f"s_cbranch_vccz {Ls}")
    k.e(f"v_max_f32 v{vt0}, 0, v{vt0}")
    k.e(f"v_sub_f32 v{vt1}, 0, v{vt0}")
    k.e(f"v_exp_f32 v{vt1}, v{vt1}")
    for r in range(32):
        k.e(f"v_sub_f32 v{Sn + r}, v{Sn + r}, v{vt0}")
    for r in range(16):
        k.e(f"v_sub_f32 v{CI + r}, v{CI + r}, v{vt0}")
    k.e("s_nop 7")
    k.e(f"v_mul_f32 v{lacc}, v{lacc}, v{vt1}")
    if not lsum_mfma:
        k.e(f"v_mul_f32 v{lacc + 1}, v{lacc + 1}, v{vt1}")
    for r in range(nO):
        k.e(f"v_mul_f32 v{O + r}, v{O + r}, v{vt1}")
    k.e("s_nop 1")
    k.place(Ls)


def finish_store(k, O, ntile, lacc, vt0, vt1, vo, srd, soff, lsum_mfma=False, s_bad=None, lowchk=False, soff2=None):
    def chk(v):
        if s_bad is None:
            return
        k.e(f"v_mov_b32 v{vt1}, {f32hex(LSAFE)}")
        k.e(f"v_cmp_nlt_f32 vcc, v{v}, v{vt1}")
        k.e("s_nop 1")
        k.e(f"s_or_b32 s{s_bad}, s{s_bad}, vcc_lo")
        k.e(f"s_or_b32 s{s_bad}, s{s_bad}, vcc_hi")
        if lowchk:
            k.e(f"v_mov_b32 v{vt1}, {f32hex(2.0 ** -60)}")
            k.e(f"v_cmp_ngt_f32 vcc, v{v}, v{vt1}")
            k.e("s_nop 1")
            k.e(f"s_or_b32 s{s_bad}, s{s_bad}, vcc_lo")
            k.e(f"s_or_b32 s{s_bad}, s{s_bad}, vcc_hi")

    if lsum_mfma:
        chk(lacc)
        k.e(f"v_rcp_f32 v{vt0}, v{lacc}")
    else:
        k.e(f"v_add_f32 v{vt0}, v{lacc}, v{lacc + 1}")
        k.e(f"v_mov_b32 v{vt1}, v{vt0}")
        k.e("s_nop 1")
        k.e(f"v_permlane32_swap_b32 v{vt0}, v{vt1}")
        k.e("s_nop 1")
        k.e(f"v_add_f32 v{vt0}, v{vt0}, v{vt1}")
        chk(vt0)
        k.e(f"v_rcp_f32 v{vt0}, v{vt0}")
    k.e("s_nop 0")
    for dt in range(ntile):
        a = O + 16 * dt
        tt = a
        for r in range(16):
            k.e(f"v_mul_f32 v{a + r}, v{a + r}, v{vt0}")
        for j in range(8):
            k.e(f"v_cvt_pk_bf16_f32 v{tt + j}, v{a + 2 * j}, v{a + 2 * j + 1}")
        k.e("s_nop 1")
        k.e(f"v_permlane32_swap_b32 v{tt}, v{tt + 2}")
        k.e(f"v_permlane32_swap_b32 v{tt + 1}, v{tt + 3}")
        k.e(f"v_permlane32_swap_b32 v{tt + 4}, v{tt + 6}")
        k.e(f"v_permlane32_swap_b32 v{tt + 5}, v{tt + 7}")
        k.e("s_nop 1")
        so = soff if dt < 2 else soff2
        k.e(f"buffer_store_dwordx4 {vr(tt, 4)}, v{vo}, {sr(srd, 4)}, s{so} offen offset:{(dt & 1) * 64}")
        k.e(f"buffer_store_dwordx4 {vr(tt + 4, 4)}, v{vo}, {sr(srd, 4)}, s{so} offen offset:{(dt & 1) * 64 + 32}")
    k.e("s_nop 1")


KT = 16640
ABASE = 4 * KT
VOTE_OFF = 0
ATTN_LDS = ABASE + 3 * 16384
FASTMAX = int(os.environ.get("FASTMAX", "1"))
AONES = int(os.environ.get("AONES", "0"))
PREFETCH = int(os.environ.get("PREFETCH", "1"))
LSAFE = float(os.environ.get("LSAFE", str(2.0 ** 100)))


def kern_attn():
    k = K("attn_kernel")
    Lend = k.label("end")
    k.e("s_cmp_ge_u32 s2, 256")
    k.e(f"s_cbranch_scc1 {Lend}")
    pw = k.s(2)
    load_ptr(k, pw, KA_WS)
    pf0, pf1 = k.s(2), k.s(2)
    load_ptr(k, pf0, KA_BWO)
    load_ptr(k, pf1, KA_AWO)
    sQ, sK, sV, sO = k.s(4), k.s(4), k.s(4), k.s(4)
    s_wave = k.s()
    s_t0, s_t1 = k.s(), k.s()
    s_pass = k.s()
    s_wave0, s_bad = k.s(), k.s()
    v_lane, vt0, vt1, vt2 = k.v(), k.v(), k.v(), k.v()
    k.e(f"v_and_b32 v{v_lane}, 63, v0")
    k.e(f"v_lshrrev_b32 v{vt0}, 6, v0")
    k.e("s_nop 0")
    k.e(f"v_readfirstlane_b32 s{s_wave0}, v{vt0}")
    k.e(f"s_mov_b32 s{s_bad}, 0")
    k.e("s_waitcnt lgkmcnt(0)")
    save_v, save_s = k.vn, k.sn
    AST = 16384

    def role_b(fast, Ldone):
        if PRIO < 0:
            k.e(f"s_setprio {-PRIO}")
        k.e(f"s_mov_b32 s{s_wave}, s{s_wave0}")
        make_srd(k, sQ, pw, WS_QB, 16 * MB)
        make_srd(k, sK, pw, WS_KB, 16 * MB)
        make_srd(k, sV, pw, WS_VB, 16 * MB)
        make_srd(k, sO, pw, WS_CTX, 16 * MB)
        s_head, s_qb, s_q0, s_nt, s_kt, s_koff, s_voff, s_mdst = [k.s() for _ in range(8)]
        sm = [k.s(2) for _ in range(4)]
        pr = Prof(k, 6)
        pr.tot_start()
        k.e(f"s_and_b32 s{s_head}, s2, 31")
        k.e(f"s_lshr_b32 s{s_qb}, s2, 5")
        k.e(f"s_sub_u32 s{s_qb}, 15, s{s_qb}")
        Q = k.v(32, 4)
        O = k.v(64, 4)
        SS = [k.v(32, 4), k.v(32, 4)]
        P = k.v(16, 4)
        CI = k.v(16, 4)
        F = [k.v(4, 4) for _ in range(8)]
        lacc = k.v(2, 2)
        vq, vh4, vdiff = k.v(), k.v(), k.v()
        vdk, vdv, ak, avh = k.v(), k.v(), k.v(), k.v()
        k.e(f"v_lshrrev_b32 v{vt2}, 5, v{v_lane}")
        k.e(f"v_lshlrev_b32 v{vh4}, 2, v{vt2}")
        k.e(f"v_lshrrev_b32 v{vt0}, 4, v{v_lane}")
        k.e(f"v_lshlrev_b32 v{vt0}, 12, v{vt0}")
        k.e(f"v_and_b32 v{vt1}, 15, v{v_lane}")
        k.e(f"v_lshl_add_u32 v{vt0}, v{vt1}, 4, v{vt0}")
        k.e(f"s_lshl_b32 s{s_t0}, s{s_wave}, 10")
        k.e(f"v_add_u32 v{vdk}, s{s_t0}, v{vt0}")
        k.e(f"v_lshrrev_b32 v{vt0}, 4, v{v_lane}")
        k.e(f"v_lshlrev_b32 v{vt0}, 4, v{vt0}")
        k.e(f"v_bfe_u32 v{vt1}, v{v_lane}, 3, 1")
        k.e(f"v_lshl_add_u32 v{vt0}, v{vt1}, 6, v{vt0}")
        k.e(f"s_lshl_b32 s{s_t0}, s{s_wave}, 2")
        k.e(f"v_lshlrev_b32 v{vt1}, 3, v{vt1}")
        k.e(f"v_add_u32 v{vt1}, s{s_t0}, v{vt1}")
        k.e(f"v_and_b32 v{vt1}, 15, v{vt1}")
        k.e(f"v_add_u32 v{vt0}, v{vt0}, v{vt1}")
        k.e(f"v_lshlrev_b32 v{vt0}, 7, v{vt0}")
        k.e(f"v_and_b32 v{vt1}, 7, v{v_lane}")
        k.e(f"v_lshl_add_u32 v{vdv}, v{vt1}, 4, v{vt0}")
        k.e(f"v_and_b32 v{vt0}, 15, v{v_lane}")
        k.e(f"v_mul_u32_u24 v{vt1}, 1040, v{vt0}")
        k.e(f"v_bfe_u32 v{vt2}, v{v_lane}, 4, 1")
        k.e(f"v_lshlrev_b32 v{vt2}, 8, v{vt2}")
        k.e(f"v_lshl_add_u32 v{vt2}, v{vh4}, 2, v{vt2}")
        k.e(f"v_add_u32 v{ak}, v{vt1}, v{vt2}")
        k.e(f"v_add_u32 v{vt0}, 8, v{vt0}")
        k.e(f"v_and_b32 v{vt0}, 15, v{vt0}")
        k.e(f"v_mul_u32_u24 v{vt1}, 1040, v{vt0}")
        k.e(f"v_add_u32 v{vt1}, {2 * KT + 128}, v{vt1}")
        k.e(f"v_add_u32 v{avh}, v{vt1}, v{vt2}")
        k.e(f"s_mul_i32 s{s_mdst}, s{s_wave}, {4 * 1040}")

        def dmaK(st):
            out = []
            for jj in range(4):
                out.append([f"s_add_u32 m0, s{s_mdst}, {st * KT + jj * 1040 - jj * 256}", "s_nop 0",
                            f"buffer_load_dwordx4 v{vdk}, {sr(sK, 4)}, s{s_koff} offen offset:{jj * 256} lds"])
            out[-1].append(f"s_add_u32 s{s_koff}, s{s_koff}, 16384")
            return out

        def dmaV(st):
            out = []
            for jj in range(4):
                out.append([f"s_add_u32 m0, s{s_mdst}, {(2 + st) * KT + jj * 1040 - jj * 128}", "s_nop 0",
                            f"buffer_load_dwordx4 v{vdv}, {sr(sV, 4)}, s{s_voff} offen offset:{jj * 128} lds"])
            out[-1].append(f"s_add_u32 s{s_voff}, s{s_voff}, 16384")
            return out

        def block_loads():
            k.e(f"s_lshl_b32 s{s_q0}, s{s_qb}, 7")
            k.e(f"s_lshl_b32 s{s_t0}, s{s_wave}, 5")
            k.e(f"s_add_u32 s{s_q0}, s{s_q0}, s{s_t0}")
            k.e(f"s_lshl_b32 s{s_koff}, s{s_head}, 19")
            k.e(f"s_mov_b32 s{s_voff}, s{s_koff}")
            k.e(f"v_and_b32 v{vt0}, 31, v{v_lane}")
            k.e(f"v_add_u32 v{vt0}, s{s_q0}, v{vt0}")
            k.e(f"v_lshlrev_b32 v{vt1}, 8, v{vt0}")
            k.e(f"v_lshl_add_u32 v{vt1}, v{vh4}, 2, v{vt1}")
            for ds in range(8):
                k.e(f"buffer_load_dwordx4 {vr(Q + 4 * ds, 4)}, v{vt1}, {sr(sQ, 4)}, s{s_koff} offen offset:{ds * 32}")
            for g in dmaK(0) + dmaK(1) + dmaV(0):
                for ln in g:
                    k.e(ln)

        def kread(n, st):
            kk, ds = n // 8, n % 8
            return f"ds_read_b128 {vr(F[n % 8], 4)}, v{ak} offset:{st * KT + kk * 512 + ds * 32}"

        vseq = [(dt, g) for g in range(4) for dt in range(4)]

        def vread(n, st):
            dt, g = vseq[n]
            if dt < 2:
                return f"ds_read_b128 {vr(F[n % 8], 4)}, v{ak} offset:{(2 + st) * KT + dt * 512 + g * 32}"
            return f"ds_read_b128 {vr(F[n % 8], 4)}, v{avh} offset:{st * KT + (dt - 2) * 512 + g * 32}"

        def qk_mfma(n, Sd, cinit):
            kk, ds = n // 8, n % 8
            cin = cinit if ds == 0 else vr(Sd + 16 * kk, 16)
            return f"v_mfma_f32_32x32x16_bf16 {vr(Sd + 16 * kk, 16)}, {vr(F[n % 8], 4)}, {vr(Q + 4 * ds, 4)}, {cin}"

        def pv_mfma(n):
            dt, g = vseq[n]
            return f"v_mfma_f32_32x32x16_bf16 {vr(O + 16 * dt, 16)}, {vr(F[n % 8], 4)}, {vr(P + 4 * g, 4)}, {vr(O + 16 * dt, 16)}"

        def mask_ops(Sn):
            out = [f"v_subrev_u32 v{vdiff}, s{s_t1}, v{vq}", f"v_sub_u32 v{vdiff}, v{vdiff}, v{vh4}",
                   f"v_mov_b32 v{vt2}, {NEG_INF}"]
            for q in range(8):
                for j in range(4):
                    r = 4 * q + j
                    cst = 32 * (r >> 4) + 8 * ((r & 15) >> 2) + (r & 3)
                    out.append(f"v_cmp_gt_i32 {sr(sm[j], 2)}, {cst}, v{vdiff}")
                for j in range(4):
                    r = 4 * q + j
                    out.append(f"v_cndmask_b32 v{Sn + r}, v{Sn + r}, v{vt2}, {sr(sm[j], 2)}")
            return out

        def phase_qk(Sn, stK, Sc, cinit, dm=()):
            dm = list(dm)
            for n in range(8):
                k.e(kread(n, stK))
            for n in range(16):
                if n % 4 == 0:
                    k.e("s_waitcnt lgkmcnt(4)" if n < 12 else "s_waitcnt lgkmcnt(0)")
                k.e(qk_mfma(n, Sn, cinit))
                if n % 4 == 3 and n + 5 < 16:
                    for m in range(n + 5, n + 9):
                        k.e(kread(m, stK))
                if n % 4 != 3 and dm:
                    for ln in dm.pop(0):
                        k.e(ln)
                if Sc is not None:
                    k.e(f"v_exp_f32 v{Sc + 2 * n}, v{Sc + 2 * n}")
                    k.e(f"v_exp_f32 v{Sc + 2 * n + 1}, v{Sc + 2 * n + 1}")
                    if n > 0:
                        k.e(f"v_cvt_pk_bf16_f32 v{P + n - 1}, v{Sc + 2 * n - 2}, v{Sc + 2 * n - 1}")
            if Sc is not None:
                k.e(f"v_cvt_pk_bf16_f32 v{P + 15}, v{Sc + 30}, v{Sc + 31}")

        def phase_pv(Sc, stV, Sn, masked):
            for n in range(8):
                k.e(vread(n, stV))
            mt = max_tree(Sn, 32, vt0) if (Sn is not None and not fast) else []
            mk = mask_ops(Sn) if masked else []
            for n in range(16):
                if n % 4 == 0:
                    k.e("s_waitcnt lgkmcnt(4)" if n < 12 else "s_waitcnt lgkmcnt(0)")
                k.e(pv_mfma(n))
                if n % 4 == 3 and n + 5 < 16:
                    for m in range(n + 5, n + 9):
                        k.e(vread(m, stV))
                k.e(f"v_add_f32 v{lacc}, v{lacc}, v{Sc + 2 * n}")
                k.e(f"v_add_f32 v{lacc + 1}, v{lacc + 1}, v{Sc + 2 * n + 1}")
                if masked:
                    if n == 6:
                        for ln in mk:
                            k.e(ln)
                    if n >= 7:
                        for _ in range(2):
                            if mt:
                                k.e(mt.pop(0))
                elif n >= 4:
                    for _ in range(2 if n < 8 else 1):
                        if mt:
                            k.e(mt.pop(0))
            for ln in mt:
                k.e(ln)

        def full(par):
            Sc, Sn = SS[par], SS[par ^ 1]
            phase_qk(Sn, par ^ 1, Sc, vr(CI, 16), dmaK(par) + dmaV(par ^ 1))
            pr.stamp(0)
            Lm, Lj = k.label("msk"), k.label("join")
            k.e(f"s_add_u32 s{s_t0}, s{s_kt}, 3")
            k.e(f"s_cmp_ge_u32 s{s_t0}, s{s_nt}")
            k.e(f"s_cbranch_scc1 {Lm}")
            phase_pv(Sc, par, Sn, False)
            k.e(f"s_branch {Lj}")
            k.place(Lm)
            k.e(f"s_lshl_b32 s{s_t1}, s{s_kt}, 6")
            k.e(f"s_add_u32 s{s_t1}, s{s_t1}, 64")
            phase_pv(Sc, par, Sn, True)
            k.place(Lj)
            pr.stamp(1)
            if not fast:
                check_rescale(k, Sn, CI, O, 64, lacc, vt0, vt1)
            k.e(f"s_add_u32 s{s_kt}, s{s_kt}, 1")
            pr.stamp(2)
            k.e("s_waitcnt vmcnt(0)")
            pr.stamp(3)
            k.e("s_barrier")
            pr.stamp(4)

        block_loads()
        LBtop = k.label("btop")
        k.place(LBtop)
        k.e(f"v_and_b32 v{vt0}, 31, v{v_lane}")
        k.e(f"v_add_u32 v{vq}, s{s_q0}, v{vt0}")
        k.e(f"s_lshl_b32 s{s_nt}, s{s_qb}, 1")
        k.e(f"s_add_u32 s{s_nt}, s{s_nt}, 2")
        for r in range(64):
            k.e(f"v_mov_b32 v{O + r}, 0")
        k.e(f"v_mov_b32 v{lacc}, 0")
        k.e(f"v_mov_b32 v{lacc + 1}, 0")
        k.e(f"s_mov_b32 s{s_kt}, 0")
        k.e("s_waitcnt vmcnt(0)")
        k.e("s_barrier")
        phase_qk(SS[0], 0, None, "0")
        k.e("s_nop 15")
        Lnm = k.label("nm0")
        k.e(f"s_cmp_lg_u32 s{s_nt}, 2")
        k.e(f"s_cbranch_scc1 {Lnm}")
        k.e(f"s_mov_b32 s{s_t1}, 0")
        for ln in mask_ops(SS[0]):
            k.e(ln)
        k.place(Lnm)
        first_tile_norm(k, SS[0], CI, vt0, vt1)
        k.e("s_barrier")
        Lloop, Llast = k.label("bloop"), k.label("blast")
        pr.start()
        k.e(f"s_cmp_eq_u32 s{s_nt}, 2")
        k.e(f"s_cbranch_scc1 {Llast}")
        k.place(Lloop)
        full(0)
        full(1)
        k.e(f"s_add_u32 s{s_t0}, s{s_kt}, 2")
        k.e(f"s_cmp_lt_u32 s{s_t0}, s{s_nt}")
        k.e(f"s_cbranch_scc1 {Lloop}")
        k.place(Llast)
        full(0)
        Lnp = k.label("nopf")
        k.e(f"s_sub_u32 s{s_qb}, 15, s{s_qb}")
        k.e(f"s_cmp_lg_u32 s{s_pass}, 0")
        k.e(f"s_cbranch_scc1 {Lnp}")
        block_loads()
        k.place(Lnp)
        Sc = SS[1]
        for n in range(16):
            k.e(f"v_exp_f32 v{Sc + 2 * n}, v{Sc + 2 * n}")
            k.e(f"v_exp_f32 v{Sc + 2 * n + 1}, v{Sc + 2 * n + 1}")
            if n > 0:
                k.e(f"v_cvt_pk_bf16_f32 v{P + n - 1}, v{Sc + 2 * n - 2}, v{Sc + 2 * n - 1}")
        k.e("s_nop 0")
        k.e(f"v_cvt_pk_bf16_f32 v{P + 15}, v{Sc + 30}, v{Sc + 31}")
        phase_pv(Sc, 1, None, False)
        k.e("s_nop 15")
        k.e(f"v_lshrrev_b32 v{vt0}, 7, v{vq}")
        k.e(f"v_lshlrev_b32 v{vdiff}, 20, v{vt0}")
        k.e(f"v_and_b32 v{vt0}, 127, v{vq}")
        k.e(f"v_lshl_add_u32 v{vdiff}, v{vt0}, 7, v{vdiff}")
        k.e(f"v_lshl_add_u32 v{vdiff}, v{vh4}, 2, v{vdiff}")
        k.e(f"s_lshl_b32 s{s_t0}, s{s_head}, 15")
        k.e(f"s_add_u32 s{s_t1}, s{s_t0}, 16384")
        finish_store(k, O, 4, lacc, vt0, vt1, vdiff, sO, s_t0, s_bad=s_bad if fast else None, soff2=s_t1)
        k.e(f"s_add_u32 s{s_pass}, s{s_pass}, 1")
        k.e(f"s_cmp_lt_u32 s{s_pass}, 2")
        k.e(f"s_cbranch_scc1 {LBtop}")
        pr.tot_end()
        pr.dump(pw, sQ, vt0, vt1)
        k.e(f"s_branch {Ldone}")
        k.vn, k.sn = save_v, save_s

    def role_a(fast, Ldone):
        if PRIO > 0:
            k.e(f"s_setprio {PRIO}")
        k.e(f"s_sub_u32 s{s_wave}, s{s_wave0}, 4")
        make_srd(k, sQ, pw, WS_QA, 4 * MB)
        make_srd(k, sK, pw, WS_KA, 2048 * 64)
        make_srd(k, sV, pw, WS_VA, 2048 * 64)
        make_srd(k, sO, pw, WS_OA, 4 * MB)
        s_hg, s_q0, s_kb, s_go, s_ho, s_dst, s_cur, s_nxt, s_wdst = [k.s() for _ in range(9)]
        pa = Prof(k, 6)
        pa.tot_start()
        NH = 2 if fast else 1
        Q = [k.v(8, 4) for _ in range(NH)]
        O = [k.v(16, 4) for _ in range(NH)]
        LS = [k.v(16, 4) for _ in range(NH)]
        SS = [k.v(32, 4), k.v(32, 4)]
        P2 = [k.v(16, 4) for _ in range(NH)]
        CI = k.v(16, 4)
        KF = k.v(16, 4)
        VF = k.v(16, 4)
        ONES = k.v(4, 4)
        vqo, vdm = k.v(), k.v()
        ba = [k.v(), k.v()]
        ac = [k.v(), k.v()]
        an = [k.v(), k.v()]
        LAtop = k.label("atop")
        k.place(LAtop)
        k.e(f"s_and_b32 s{s_q0}, s2, 15")
        k.e(f"s_lshr_b32 s{s_hg}, s2, 4")
        k.e(f"s_lshl_b32 s{s_hg}, s{s_hg}, 1")
        k.e(f"s_add_u32 s{s_hg}, s{s_hg}, s{s_pass}")
        k.e(f"s_lshl_b32 s{s_q0}, s{s_q0}, 7")
        k.e(f"s_lshl_b32 s{s_t0}, s{s_wave}, 5")
        k.e(f"s_add_u32 s{s_q0}, s{s_q0}, s{s_t0}")
        k.e(f"s_lshl_b32 s{s_ho}, s{s_hg}, 6")
        k.e(f"v_and_b32 v{vt0}, 31, v{v_lane}")
        k.e(f"v_lshrrev_b32 v{vt2}, 5, v{v_lane}")
        k.e(f"v_add_u32 v{vt1}, s{s_q0}, v{vt0}")
        k.e(f"v_lshlrev_b32 v{vt1}, 11, v{vt1}")
        k.e(f"v_lshl_add_u32 v{vqo}, v{vt2}, 4, v{vt1}")
        for h in range(NH):
            for ks in range(2):
                k.e(f"buffer_load_dwordx4 {vr(Q[h] + 4 * ks, 4)}, v{vqo}, {sr(sQ, 4)}, s{s_ho} offen offset:{h * 64 + ks * 32}")
        k.e(f"v_bfe_u32 v{vt1}, v{v_lane}, 2, 2")
        k.e(f"v_xor_b32 v{vt1}, v{vt1}, v{vt2}")
        k.e(f"v_lshlrev_b32 v{vt0}, 6, v{vt0}")
        for x in range(2):
            k.e(f"v_xor_b32 v{vt2}, {2 * x}, v{vt1}")
            k.e(f"v_lshl_add_u32 v{ba[x]}, v{vt2}, 4, v{vt0}")
        k.e(f"v_lshrrev_b32 v{vt0}, 2, v{v_lane}")
        k.e(f"v_lshrrev_b32 v{vt1}, 4, v{v_lane}")
        k.e(f"v_xor_b32 v{vt1}, v{vt1}, v{v_lane}")
        k.e(f"v_and_b32 v{vt1}, 3, v{vt1}")
        k.e(f"v_lshlrev_b32 v{vt0}, 6, v{vt0}")
        k.e(f"v_lshl_add_u32 v{vt0}, v{vt1}, 4, v{vt0}")
        k.e(f"s_lshl_b32 s{s_wdst}, s{s_wave}, 11")
        k.e(f"v_add_u32 v{vdm}, s{s_wdst}, v{vt0}")
        k.e(f"s_mov_b32 s{s_kb}, 0")
        k.e(f"s_mov_b32 s{s_go}, 0")
        k.e(f"s_mov_b32 s{s_dst}, {ABASE}")
        k.e(f"s_mov_b32 s{s_cur}, {ABASE}")
        k.e(f"s_mov_b32 s{s_nxt}, {ABASE + AST}")

        def dmaA():
            out = [[f"s_add_u32 s{s_t0}, s{s_dst}, s{s_wdst}"]]
            for j in range(2):
                out.append([f"s_mov_b32 m0, s{s_t0}", "s_nop 0",
                            f"buffer_load_dwordx4 v{vdm}, {sr(sK, 4)}, s{s_go} offen offset:{j * 1024} lds"])
            for j in range(2):
                out.append([f"s_add_u32 m0, s{s_t0}, 8192", "s_nop 0",
                            f"buffer_load_dwordx4 v{vdm}, {sr(sV, 4)}, s{s_go} offen offset:{j * 1024} lds"])
            out.append([f"s_add_u32 s{s_go}, s{s_go}, 8192", f"s_add_u32 s{s_dst}, s{s_dst}, {AST}",
                        f"s_cmp_eq_u32 s{s_dst}, {ABASE + 3 * AST}", f"s_cselect_b32 s{s_dst}, {ABASE}, s{s_dst}"])
            return out

        for _ in range(2):
            for g in dmaA():
                for ln in g:
                    k.e(ln)
        for h in range(NH):
            for r in range(16):
                k.e(f"v_mov_b32 v{O[h] + r}, 0")
                k.e(f"v_mov_b32 v{LS[h] + r}, 0")
        for r in range(4):
            k.e(f"v_mov_b32 v{ONES + r}, 0x3f803f80")

        def kreads_l(adr, half):
            return [f"ds_read_b128 {vr(KF + 8 * kk + 4 * ks, 4)}, v{adr[ks]} offset:{half * 4096 + kk * 2048}"
                    for kk in range(2) for ks in range(2)]

        def vreads_l(adr, half):
            return [f"ds_read_b128 {vr(VF + 4 * g, 4)}, v{adr[g & 1]} offset:{8192 + half * 4096 + (g >> 1) * 2048}"
                    for g in range(4)]

        def pv_l(h, Pp):
            out = []
            for g in range(4):
                out.append(f"v_mfma_f32_32x32x16_bf16 {vr(O[h], 16)}, {vr(VF + 4 * g, 4)}, {vr(Pp + 4 * g, 4)}, {vr(O[h], 16)}")
                if AONES or not fast:
                    out.append(f"v_mfma_f32_32x32x16_bf16 {vr(LS[h], 16)}, {vr(ONES, 4)}, {vr(Pp + 4 * g, 4)}, {vr(LS[h], 16)}")
            return out

        def qk_l(h, Sb, cinit):
            out = []
            for kk in range(2):
                for ks in range(2):
                    cin = cinit if ks == 0 else vr(Sb + 16 * kk, 16)
                    out.append(f"v_mfma_f32_32x32x16_bf16 {vr(Sb + 16 * kk, 16)}, {vr(KF + 8 * kk + 4 * ks, 4)}, {vr(Q[h] + 4 * ks, 4)}, {cin}")
            return out

        def oa_addr():
            k.e(f"v_and_b32 v{vt0}, 31, v{v_lane}")
            k.e(f"v_add_u32 v{vt0}, s{s_q0}, v{vt0}")
            k.e(f"v_lshrrev_b32 v{vt1}, 7, v{vt0}")
            k.e(f"v_lshlrev_b32 v{vdm}, 18, v{vt1}")
            k.e(f"v_and_b32 v{vt0}, 127, v{vt0}")
            k.e(f"v_lshl_add_u32 v{vdm}, v{vt0}, 7, v{vdm}")
            k.e(f"v_lshrrev_b32 v{vt1}, 5, v{v_lane}")
            k.e(f"v_lshl_add_u32 v{vdm}, v{vt1}, 4, v{vdm}")
            k.e(f"s_lshr_b32 s{s_t1}, s{s_hg}, 1")
            k.e(f"s_lshl_b32 s{s_t1}, s{s_t1}, 14")
            k.e(f"s_and_b32 s{s_t0}, s{s_hg}, 1")
            k.e(f"s_lshl_b32 s{s_t0}, s{s_t0}, 6")
            k.e(f"s_add_u32 s{s_t1}, s{s_t1}, s{s_t0}")

        def set_addr():
            for x in range(2):
                k.e(f"v_add_u32 v{ac[x]}, s{s_cur}, v{ba[x]}")
                k.e(f"v_add_u32 v{an[x]}, s{s_nxt}, v{ba[x]}")

        def adv():
            k.e(f"s_mov_b32 s{s_cur}, s{s_nxt}")
            k.e(f"s_add_u32 s{s_nxt}, s{s_nxt}, {AST}")
            k.e(f"s_cmp_eq_u32 s{s_nxt}, {ABASE + 3 * AST}")
            k.e(f"s_cselect_b32 s{s_nxt}, {ABASE}, s{s_nxt}")

        def expcvt(Sc, Pc, slots, dm=(), la=None):
            dm = list(dm)
            for n in range(16):
                k.e(f"v_exp_f32 v{Sc + 2 * n}, v{Sc + 2 * n}")
                k.e(f"v_exp_f32 v{Sc + 2 * n + 1}, v{Sc + 2 * n + 1}")
                if n > 0:
                    k.e(f"v_cvt_pk_bf16_f32 v{Pc + n - 1}, v{Sc + 2 * n - 2}, v{Sc + 2 * n - 1}")
                    if la is not None:
                        k.e(f"v_add_f32 v{la}, v{la}, v{Sc + 2 * n - 2}")
                        k.e(f"v_add_f32 v{la + 1}, v{la + 1}, v{Sc + 2 * n - 1}")
                for ln in slots.get(n, []):
                    k.e(ln)
                if n >= 12 and dm:
                    for ln in dm.pop(0):
                        k.e(ln)
            for g in dm:
                for ln in g:
                    k.e(ln)
            k.e("s_nop 0")
            k.e(f"v_cvt_pk_bf16_f32 v{Pc + 15}, v{Sc + 30}, v{Sc + 31}")
            if la is not None:
                k.e(f"v_add_f32 v{la}, v{la}, v{Sc + 30}")
                k.e(f"v_add_f32 v{la + 1}, v{la + 1}, v{Sc + 31}")

        k.e("s_waitcnt vmcnt(0)")
        k.e("s_barrier")
        set_addr()
        for ln in kreads_l(ac, 0):
            k.e(ln)
        k.e("s_waitcnt lgkmcnt(0)")
        if fast:
            for h in range(2):
                for ln in qk_l(h, SS[h], "0"):
                    k.e(ln)
            k.e("s_nop 15")
            for ln in max_tree(SS[0], 32, vt0):
                k.e(ln)
            for ln in max_tree(SS[1], 32, vt2):
                k.e(ln)
            k.e(f"v_max_f32 v{vt0}, v{vt0}, v{vt2}")
            xhalf_max(k, vt0, vt1)
            for h in range(2):
                for r in range(32):
                    k.e(f"v_sub_f32 v{SS[h] + r}, v{SS[h] + r}, v{vt0}")
            k.e(f"v_sub_f32 v{vt1}, 0, v{vt0}")
            for r in range(16):
                k.e(f"v_mov_b32 v{CI + r}, v{vt1}")

            def it(h, half, do_pv=True, do_qk=True, rd=None, dm=()):
                slots = {}
                if h == 1:
                    k.e("s_waitcnt lgkmcnt(0)")
                if do_pv:
                    for i, ln in enumerate(pv_l(h ^ 1, P2[h ^ 1])):
                        slots.setdefault(i if AONES else 2 * i, []).append(ln)
                if do_qk:
                    for i, ln in enumerate(qk_l(h ^ 1, SS[h ^ 1], vr(CI, 16))):
                        slots.setdefault(8 + i, []).append(ln)
                if rd:
                    slots.setdefault(12, []).extend(rd)
                expcvt(SS[h], P2[h], slots, dm, la=None if AONES else LS[h])

            sPF = k.s(4)
            s_pfo = k.s()
            vpf = LS[0] + 8
            if PREFETCH:
                make_srd(k, sPF, pf0, 0, 4096 * 1024 * 2)
                k.e(f"s_lshl_b32 s{s_pfo}, s2, 15")
                k.e(f"s_lshl_b32 s{s_t0}, s{s_wave}, 10")
                k.e(f"s_add_u32 s{s_pfo}, s{s_pfo}, s{s_t0}")
                k.e(f"v_lshlrev_b32 v{vpf}, 4, v{v_lane}")

            def prefetch():
                if not PREFETCH:
                    return
                Lsw = k.label("pfsw")
                k.e(f"s_cmp_lg_u32 s{s_kb}, 8")
                k.e(f"s_cbranch_scc1 {Lsw}")
                make_srd(k, sPF, pf1, 0, 1024 * 1024 * 2)
                k.e(f"s_lshl_b32 s{s_pfo}, s2, 13")
                k.e(f"s_lshl_b32 s{s_t0}, s{s_wave}, 10")
                k.e(f"s_add_u32 s{s_pfo}, s{s_pfo}, s{s_t0}")
                k.place(Lsw)
                k.e(f"buffer_load_dwordx4 {vr(LS[0] + 4, 4)}, v{vpf}, {sr(sPF, 4)}, s{s_pfo} offen")
                k.e(f"s_add_u32 s{s_pfo}, s{s_pfo}, 4096")

            def stage_iter(first, last):
                if not last:
                    prefetch()
                it(0, 0, do_pv=not first, do_qk=not first, rd=vreads_l(ac, 0) + kreads_l(ac, 1))
                it(1, 0, dm=dmaA() if not last else ())
                k.e("s_barrier")
                it(0, 1, rd=vreads_l(ac, 1) + ([] if last else kreads_l(an, 0)))
                it(1, 1, do_qk=not last)
                if not last:
                    adv()
                    set_addr()
                    k.e(f"s_add_u32 s{s_kb}, s{s_kb}, 1")
                    k.e("s_waitcnt vmcnt(0) lgkmcnt(0)")
                k.e("s_barrier")

            for _ in range(3):
                k.e("s_barrier")
            pa.start()
            stage_iter(True, False)
            Lloop = k.label("aloop")
            k.place(Lloop)
            stage_iter(False, False)
            k.e(f"s_cmp_lt_u32 s{s_kb}, 15")
            k.e(f"s_cbranch_scc1 {Lloop}")
            stage_iter(False, True)
            k.e("s_nop 1")
            for ln in pv_l(1, P2[1]):
                k.e(ln)
            k.e("s_nop 15")
            oa_addr()
            for h in range(2):
                k.e(f"s_add_u32 s{s_t0}, s{s_t1}, {h * 64}")
                finish_store(k, O[h], 1, LS[h], vt0, vt1, vdm, sO, s_t0, lsum_mfma=bool(AONES), s_bad=s_bad, lowchk=True)
        else:
            for ln in qk_l(0, SS[0], "0"):
                k.e(ln)
            k.e("s_nop 15")
            first_tile_norm(k, SS[0], CI, vt0, vt1)
            k.e("s_barrier")
            P = P2[0]

            def a_iter(par, last, dm):
                Sc, Sn = SS[par], SS[par ^ 1]
                if not last:
                    for ln in kreads_l(ac if par == 0 else an, par ^ 1):
                        k.e(ln)
                for ln in vreads_l(ac, par):
                    k.e(ln)
                if not last:
                    k.e("s_waitcnt lgkmcnt(4)")
                    for ln in qk_l(0, Sn, vr(CI, 16)):
                        k.e(ln)
                expcvt(Sc, P, {}, dm)
                k.e("s_waitcnt lgkmcnt(0)")
                k.e("s_nop 0")
                for ln in pv_l(0, P):
                    k.e(ln)
                if not last:
                    for ln in max_tree(Sn, 32, vt0):
                        k.e(ln)
                    check_rescale(k, Sn, CI, O[0], 16, LS[0], vt0, vt1, lsum_mfma=True)

            Lloop = k.label("aloop")
            k.place(Lloop)
            a_iter(0, False, dmaA())
            a_iter(1, False, [])
            adv()
            set_addr()
            k.e(f"s_add_u32 s{s_kb}, s{s_kb}, 1")
            k.e("s_waitcnt vmcnt(0) lgkmcnt(0)")
            k.e("s_barrier")
            k.e(f"s_cmp_lt_u32 s{s_kb}, 15")
            k.e(f"s_cbranch_scc1 {Lloop}")
            a_iter(0, False, [])
            a_iter(1, True, [])
            k.e("s_nop 15")
            oa_addr()
            finish_store(k, O[0], 1, LS[0], vt0, vt1, vdm, sO, s_t1, lsum_mfma=True)
            k.e("s_barrier")
            k.e(f"s_add_u32 s{s_pass}, s{s_pass}, 1")
            k.e(f"s_cmp_lt_u32 s{s_pass}, 2")
            k.e(f"s_cbranch_scc1 {LAtop}")
        pa.tot_end()
        pa.dump(pw, sQ, vt0, vt1)
        k.e(f"s_branch {Ldone}")
        k.vn, k.sn = save_v, save_s

    def emit_mode(fast, Ldone):
        LA = k.label("attnA")
        k.e(f"s_mov_b32 s{s_pass}, 0")
        k.e(f"s_cmp_ge_u32 s{s_wave0}, 4")
        k.e(f"s_cbranch_scc1 {LA}")
        role_b(fast, Ldone)
        k.place(LA)
        role_a(fast, Ldone)

    Lvote = k.label("vote")
    if FASTMAX:
        emit_mode(True, Lvote)
        k.place(Lvote)
        k.e("s_barrier")
        k.e(f"v_mov_b32 v{vt0}, s{s_bad}")
        k.e(f"s_lshl_b32 s{s_t0}, s{s_wave0}, 2")
        k.e(f"v_mov_b32 v{vt1}, s{s_t0}")
        k.e(f"ds_write_b32 v{vt1}, v{vt0} offset:{VOTE_OFF}")
        k.e("s_waitcnt lgkmcnt(0)")
        k.e("s_barrier")
        k.e(f"v_and_b32 v{vt1}, 7, v{v_lane}")
        k.e(f"v_lshlrev_b32 v{vt1}, 2, v{vt1}")
        k.e(f"ds_read_b32 v{vt0}, v{vt1} offset:{VOTE_OFF}")
        k.e("s_waitcnt lgkmcnt(0)")
        k.e(f"v_cmp_ne_u32 vcc, 0, v{vt0}")
        k.e("s_barrier")
        k.e(f"s_cbranch_vccz {Lend}")
    emit_mode(False, Lend)
    k.place(Lend)
    k.e("s_endpgm")
    return k


def main():
    kernels = [
        (kern_proj(), 256, 512, 160 * 1024),
        (kern_attn(), 256, 512, ATTN_LDS),
        {"half": lambda: (kern_out(), 256, 256, 160 * 1024),
         "split": lambda: (kern_out_split(), 256, 256, 160 * 1024),
         "f8": lambda: (kern_out_full(8), 256, 512, 152 * 1024),
         "f4": lambda: (kern_out_full(4), 256, 256, 152 * 1024)}[os.environ.get("OUTMODE", "split")](),
    ]
    out = []
    for kk, g, b, lds in kernels:
        out.append(f"; @launch kernel={kk.name} grid=({g},1,1) block=({b},1,1) lds={lds}")
    out.append('.amdgcn_target "amdgcn-amd-amdhsa--gfx950"')
    out.append(".text")
    for kk, g, b, lds in kernels:
        out.append(f".globl {kk.name}")
        out.append(".p2align 8")
        out.append(f".type {kk.name},@function")
        out.append(f"{kk.name}:")
        out.append(kk.text())
    out.append('.section .rodata,"a"')
    for kk, g, b, lds in kernels:
        nv = (kk.maxv + 7) // 8 * 8
        out.append(".p2align 6")
        out.append(f".amdhsa_kernel {kk.name}")
        out.append(f"  .amdhsa_next_free_vgpr {nv}")
        out.append("  .amdhsa_next_free_sgpr 102")
        out.append(f"  .amdhsa_accum_offset {nv}")
        out.append("  .amdhsa_group_segment_fixed_size 0")
        out.append("  .amdhsa_kernarg_size 112")
        out.append("  .amdhsa_user_sgpr_count 2")
        out.append("  .amdhsa_user_sgpr_kernarg_segment_ptr 1")
        out.append("  .amdhsa_system_sgpr_workgroup_id_x 1")
        out.append(".end_amdhsa_kernel")
    path = sys.argv[1] if len(sys.argv) > 1 else f"cdna_kernels/{NAME}.s"
    open(path, "w").write("\n".join(out) + "\n")
    for kk, g, b, lds in kernels:
        print(kk.name, "vgprs", kk.maxv, "lines", len(kk.lines))


if __name__ == "__main__":
    main()
```

```python
import math
import os
import sys

PROF = int(os.environ.get("PROF", "0"))
PRIO = int(os.environ.get("PRIO", "0"))

NAME = "concat_heads__grouped_kv_mqa__compressed_kv_cla__prompt"

KA_AX, KA_AWQ, KA_AWK, KA_AWV, KA_AWO = 0, 8, 16, 24, 32
KA_BX, KA_CKV, KA_BWQ, KA_WUK, KA_WUV, KA_BWO = 40, 48, 56, 64, 72, 80
KA_OUT, KA_DBG, KA_WS = 88, 96, 104

MB = 1 << 20
PREFETCH = int(os.environ.get("PREFETCH", "1"))
PFA = int(os.environ.get("PFA", "8"))
ROLES = int(os.environ.get("ROLES", "0"))
WS_QB, WS_KB, WS_VB, WS_CTX = 0, 16 * MB, 32 * MB, 48 * MB
WS_QA, WS_OA, WS_KA, WS_VA = 64 * MB, 68 * MB, 72 * MB, 73 * MB


def log2(x):
    r = int(math.log2(x))
    assert 1 << r == x, x
    return r


class K:
    def __init__(self, name):
        self.name = name
        self.lines = []
        self.vn = 1
        self.sn = 3
        self.maxv = 1
        self.uid = 0

    def v(self, n=1, align=1):
        if n > 1 and align == 1:
            align = 2
        self.vn = (self.vn + align - 1) // align * align
        r = self.vn
        self.vn += n
        self.maxv = max(self.maxv, self.vn)
        assert self.vn <= 256, "out of vgprs"
        return r

    def s(self, n=1, align=1):
        if n == 2:
            align = max(align, 2)
        if n == 4:
            align = max(align, 4)
        self.sn = (self.sn + align - 1) // align * align
        r = self.sn
        self.sn += n
        assert self.sn <= 100, "out of sgprs"
        return r

    def e(self, t):
        self.lines.append("    " + t)

    def c(self, t):
        self.lines.append("    ; " + t)

    def label(self, base):
        self.uid += 1
        return f"L_{self.name}_{base}_{self.uid}"

    def place(self, lab):
        self.lines.append(lab + ":")

    def text(self):
        return "\n".join(self.lines)


def vr(b, n):
    return f"v[{b}:{b + n - 1}]"


def sr(b, n):
    return f"s[{b}:{b + n - 1}]"


class Prof:
    def __init__(self, k, n):
        self.k = k
        self.n = n
        if not PROF:
            return
        self.t = k.s(2)
        self.prev = k.s()
        self.acc = [k.s() for _ in range(n)]
        for a in self.acc:
            k.e(f"s_mov_b32 s{a}, 0")

    def tot_start(self):
        if PROF != 2:
            return
        k = self.k
        k.e(f"s_memtime {sr(self.t, 2)}")
        k.e("s_waitcnt lgkmcnt(0)")
        k.e(f"s_mov_b32 s{self.acc[0]}, s{self.t}")
        k.e(f"s_memrealtime {sr(self.t, 2)}")
        k.e("s_waitcnt lgkmcnt(0)")
        k.e(f"s_mov_b32 s{self.acc[1]}, s{self.t}")

    def tot_end(self):
        if PROF != 2:
            return
        k = self.k
        k.e(f"s_memtime {sr(self.t, 2)}")
        k.e("s_waitcnt lgkmcnt(0)")
        k.e(f"s_sub_u32 s{self.acc[0]}, s{self.t}, s{self.acc[0]}")
        k.e(f"s_memrealtime {sr(self.t, 2)}")
        k.e("s_waitcnt lgkmcnt(0)")
        k.e(f"s_sub_u32 s{self.acc[1]}, s{self.t}, s{self.acc[1]}")

    def start(self):
        if PROF != 1:
            return
        k = self.k
        k.e(f"s_memtime {sr(self.t, 2)}")
        k.e("s_waitcnt lgkmcnt(0)")
        k.e(f"s_mov_b32 s{self.prev}, s{self.t}")

    def stamp(self, i):
        if PROF != 1:
            return
        k = self.k
        k.e(f"s_memtime {sr(self.t, 2)}")
        k.e("s_waitcnt lgkmcnt(0)")
        k.e(f"s_sub_u32 s{self.prev}, s{self.t}, s{self.prev}")
        k.e(f"s_add_u32 s{self.acc[i]}, s{self.acc[i]}, s{self.prev}")
        k.e(f"s_mov_b32 s{self.prev}, s{self.t}")

    def dump(self, pw, srd, vtmp, vtmp2):
        if not PROF or self.k.name != os.environ.get("PROFK", "attn_kernel"):
            return
        k = self.k
        make_srd(k, srd, pw, 80 * MB, 4 * MB)
        k.e(f"v_lshrrev_b32 v{vtmp}, 6, v0")
        k.e(f"v_lshlrev_b32 v{vtmp}, 6, v{vtmp}")
        k.e(f"s_lshl_b32 s{self.prev}, s2, 9")
        for i, a in enumerate(self.acc):
            k.e(f"v_mov_b32 v{vtmp2}, s{a}")
            k.e(f"buffer_store_dword v{vtmp2}, v{vtmp}, {sr(srd, 4)}, s{self.prev} offen offset:{4 * i}")
        k.e("s_waitcnt vmcnt(0)")


def load_ptr(k, sdst, off):
    k.e(f"s_load_dwordx2 {sr(sdst, 2)}, s[0:1], {off}")


def make_srd(k, srd, sptr, off, size):
    if off:
        k.e(f"s_add_u32 s{srd}, s{sptr}, {off:#x}")
        k.e(f"s_addc_u32 s{srd + 1}, s{sptr + 1}, 0")
        k.e(f"s_and_b32 s{srd + 1}, s{srd + 1}, 0xffff")
    else:
        k.e(f"s_mov_b32 s{srd}, s{sptr}")
        k.e(f"s_and_b32 s{srd + 1}, s{sptr + 1}, 0xffff")
    k.e(f"s_mov_b32 s{srd + 2}, {size:#x}")
    k.e(f"s_mov_b32 s{srd + 3}, 0x20000")


class GemmCtx:
    def __init__(self, k):
        self.k = k
        self.sX = k.s(4)
        self.sW = k.s(4)
        self.sO = k.s(4)
        self.ldx, self.ldw, self.nt, self.tm_off, self.tn_off = [k.s() for _ in range(5)]
        self.obase, self.ldo, self.scale = [k.s() for _ in range(3)]
        self.kxstep = None
        self.s_wave = k.s()
        self.s_t0, self.s_t1 = k.s(), k.s()
        self.v_lane = k.v()
        self.vt = [k.v() for _ in range(4)]
        self.voff = [[k.v() for _ in range(8)] for _ in range(2)]
        self.sset = [[k.s() for _ in range(14)] for _ in range(2)]
        self.vpf = k.v(4, 4)
        self.vpfo = k.v()
        self.vpx, self.vpw = k.v(), k.v()
        self.s_pkw = k.s()
        self.shared_v = None
        self.flip = 0
        self.after_first = None

    def init_ids(self):
        k = self.k
        k.e(f"v_and_b32 v{self.v_lane}, 63, v0")
        k.e(f"v_lshrrev_b32 v{self.vt[0]}, 6, v0")
        k.e("s_nop 0")
        k.e(f"v_readfirstlane_b32 s{self.s_wave}, v{self.vt[0]}")
        k.e("s_nop 3")
        self.shared_v = k.vn


class Gemm:
    def __init__(self, G, WM, WN, TM, TN, BK, NSTAGE, ACROSS, form, epi, role=None):
        self.G, self.k = G, G.k
        self.role = role
        self.WM, self.WN, self.TM, self.TN, self.BK, self.NSTAGE, self.ACROSS = WM, WN, TM, TN, BK, NSTAGE, ACROSS
        self.form, self.epi = form, epi
        self.NW = WM * WN
        self.BM, self.BN = WM * TM * 32, WN * TN * 32
        self.RX, self.RW = BK * 2, self.BN * 2
        self.CX = self.RX // 16
        self.SX = {64: 2, 128: 1}[self.RX]
        self.XB, self.WB = self.BM * self.RX, BK * self.RW
        self.STAGE = self.XB + self.WB
        self.KS = BK // 16
        NWL = 4 if role else self.NW
        self.NXI = self.XB // 1024 // NWL
        self.NWI = self.WB // 1024 // NWL
        assert self.NXI * 1024 * NWL == self.XB and self.NWI * 1024 * NWL == self.WB
        self.D = self.NXI + self.NWI
        assert self.D <= 8
        self.LEAD = NSTAGE - 1
        self.CERT = 2 if ACROSS else 1
        self.FULL = ACROSS == 2
        self.nstores = 2 * TM * TN
        self.ahead = 0

    def _wswz(self, vdst, vkrow):
        k = self.k
        if self.RW >= 256:
            k.e(f"v_and_b32 v{vdst}, 3, v{vkrow}")
        elif self.RW == 128:
            k.e(f"v_lshrrev_b32 v{vdst}, 1, v{vkrow}")
            k.e(f"v_and_b32 v{vdst}, 1, v{vdst}")
        else:
            k.e(f"v_mov_b32 v{vdst}, 0")

    def setup_dma(self):
        k, G = self.k, self.G
        v_lane = G.v_lane
        v_t0, v_t1, v_t2, v_t3 = G.vt
        s_t0, s_wave = G.s_t0, G.s_wave
        regs = G.voff[G.flip]
        sregs = G.sset[G.flip]
        G.flip ^= 1
        self.vox = regs[:self.NXI]
        self.vow = regs[self.NXI:self.NXI + self.NWI]
        LPR, RPI = self.RX // 16, 1024 // self.RX
        if self.role == "pref":
            k.e(f"s_and_b32 s{s_t0}, s{G.s_ptn}, 3")
            k.e(f"s_lshl_b32 s{s_t0}, s{s_t0}, 2")
            k.e(f"s_add_u32 s{s_t0}, s{s_t0}, s{s_wave}")
            k.e(f"s_sub_u32 s{s_t0}, s{s_t0}, 4")
            k.e(f"s_lshl_b32 s{s_t0}, s{s_t0}, 4")
            k.e(f"v_lshrrev_b32 v{v_t0}, 2, v{v_lane}")
            k.e(f"v_add_u32 v{v_t0}, s{s_t0}, v{v_t0}")
            k.e(f"v_mul_lo_u32 v{v_t0}, v{v_t0}, s{G.ldx}")
            k.e(f"v_and_b32 v{v_t1}, 3, v{v_lane}")
            k.e(f"v_lshl_add_u32 v{v_t0}, v{v_t1}, 4, v{v_t0}")
            k.e(f"v_add_u32 v{G.vpx}, s{G.tm_off}, v{v_t0}")
            k.e(f"s_and_b32 s{s_t0}, s{G.s_ptm}, 3")
            k.e(f"s_lshl_b32 s{s_t0}, s{s_t0}, 2")
            k.e(f"s_add_u32 s{s_t0}, s{s_t0}, s{s_wave}")
            k.e(f"s_sub_u32 s{s_t0}, s{s_t0}, 4")
            k.e(f"s_lshl_b32 s{s_t0}, s{s_t0}, 1")
            k.e(f"v_lshrrev_b32 v{v_t0}, 5, v{v_lane}")
            k.e(f"v_add_u32 v{v_t0}, s{s_t0}, v{v_t0}")
            k.e(f"v_mul_lo_u32 v{v_t0}, v{v_t0}, s{G.ldw}")
            k.e(f"v_and_b32 v{v_t1}, 31, v{v_lane}")
            k.e(f"v_lshl_add_u32 v{v_t0}, v{v_t1}, 4, v{v_t0}")
            k.e(f"v_add_u32 v{G.vpw}, s{G.tn_off}, v{v_t0}")
        for j in range(self.NXI if self.role != "pref" else 0):
            k.e(f"s_mul_i32 s{s_t0}, s{s_wave}, {self.NXI * RPI}")
            k.e(f"s_add_u32 s{s_t0}, s{s_t0}, {j * RPI}")
            k.e(f"v_lshrrev_b32 v{v_t0}, {log2(LPR)}, v{v_lane}")
            k.e(f"v_add_u32 v{v_t0}, s{s_t0}, v{v_t0}")
            k.e(f"v_lshrrev_b32 v{v_t1}, {self.SX}, v{v_t0}")
            k.e(f"v_and_b32 v{v_t1}, {self.CX - 1}, v{v_t1}")
            k.e(f"v_and_b32 v{v_t2}, {LPR - 1}, v{v_lane}")
            k.e(f"v_xor_b32 v{v_t1}, v{v_t1}, v{v_t2}")
            k.e(f"v_mul_lo_u32 v{v_t0}, v{v_t0}, s{G.ldx}")
            k.e(f"v_lshl_add_u32 v{v_t0}, v{v_t1}, 4, v{v_t0}")
            k.e(f"v_add_u32 v{self.vox[j]}, s{G.tm_off}, v{v_t0}")
        LPRW, RPIW = self.RW // 16, 1024 // self.RW
        for j in range(self.NWI if self.role != "pref" else 0):
            k.e(f"s_mul_i32 s{s_t0}, s{s_wave}, {self.NWI * RPIW}")
            k.e(f"s_add_u32 s{s_t0}, s{s_t0}, {j * RPIW}")
            k.e(f"v_lshrrev_b32 v{v_t0}, {log2(LPRW)}, v{v_lane}")
            k.e(f"v_add_u32 v{v_t0}, s{s_t0}, v{v_t0}")
            self._wswz(v_t1, v_t0)
            k.e(f"v_lshlrev_b32 v{v_t1}, 2, v{v_t1}")
            k.e(f"v_and_b32 v{v_t2}, {LPRW - 1}, v{v_lane}")
            k.e(f"v_xor_b32 v{v_t1}, v{v_t1}, v{v_t2}")
            k.e(f"v_mul_lo_u32 v{v_t0}, v{v_t0}, s{G.ldw}")
            k.e(f"v_lshl_add_u32 v{v_t0}, v{v_t1}, 4, v{v_t0}")
            k.e(f"v_add_u32 v{self.vow[j]}, s{G.tn_off}, v{v_t0}")
        (self.s_kx, self.s_kw, self.s_dst, self.s_cur, self.s_nxt, self.s_cnt, self.s_xdst, self.s_wdst,
         self.s_kwstep, self.s_d0, self.s_d1, self.s_nt, self.s_wm, self.s_wn) = sregs
        k.e(f"s_mov_b32 s{self.s_kx}, {getattr(self, 'kx0', 0)}")
        k.e(f"s_mov_b32 s{self.s_kw}, {getattr(self, 'kw0', 0)}")
        k.e(f"s_mov_b32 s{self.s_dst}, 0")
        k.e(f"s_mov_b32 s{self.s_cur}, 0")
        k.e(f"s_mov_b32 s{self.s_nxt}, {self.STAGE}")
        k.e(f"s_mul_i32 s{self.s_xdst}, s{s_wave}, {self.NXI * 1024}")
        k.e(f"s_mul_i32 s{self.s_wdst}, s{s_wave}, {self.NWI * 1024}")
        k.e(f"s_add_u32 s{self.s_wdst}, s{self.s_wdst}, {self.XB}")
        k.e(f"s_mul_i32 s{self.s_kwstep}, s{G.ldw}, {self.BK}")
        k.e(f"s_mov_b32 s{self.s_nt}, s{G.nt}")
        if self.ahead:
            k.e(f"s_and_b32 s{s_t0}, s{G.s_ptn}, 1")
            k.e(f"s_cmp_eq_u32 s{s_t0}, 0")
            k.e(f"s_cselect_b64 vcc, -1, 0")
            k.e(f"v_cndmask_b32 v{G.vpx}, v{self.vox[1]}, v{self.vox[0]}, vcc")
            k.e(f"s_and_b32 s{s_t0}, s{G.s_ptm}, 1")
            k.e(f"s_cmp_eq_u32 s{s_t0}, 0")
            k.e(f"s_cselect_b64 vcc, -1, 0")
            k.e(f"v_cndmask_b32 v{G.vpw}, v{self.vow[1]}, v{self.vow[0]}, vcc")
            k.e(f"s_mul_i32 s{G.s_pkw}, s{self.s_kwstep}, {self.ahead}")

    def pf_list(self):
        G = self.G
        if not self.ahead:
            return []
        return [[f"s_add_u32 s{G.s_t1}, s{self.s_kx}, {self.ahead * self.BK * 2}",
                 f"buffer_load_dwordx4 {vr(G.vpf, 4)}, v{G.vpx}, {sr(G.sX, 4)}, s{G.s_t1} offen"],
                [f"s_add_u32 s{G.s_t1}, s{self.s_kw}, s{G.s_pkw}",
                 f"buffer_load_dwordx4 {vr(G.vpf, 4)}, v{G.vpw}, {sr(G.sW, 4)}, s{G.s_t1} offen"]]

    def dma_list(self):
        G = self.G
        out = []
        if self.role == "pref":
            return [[f"buffer_load_dwordx4 {vr(G.vpf, 4)}, v{G.vpx}, {sr(G.sX, 4)}, s{self.s_kx} offen"],
                    [f"buffer_load_dwordx4 {vr(G.vpf, 4)}, v{G.vpw}, {sr(G.sW, 4)}, s{self.s_kw} offen"],
                    [f"s_add_u32 s{self.s_kx}, s{self.s_kx}, {self.BK * 2}",
                     f"s_add_u32 s{self.s_kw}, s{self.s_kw}, s{self.s_kwstep}"]]
        for j in range(self.NXI):
            g = []
            if j == 0:
                g.append(f"s_add_u32 s{self.s_d0}, s{self.s_dst}, s{self.s_xdst}")
            g.append(f"s_add_u32 m0, s{self.s_d0}, {j * 1024}")
            g.append("s_nop 0")
            g.append(f"buffer_load_dwordx4 v{self.vox[j]}, {sr(G.sX, 4)}, s{self.s_kx} offen lds")
            out.append(g)
        for j in range(self.NWI):
            g = []
            if j == 0:
                g.append(f"s_add_u32 s{self.s_d1}, s{self.s_dst}, s{self.s_wdst}")
            g.append(f"s_add_u32 m0, s{self.s_d1}, {j * 1024}")
            g.append("s_nop 0")
            g.append(f"buffer_load_dwordx4 v{self.vow[j]}, {sr(G.sW, 4)}, s{self.s_kw} offen lds")
            out.append(g)
        out.append([
            f"s_add_u32 s{self.s_kx}, s{self.s_kx}, {G.kxstep or self.BK * 2}",
            f"s_add_u32 s{self.s_kw}, s{self.s_kw}, s{self.s_kwstep}",
            f"s_add_u32 s{self.s_dst}, s{self.s_dst}, {self.STAGE}",
            f"s_cmp_eq_u32 s{self.s_dst}, {self.NSTAGE * self.STAGE}",
            f"s_cselect_b32 s{self.s_dst}, 0, s{self.s_dst}",
        ])
        return out

    def issue_prologue(self):
        for t in range(self.LEAD + (PFA if self.role == "pref" else 0)):
            for g in self.dma_list():
                for ln in g:
                    self.k.e(ln)

    def setup_rest(self):
        k, G = self.k, self.G
        k.vn = G.shared_v
        v_lane = G.v_lane
        v_t0, v_t1, v_t2, v_t3 = G.vt
        s_t0 = G.s_t0
        TM, TN, KS, RX, RW = self.TM, self.TN, self.KS, self.RX, self.RW
        k.e(f"s_and_b32 s{self.s_wm}, s{G.s_wave}, {self.WM - 1}")
        k.e(f"s_lshr_b32 s{self.s_wn}, s{G.s_wave}, {log2(self.WM)}")
        self.bx = [k.v() for _ in range(KS)]
        self.bw = [k.v() for _ in range(TN)]
        k.e(f"s_mul_i32 s{s_t0}, s{self.s_wm}, {TM * 32}")
        k.e(f"v_and_b32 v{v_t0}, 31, v{v_lane}")
        k.e(f"v_add_u32 v{v_t0}, s{s_t0}, v{v_t0}")
        k.e(f"v_lshrrev_b32 v{v_t1}, {self.SX}, v{v_t0}")
        k.e(f"v_and_b32 v{v_t1}, {self.CX - 1}, v{v_t1}")
        k.e(f"v_lshrrev_b32 v{v_t2}, 5, v{v_lane}")
        k.e(f"v_xor_b32 v{v_t1}, v{v_t1}, v{v_t2}")
        k.e(f"v_lshlrev_b32 v{v_t0}, {log2(RX)}, v{v_t0}")
        for ks in range(KS):
            k.e(f"v_xor_b32 v{v_t2}, {2 * ks}, v{v_t1}")
            k.e(f"v_lshl_add_u32 v{self.bx[ks]}, v{v_t2}, 4, v{v_t0}")
        k.e(f"v_lshrrev_b32 v{v_t0}, 5, v{v_lane}")
        k.e(f"v_lshlrev_b32 v{v_t0}, 3, v{v_t0}")
        k.e(f"v_bfe_u32 v{v_t1}, v{v_lane}, 2, 2")
        k.e(f"v_add_u32 v{v_t0}, v{v_t0}, v{v_t1}")
        self._wswz(v_t1, v_t0)
        k.e(f"v_lshlrev_b32 v{v_t1}, 2, v{v_t1}")
        k.e(f"v_lshlrev_b32 v{v_t0}, {log2(RW)}, v{v_t0}")
        for f in range(TN):
            k.e(f"s_mul_i32 s{s_t0}, s{self.s_wn}, {TN * 4}")
            k.e(f"s_add_u32 s{s_t0}, s{s_t0}, {4 * f}")
            k.e(f"v_bfe_u32 v{v_t2}, v{v_lane}, 4, 1")
            k.e(f"v_lshlrev_b32 v{v_t2}, 1, v{v_t2}")
            k.e(f"v_bfe_u32 v{v_t3}, v{v_lane}, 1, 1")
            k.e(f"v_add3_u32 v{v_t2}, v{v_t2}, v{v_t3}, s{s_t0}")
            k.e(f"v_xor_b32 v{v_t2}, v{v_t2}, v{v_t1}")
            k.e(f"v_lshl_add_u32 v{v_t2}, v{v_t2}, 4, v{v_t0}")
            k.e(f"v_and_b32 v{v_t3}, 1, v{v_lane}")
            k.e(f"v_lshl_add_u32 v{v_t2}, v{v_t3}, 3, v{v_t2}")
            k.e(f"v_add_u32 v{self.bw[f]}, {self.XB}, v{v_t2}")
        self.acc = [[k.v(16, 4) for f in range(TN)] for i in range(TM)]
        NSET = 2 * KS if self.FULL else (2 if self.ACROSS else KS)
        self.fx = [[k.v(4, 4) for i in range(TM)] for s_ in range(NSET)]
        self.fw = [[k.v(4, 4) for f in range(TN)] for s_ in range(NSET)]
        self.ax = [k.v() for _ in range(KS)]
        self.aw_c = [k.v() for _ in range(TN)]
        self.aw_n = [k.v() for _ in range(TN)] if self.ACROSS else None
        self.end_vn = k.vn
        for i in range(TM):
            for f in range(TN):
                for r in range(16):
                    k.e(f"v_mov_b32 v{self.acc[i][f] + r}, 0")

    def reads(self, ks, st, axr, awr):
        out = []
        for i in range(self.TM):
            out.append(f"ds_read_b128 {vr(self.fx[st][i], 4)}, v{axr} offset:{i * 32 * self.RX}")
        for f in range(self.TN):
            for p in range(2):
                out.append(f"ds_read_b64_tr_b16 {vr(self.fw[st][f] + 2 * p, 2)}, v{awr[f]} offset:{(16 * ks + 4 * p) * self.RW}")
        return out

    def mfmas(self, st):
        out = []
        for i in range(self.TM):
            for f in range(self.TN):
                a, b = (self.fw[st][f], self.fx[st][i]) if self.form == "T" else (self.fx[st][i], self.fw[st][f])
                out.append(f"v_mfma_f32_32x32x16_bf16 {vr(self.acc[i][f], 16)}, {vr(a, 4)}, {vr(b, 4)}, {vr(self.acc[i][f], 16)}")
        return out

    def wait_prologue(self, extra=0):
        k = self.k
        if self.role != "pref":
            k.e(f"s_waitcnt vmcnt({min(63, extra + (self.LEAD - self.CERT) * self.D)})")
        k.e("s_barrier")
        if self.FULL:
            for ks in range(self.KS):
                for ln in self.reads(ks, ks, self.bx[ks], self.bw):
                    k.e(ln)
        elif self.ACROSS:
            for f in range(self.TN):
                k.e(f"v_mov_b32 v{self.aw_c[f]}, v{self.bw[f]}")
            k.e(f"v_mov_b32 v{self.ax[0]}, v{self.bx[0]}")
            for ln in self.reads(0, 0, self.ax[0], self.aw_c):
                k.e(ln)

    def _interleave(self, main, fill, per=1):
        k = self.k
        fill = list(fill)
        for m in main:
            k.e(m)
            for _ in range(per):
                if fill:
                    it = fill.pop(0)
                    for ln in it if isinstance(it, list) else [it]:
                        k.e(ln)
        for it in fill:
            for ln in it if isinstance(it, list) else [it]:
                k.e(ln)

    def _body(self, with_dma):
        k = self.k
        TN, KS = self.TN, self.KS
        dm = self.dma_list() + self.pf_list() if with_dma else []
        if self.ACROSS:
            assert KS == 2
            k.e(f"v_add_u32 v{self.ax[1]}, s{self.s_cur}, v{self.bx[1]}")
            for f in range(TN):
                k.e(f"v_add_u32 v{self.aw_c[f]}, s{self.s_cur}, v{self.bw[f]}")
            k.e(f"v_add_u32 v{self.ax[0]}, s{self.s_nxt}, v{self.bx[0]}")
            for f in range(TN):
                k.e(f"v_add_u32 v{self.aw_n[f]}, s{self.s_nxt}, v{self.bw[f]}")
            k.e("s_waitcnt lgkmcnt(0)")
            self._interleave(self.mfmas(0), self.reads(1, 1, self.ax[1], self.aw_c), per=2)
            k.e("s_waitcnt lgkmcnt(0)")
            self._interleave(self.mfmas(1), self.reads(0, 0, self.ax[0], self.aw_n) + dm, per=2)
        else:
            for ks in range(KS):
                k.e(f"v_add_u32 v{self.ax[ks]}, s{self.s_cur}, v{self.bx[ks]}")
            for f in range(TN):
                k.e(f"v_add_u32 v{self.aw_c[f]}, s{self.s_cur}, v{self.bw[f]}")
            nr = self.TM + 2 * TN
            for ks in range(KS):
                for ln in self.reads(ks, ks, self.ax[ks], self.aw_c):
                    k.e(ln)
            for g in dm:
                for ln in g:
                    k.e(ln)
            for ks in range(KS):
                k.e(f"s_waitcnt lgkmcnt({min(15, (KS - 1 - ks) * nr)})")
                for ln in self.mfmas(ks):
                    k.e(ln)
        k.e(f"s_mov_b32 s{self.s_cur}, s{self.s_nxt}")
        k.e(f"s_add_u32 s{self.s_nxt}, s{self.s_nxt}, {self.STAGE}")
        k.e(f"s_cmp_eq_u32 s{self.s_nxt}, {self.NSTAGE * self.STAGE}")
        k.e(f"s_cselect_b32 s{self.s_nxt}, 0, s{self.s_nxt}")
        if self.role == "pref":
            pass
        elif with_dma:
            np_ = 2 if self.ahead else 0
            k.e(f"s_waitcnt vmcnt({(self.LEAD - self.CERT) * (self.D + np_) + np_})")
        else:
            k.e("s_waitcnt vmcnt(0)")
        k.e("s_barrier")

    def _body_full(self, par, with_dma):
        k = self.k
        TN, KS = self.TN, self.KS
        for ks in range(KS):
            k.e(f"v_add_u32 v{self.ax[ks]}, s{self.s_nxt}, v{self.bx[ks]}")
        for f in range(TN):
            k.e(f"v_add_u32 v{self.aw_c[f]}, s{self.s_nxt}, v{self.bw[f]}")
        k.e("s_waitcnt lgkmcnt(0)")
        rd = []
        for ks in range(KS):
            rd += self.reads(ks, (par ^ 1) * KS + ks, self.ax[ks], self.aw_c)
        mf = []
        for ks in range(KS):
            mf += self.mfmas(par * KS + ks)
        dm = self.dma_list() if with_dma else []
        fill = []
        nr, nd = len(rd), len(dm)
        di = 0
        for i, r in enumerate(rd):
            fill.append(r)
            while di < nd and (di + 1) * nr <= (i + 1) * nd:
                fill.append(dm[di])
                di += 1
        fill += dm[di:]
        per = (len(fill) + len(mf) - 1) // len(mf)
        self._interleave(mf, fill, per=per)
        k.e(f"s_add_u32 s{self.s_nxt}, s{self.s_nxt}, {self.STAGE}")
        k.e(f"s_cmp_eq_u32 s{self.s_nxt}, {self.NSTAGE * self.STAGE}")
        k.e(f"s_cselect_b32 s{self.s_nxt}, 0, s{self.s_nxt}")
        if with_dma:
            k.e(f"s_waitcnt vmcnt({(self.LEAD - self.CERT) * self.D})")
        else:
            k.e("s_waitcnt vmcnt(0)")
        k.e("s_barrier")

    def loop(self):
        k = self.k
        if self.FULL and self.LEAD % 2 == 1:
            nts = self.nt_static
            M = nts - self.LEAD
            assert M % 2 == 1 and M >= 3
            k.e(f"s_mov_b32 s{self.s_cnt}, {M - 1}")
            L1 = k.label("main")
            k.place(L1)
            self._body_full(0, True)
            self._body_full(1, True)
            k.e(f"s_sub_u32 s{self.s_cnt}, s{self.s_cnt}, 2")
            k.e(f"s_cmp_lg_u32 s{self.s_cnt}, 0")
            k.e(f"s_cbranch_scc1 {L1}")
            self._body_full(0, True)
            for i in range(self.LEAD):
                self._body_full((i + 1) & 1, False)
            k.e("s_waitcnt lgkmcnt(0)")
            k.e("s_nop 15")
            return
        if self.FULL:
            assert self.LEAD % 2 == 0
            k.e(f"s_sub_u32 s{self.s_cnt}, s{self.s_nt}, {self.LEAD}")
            L1 = k.label("main")
            k.place(L1)
            self._body_full(0, True)
            self._body_full(1, True)
            k.e(f"s_sub_u32 s{self.s_cnt}, s{self.s_cnt}, 2")
            k.e(f"s_cmp_lg_u32 s{self.s_cnt}, 0")
            k.e(f"s_cbranch_scc1 {L1}")
            k.e(f"s_mov_b32 s{self.s_cnt}, {self.LEAD}")
            L2 = k.label("tail")
            k.place(L2)
            self._body_full(0, False)
            self._body_full(1, False)
            k.e(f"s_sub_u32 s{self.s_cnt}, s{self.s_cnt}, 2")
            k.e(f"s_cmp_lg_u32 s{self.s_cnt}, 0")
            k.e(f"s_cbranch_scc1 {L2}")
            k.e("s_waitcnt lgkmcnt(0)")
            k.e("s_nop 15")
            return
        k.e(f"s_sub_u32 s{self.s_cnt}, s{self.s_nt}, {self.LEAD}")
        L1 = k.label("main")
        k.place(L1)
        self._body(True)
        k.e(f"s_sub_u32 s{self.s_cnt}, s{self.s_cnt}, 1")
        k.e(f"s_cmp_lg_u32 s{self.s_cnt}, 0")
        k.e(f"s_cbranch_scc1 {L1}")
        k.e(f"s_mov_b32 s{self.s_cnt}, {self.LEAD}")
        L2 = k.label("tail")
        k.place(L2)
        self._body(False)
        k.e(f"s_sub_u32 s{self.s_cnt}, s{self.s_cnt}, 1")
        k.e(f"s_cmp_lg_u32 s{self.s_cnt}, 0")
        k.e(f"s_cbranch_scc1 {L2}")
        k.e("s_waitcnt lgkmcnt(0)")
        k.e("s_nop 15")

    def epilogue(self):
        k = self.k
        save = k.vn
        k.vn = self.end_vn
        self.epi(k, self.G, self)
        k.vn = max(save, self.G.shared_v)


def run_chain(k, G, jobs):
    prev = None
    pg = getattr(G, "prof", None)
    for ji, (set_in, set_out, g) in enumerate(jobs):
        set_in()
        g.setup_dma()
        g.issue_prologue()
        extra = 0
        if prev is None and G.after_first is not None:
            extra = G.after_first()
        if prev is not None:
            prev.epilogue()
            extra = prev.nstores
        set_out()
        g.setup_rest()
        g.wait_prologue(extra)
        if pg:
            pg.stamp(2 * ji)
        g.loop()
        if pg:
            pg.stamp(2 * ji + 1)
        prev = g
    return prev


def lds_epi_setup(k, G, RB, row_stride_sreg=None, row_stride_shift=None):
    vl = G.v_lane
    vw, vrd, vgo, vt = k.v(), k.v(), k.v(), k.v()
    CPR = RB // 16
    RPI = 64 // CPR
    s0 = G.s_t0
    k.e(f"s_lshl_b32 s{s0}, s{G.s_wave}, 12")
    k.e(f"s_add_u32 s{s0}, s{s0}, {G.epi_base}")
    k.e(f"v_and_b32 v{vt}, 31, v{vl}")
    k.e(f"v_lshlrev_b32 v{vw}, {log2(RB)}, v{vt}")
    k.e(f"v_add_u32 v{vw}, s{s0}, v{vw}")
    k.e(f"v_and_b32 v{vt}, {CPR - 1}, v{vt}")
    k.e(f"v_lshrrev_b32 v{vrd}, 5, v{vl}")
    k.e(f"v_xor_b32 v{vt}, v{vt}, v{vrd}")
    k.e(f"v_lshl_add_u32 v{vw}, v{vt}, 4, v{vw}")
    k.e(f"v_lshrrev_b32 v{vt}, {log2(CPR)}, v{vl}")
    k.e(f"v_xor_b32 v{vrd}, v{vt}, v{vl}")
    k.e(f"v_and_b32 v{vrd}, {CPR - 1}, v{vrd}")
    k.e(f"v_lshlrev_b32 v{vrd}, 4, v{vrd}")
    k.e(f"v_lshl_add_u32 v{vrd}, v{vt}, {log2(RB)}, v{vrd}")
    k.e(f"v_add_u32 v{vrd}, s{s0}, v{vrd}")
    if row_stride_sreg is not None:
        k.e(f"v_mul_lo_u32 v{vgo}, v{vt}, s{row_stride_sreg}")
    else:
        k.e(f"v_lshlrev_b32 v{vgo}, {row_stride_shift}, v{vt}")
    k.e(f"v_and_b32 v{vt}, {CPR - 1}, v{vl}")
    k.e(f"v_lshl_add_u32 v{vgo}, v{vt}, 4, v{vgo}")
    return vw, vrd, vgo, vt


def epi_rowmajor(k, G, g):
    TM, TN = g.TM, g.TN
    acc = g.acc
    s0, s1 = G.s_t0, G.s_t1
    RB = TN * 64
    CPR = RB // 16
    RPI = 64 // CPR
    NQ = 32 // RPI
    k.c("---- epilogue row-major")
    vw, vrd, vgo, vt = lds_epi_setup(k, G, RB, row_stride_sreg=G.ldo)
    s2_ = k.s()
    k.e(f"s_mul_i32 s{s0}, s{g.s_wm}, {TM * 32}")
    k.e(f"s_mul_i32 s{s0}, s{s0}, s{G.ldo}")
    k.e(f"s_add_u32 s{s0}, s{s0}, s{G.obase}")
    k.e(f"s_mul_i32 s{s1}, s{g.s_wn}, {TN * 64}")
    k.e(f"s_add_u32 s{s0}, s{s0}, s{s1}")
    k.e(f"s_mul_i32 s{s1}, s{G.ldo}, {RPI}")
    for i in range(TM):
        for f in range(TN):
            a = acc[i][f]
            t = a
            if getattr(g, "scaled", False):
                for r in range(16):
                    k.e(f"v_mul_f32 v{a + r}, s{G.scale}, v{a + r}")
            for j in range(8):
                k.e(f"v_cvt_pk_bf16_f32 v{t + j}, v{a + 2 * j}, v{a + 2 * j + 1}")
            k.e("s_nop 1")
            k.e(f"v_permlane32_swap_b32 v{t}, v{t + 2}")
            k.e(f"v_permlane32_swap_b32 v{t + 1}, v{t + 3}")
            k.e(f"v_permlane32_swap_b32 v{t + 4}, v{t + 6}")
            k.e(f"v_permlane32_swap_b32 v{t + 5}, v{t + 7}")
            for jj in range(2):
                c2 = 4 * f + 2 * jj
                if c2:
                    k.e(f"v_xor_b32 v{vt}, {c2 << 4}, v{vw}")
                    k.e(f"ds_write_b128 v{vt}, {vr(t + 4 * jj, 4)}")
                else:
                    k.e("s_nop 0")
                    k.e(f"ds_write_b128 v{vw}, {vr(t + 4 * jj, 4)}")
        k.e("s_waitcnt lgkmcnt(0)")
        dst = [acc[i][q // 2] + 8 + 4 * (q % 2) for q in range(NQ)]
        for q in range(NQ):
            k.e(f"ds_read_b128 {vr(dst[q], 4)}, v{vrd} offset:{q * RPI * RB}")
        for q in range(NQ):
            k.e(f"s_waitcnt lgkmcnt({NQ - 1 - q})")
            k.e(f"buffer_store_dwordx4 {vr(dst[q], 4)}, v{vgo}, {sr(G.sO, 4)}, s{s0} offen")
            k.e(f"s_add_u32 s{s0}, s{s0}, s{s1}")
    k.e("s_nop 1")
    k.sn -= 1


def make_epi_vt(KPB, FS, BS):
    def epi(k, G, g):
        TM, TN = g.TM, g.TN
        acc = g.acc
        s0, s1 = G.s_t0, G.s_t1
        RB = KPB * 2
        assert RB == FS
        CPR = RB // 16
        RPI = 64 // CPR
        NQ = 32 // RPI
        IPB = KPB // 32
        k.c("---- epilogue V^T")
        vw, vrd, vgo, vt = lds_epi_setup(k, G, RB, row_stride_shift=log2(FS))
        assert (TM * 32) % KPB == 0
        k.e(f"s_mul_i32 s{s0}, s{g.s_wm}, {TM * 32 // KPB * BS}")
        k.e(f"s_add_u32 s{s0}, s{s0}, s{G.obase}")
        k.e(f"s_mul_i32 s{s1}, s{g.s_wn}, {TN * 32 * FS}")
        k.e(f"s_add_u32 s{s0}, s{s0}, s{s1}")
        for f in range(TN):
            for blk in range(TM // IPB):
                for ii in range(IPB):
                    a = acc[blk * IPB + ii][f]
                    t = a
                    for j in range(8):
                        k.e(f"v_cvt_pk_bf16_f32 v{t + j}, v{a + 2 * j}, v{a + 2 * j + 1}")
                    for jj in range(2):
                        c2 = 4 * ii + 2 * jj
                        if c2:
                            k.e(f"v_xor_b32 v{vt}, {c2 << 4}, v{vw}")
                            k.e(f"ds_write_b128 v{vt}, {vr(t + 4 * jj, 4)}")
                        else:
                            k.e("s_nop 0")
                            k.e(f"ds_write_b128 v{vw}, {vr(t + 4 * jj, 4)}")
                k.e("s_waitcnt lgkmcnt(0)")
                dst = [acc[blk * IPB + q // 2][f] + 8 + 4 * (q % 2) for q in range(NQ)]
                for q in range(NQ):
                    k.e(f"ds_read_b128 {vr(dst[q], 4)}, v{vrd} offset:{q * RPI * RB}")
                for q in range(NQ):
                    k.e(f"s_add_u32 s{s1}, s{s0}, {blk * BS + f * 32 * FS + q * RPI * FS}")
                    k.e(f"s_waitcnt lgkmcnt({NQ - 1 - q})")
                    k.e(f"buffer_store_dwordx4 {vr(dst[q], 4)}, v{vgo}, {sr(G.sO, 4)}, s{s1} offen")
        k.e("s_nop 1")

    return epi


def kern_proj():
    k = K("proj_kernel")
    G = GemmCtx(k)
    G.epi_base = 128 * 1024
    pBX, pBWQ, pCKV, pWUK, pWUV, pAX, pAWQ, pAWK, pAWV, pWS = [k.s(2) for _ in range(10)]
    s_id, s_tm, s_tn, s_t = k.s(), k.s(), k.s(), k.s()
    Lend, Lkv = k.label("end"), k.label("kv")
    k.e("s_cmp_ge_u32 s2, 256")
    k.e(f"s_cbranch_scc1 {Lend}")
    for p, off in ((pBX, KA_BX), (pBWQ, KA_BWQ), (pCKV, KA_CKV), (pWUK, KA_WUK), (pWUV, KA_WUV), (pAX, KA_AX),
                   (pAWQ, KA_AWQ), (pAWK, KA_AWK), (pAWV, KA_AWV), (pWS, KA_WS)):
        load_ptr(k, p, off)
    G.init_ids()
    k.e(f"s_and_b32 s{s_id}, s2, 127")
    k.e(f"s_and_b32 s{s_tm}, s{s_id}, 1")
    k.e(f"s_lshl_b32 s{s_tm}, s{s_tm}, 2")
    k.e(f"s_bfe_u32 s{s_t}, s{s_id}, 0x20003")
    k.e(f"s_add_u32 s{s_tm}, s{s_tm}, s{s_t}")
    k.e(f"s_bfe_u32 s{s_tn}, s{s_id}, 0x20001")
    k.e(f"s_lshl_b32 s{s_tn}, s{s_tn}, 2")
    k.e(f"s_lshr_b32 s{s_t}, s{s_id}, 5")
    k.e(f"s_add_u32 s{s_tn}, s{s_tn}, s{s_t}")
    k.e("s_waitcnt lgkmcnt(0)")
    G.prof = Prof(k, 6)
    G.prof.start()
    G.prof.tot_start()

    def big_in(px, xsz, pw_, wsz, ldx, nt, tmshift):
        def f():
            make_srd(k, G.sX, px, 0, xsz)
            make_srd(k, G.sW, pw_, 0, wsz)
            k.e(f"s_mov_b32 s{G.ldx}, {ldx}")
            k.e(f"s_mov_b32 s{G.ldw}, 8192")
            k.e(f"s_mov_b32 s{G.nt}, {nt}")
            k.e(f"s_lshl_b32 s{G.tm_off}, s{s_tm}, {tmshift}")
            k.e(f"s_lshl_b32 s{G.tn_off}, s{s_tn}, 9")
        return f

    def big_out(wsoff, scale, fix):
        def f():
            make_srd(k, G.sO, pWS, wsoff, 16 * MB)
            k.e(f"s_mov_b32 s{G.scale}, {scale}")
            k.e(f"s_mov_b32 s{G.ldo}, 256")
            k.e(f"s_lshl_b32 s{G.obase}, s{s_tn}, 20")
            k.e(f"s_lshl_b32 s{s_t}, s{s_tm}, 16")
            k.e(f"s_add_u32 s{G.obase}, s{G.obase}, s{s_t}")
            k.e(f"s_lshr_b32 s{s_t}, s{G.s_wave}, 2")
            k.e(f"s_mul_i32 s{s_t}, s{s_t}, {fix}")
            k.e(f"s_add_u32 s{G.obase}, s{G.obase}, s{s_t}")
        return f

    def qa_in():
        make_srd(k, G.sX, pAX, 0, 2048 * 1024 * 2)
        make_srd(k, G.sW, pAWQ, 0, 1024 * 1024 * 2)
        k.e(f"s_mov_b32 s{G.ldx}, 2048")
        k.e(f"s_mov_b32 s{G.ldw}, 2048")
        k.e(f"s_mov_b32 s{G.nt}, 16")
        k.e(f"s_and_b32 s{s_t}, s2, 15")
        k.e(f"s_lshl_b32 s{G.tm_off}, s{s_t}, 18")
        k.e(f"s_lshr_b32 s{s_t}, s2, 4")
        k.e(f"s_lshl_b32 s{G.tn_off}, s{s_t}, 8")

    def qa_out():
        make_srd(k, G.sO, pWS, WS_QA, 4 * MB)
        k.e(f"s_mov_b32 s{G.scale}, {f32hex(CA)}")
        k.e(f"s_mov_b32 s{G.ldo}, 2048")
        k.e(f"s_add_u32 s{G.obase}, s{G.tm_off}, s{G.tn_off}")

    def kva_in(pw_):
        def f():
            make_srd(k, G.sX, pAX, 0, 2048 * 1024 * 2)
            make_srd(k, G.sW, pw_, 0, 1024 * 32 * 2)
            k.e(f"s_mov_b32 s{G.ldx}, 2048")
            k.e(f"s_mov_b32 s{G.ldw}, 64")
            k.e(f"s_mov_b32 s{G.nt}, 16")
            k.e(f"s_and_b32 s{s_t}, s2, 15")
            k.e(f"s_lshl_b32 s{G.tm_off}, s{s_t}, 18")
            k.e(f"s_mov_b32 s{G.tn_off}, 0")
        return f

    def kva_out(wsoff):
        def f():
            make_srd(k, G.sO, pWS, wsoff, 2048 * 64)
            k.e(f"s_mov_b32 s{G.scale}, 1.0")
            k.e(f"s_mov_b32 s{G.ldo}, 64")
            k.e(f"s_and_b32 s{s_t}, s2, 15")
            k.e(f"s_lshl_b32 s{G.obase}, s{s_t}, 13")
        return f

    sPF = k.s(4)
    G.s_ptm, G.s_ptn = s_tm, s_tn
    AHEAD = int(os.environ.get("AHEAD", "0"))
    COOP = ((pAX, 4), (pAWQ, 2)) if AHEAD else ((pBX, 4), (pBWQ, 8), (pCKV, 2), (pWUK, 4), (pWUV, 4), (pAX, 4), (pAWQ, 2))

    def coop_prefetch():
        n = 0
        k.e(f"v_lshlrev_b32 v{G.vpfo}, 4, v0")
        for p, mb in COOP:
            make_srd(k, sPF, p, 0, mb * MB)
            rounds = mb * MB // 256 // 8192
            k.e(f"s_mul_i32 s{s_t}, s2, {rounds * 8192}")
            for r in range(rounds):
                k.e(f"buffer_load_dwordx4 {vr(G.vpf, 4)}, v{G.vpfo}, {sr(sPF, 4)}, s{s_t} offen")
                k.e(f"s_add_u32 s{s_t}, s{s_t}, 8192")
                n += 1
        return n

    if PREFETCH:
        G.after_first = coop_prefetch
    BIG = (2, 4, 4, 2, 32, 4, True)
    MINI = (4, 2, 1, 2, 64, 4, True)
    MINI = (4, 2, 1, 2, 64, 4, 2)
    KVA = (4, 1, 1, 1, 64, 5, 2)
    save_s = k.sn

    def qa_in2():
        qa_in()

    def v_out():
        make_srd(k, G.sO, pWS, WS_VB, 16 * MB)
        k.e(f"s_lshl_b32 s{G.obase}, s{s_tn}, 20")
        k.e(f"s_lshl_b32 s{s_t}, s{s_tm}, 16")
        k.e(f"s_add_u32 s{G.obase}, s{G.obase}, s{s_t}")
        k.e(f"s_lshr_b32 s{s_t}, s{G.s_wave}, 2")
        k.e(f"s_mul_i32 s{s_t}, s{s_t}, {524288 - 16384}")
        k.e(f"s_add_u32 s{G.obase}, s{G.obase}, s{s_t}")

    def late_prefetch():
        k.e(f"v_and_b32 v{G.vpfo}, 255, v0")
        k.e(f"v_lshlrev_b32 v{G.vpfo}, 4, v{G.vpfo}")
        for p, mb in ((pWUV, 4), (pAX, 4), (pAWQ, 2)):
            make_srd(k, sPF, p, 0, mb * MB)
            rounds = mb * MB // 256 // 4096
            k.e(f"s_mul_i32 s{s_t}, s2, {rounds * 4096}")
            for r in range(rounds):
                k.e(f"buffer_load_dwordx4 {vr(G.vpf, 4)}, v{G.vpfo}, {sr(sPF, 4)}, s{s_t} offen")
                k.e(f"s_add_u32 s{s_t}, s{s_t}, 4096")
        return 0

    Lkva = k.label("kva")

    def chains(role):
        Lkv_ = k.label("kv")
        if ROLES:
            G.after_first = late_prefetch if role == "pref" else None
        k.e("s_cmp_ge_u32 s2, 128")
        k.e(f"s_cbranch_scc1 {Lkv_}")
        k.sn = save_s
        gq1, gq2 = Gemm(G, *BIG, "T", epi_rowmajor, role=role), Gemm(G, *MINI, "T", epi_rowmajor)
        gq1.scaled = gq2.scaled = True
        gq2.nt_static = 16

        def qa_in3():
            if role == "pref":
                k.e("s_waitcnt vmcnt(0)")
            qa_in2()

        last = run_chain(k, G, [(big_in(pBX, 2048 * 1024 * 2, pBWQ, 1024 * 4096 * 2, 2048, 32, 19),
                                 big_out(WS_QB, f32hex(CB), 524288 - 256), gq1),
                                (qa_in3, qa_out, gq2)])
        last.epilogue()
        G.prof.tot_end()
        G.prof.dump(pWS, G.sX, G.vt[0], G.vt[1])
        k.e(f"s_branch {Lend}")
        k.place(Lkv_)
        k.sn = save_s
        gk1 = Gemm(G, *BIG, "T", epi_rowmajor, role=role)
        gk2 = Gemm(G, *BIG, "N", make_epi_vt(64, 128, 16384), role=role)
        last = run_chain(k, G, [(big_in(pCKV, 2048 * 512 * 2, pWUK, 512 * 4096 * 2, 1024, 16, 18),
                                 big_out(WS_KB, "1.0", 524288 - 256), gk1),
                                (big_in(pCKV, 2048 * 512 * 2, pWUV, 512 * 4096 * 2, 1024, 16, 18),
                                 v_out, gk2)])
        last.epilogue()
        G.prof.tot_end()
        G.prof.dump(pWS, G.sX, G.vt[0], G.vt[1])
        k.e(f"s_branch {Lkva}")

    if ROLES:
        Lpr = k.label("prefrole")
        k.e(f"s_cmp_ge_u32 s{G.s_wave}, 4")
        k.e(f"s_cbranch_scc1 {Lpr}")
        chains("load")
        k.place(Lpr)
        chains("pref")
    else:
        chains(None)
    k.place(Lkva)
    G.prof = None
    G.after_first = None
    Lidle, Lv = k.label("idle"), k.label("va")
    k.e("s_cmp_ge_u32 s2, 160")
    k.e(f"s_cbranch_scc1 {Lend}")
    k.e(f"s_cmp_ge_u32 s{G.s_wave}, 4")
    k.e(f"s_cbranch_scc1 {Lidle}")
    k.e("s_cmp_ge_u32 s2, 144")
    k.e(f"s_cbranch_scc1 {Lv}")
    k.sn = save_s
    run_chain(k, G, [(kva_in(pAWK), kva_out(WS_KA), Gemm(G, *KVA, "T", epi_rowmajor))]).epilogue()
    k.e(f"s_branch {Lend}")
    k.place(Lv)
    k.sn = save_s
    run_chain(k, G, [(kva_in(pAWV), kva_out(WS_VA), Gemm(G, *KVA, "N", make_epi_vt(32, 64, 2048)))]).epilogue()
    k.e(f"s_branch {Lend}")
    k.place(Lidle)
    k.e(f"s_mov_b32 s{s_t}, 17")
    Lb = k.label("idlel")
    k.place(Lb)
    k.e("s_barrier")
    k.e(f"s_sub_u32 s{s_t}, s{s_t}, 1")
    k.e(f"s_cmp_lg_u32 s{s_t}, 0")
    k.e(f"s_cbranch_scc1 {Lb}")
    k.place(Lend)
    k.e("s_endpgm")
    return k


def kern_out():
    k = K("outp_kernel")
    G = GemmCtx(k)
    G.epi_base = 0
    G.kxstep = 16384
    pWS, pOUT, pBWO, pAWO = [k.s(2) for _ in range(4)]
    s_tm, s_tn, s_t, s_id = k.s(), k.s(), k.s(), k.s()
    Lend, La = k.label("end"), k.label("a")
    k.e("s_cmp_ge_u32 s2, 256")
    k.e(f"s_cbranch_scc1 {Lend}")
    for p, off in ((pWS, KA_WS), (pOUT, KA_OUT), (pBWO, KA_BWO), (pAWO, KA_AWO)):
        load_ptr(k, p, off)
    G.init_ids()
    k.e(f"s_and_b32 s{s_id}, s2, 127")
    k.e(f"s_and_b32 s{s_tm}, s{s_id}, 3")
    k.e(f"s_lshl_b32 s{s_tm}, s{s_tm}, 2")
    k.e(f"s_bfe_u32 s{s_t}, s{s_id}, 0x20003")
    k.e(f"s_add_u32 s{s_tm}, s{s_tm}, s{s_t}")
    k.e(f"s_bfe_u32 s{s_tn}, s{s_id}, 0x10002")
    k.e(f"s_lshl_b32 s{s_tn}, s{s_tn}, 2")
    k.e(f"s_lshr_b32 s{s_t}, s{s_id}, 5")
    k.e(f"s_add_u32 s{s_tn}, s{s_tn}, s{s_t}")
    k.e("s_waitcnt lgkmcnt(0)")
    G.prof = Prof(k, 6)
    G.prof.start()
    G.prof.tot_start()

    def j_in(wsoff, xsz, pw_, wsz, ldx, nt, sh):
        def f():
            make_srd(k, G.sX, pWS, wsoff, xsz)
            make_srd(k, G.sW, pw_, 0, wsz)
            k.e(f"s_mov_b32 s{G.ldx}, {ldx}")
            k.e(f"s_mov_b32 s{G.ldw}, 2048")
            k.e(f"s_mov_b32 s{G.nt}, {nt}")
            k.e(f"s_lshl_b32 s{G.tm_off}, s{s_tm}, {sh}")
            k.e(f"s_lshl_b32 s{G.tn_off}, s{s_tn}, 8")
        return f

    def j_out(col):
        def f():
            make_srd(k, G.sO, pOUT, 0, 2048 * 2048 * 2)
            k.e(f"s_mov_b32 s{G.scale}, 1.0")
            k.e(f"s_mov_b32 s{G.ldo}, 4096")
            k.e(f"s_lshl_b32 s{G.obase}, s{s_tm}, 19")
            k.e(f"s_lshl_b32 s{s_t}, s{s_tn}, 8")
            k.e(f"s_add_u32 s{G.obase}, s{G.obase}, s{s_t}")
            if col:
                k.e(f"s_add_u32 s{G.obase}, s{G.obase}, {col}")
        return f

    CFG = (2, 2, 2, 2, 64, 5, 2)
    Lgo = k.label("go")
    k.e("s_cmp_ge_u32 s2, 128")
    k.e(f"s_cbranch_scc1 {La}")
    j_in(WS_CTX, 16 * MB, pBWO, 4096 * 1024 * 2, 128, 64, 20)()
    j_out(2048)()
    k.e(f"s_branch {Lgo}")
    k.place(La)
    j_in(WS_OA, 4 * MB, pAWO, 1024 * 1024 * 2, 128, 16, 18)()
    j_out(0)()
    k.place(Lgo)
    nop = lambda: None
    last = run_chain(k, G, [(nop, nop, Gemm(G, *CFG, "T", epi_rowmajor))])
    last.epilogue()
    G.prof.tot_end()
    G.prof.dump(pWS, G.sX, G.vt[0], G.vt[1])
    k.place(Lend)
    k.e("s_endpgm")
    return k


WS_PART = 96 * MB
N1_OUT = int(os.environ.get("N1", "44"))


def kern_out_split():
    k = K("outp_kernel")
    G = GemmCtx(k)
    G.epi_base = 0
    G.kxstep = 16384
    pWS, pOUT, pBWO, pAWO, pDBG = [k.s(2) for _ in range(5)]
    s_tm, s_tn, s_t, s_id = k.s(), k.s(), k.s(), k.s()
    sP, sD = k.s(4), k.s(4)
    Lend, Lc = k.label("end"), k.label("cons")
    k.e("s_cmp_ge_u32 s2, 256")
    k.e(f"s_cbranch_scc1 {Lend}")
    for p, off in ((pWS, KA_WS), (pOUT, KA_OUT), (pBWO, KA_BWO), (pAWO, KA_AWO), (pDBG, KA_DBG)):
        load_ptr(k, p, off)
    G.init_ids()
    k.e(f"s_and_b32 s{s_id}, s2, 127")
    k.e(f"s_and_b32 s{s_tm}, s{s_id}, 3")
    k.e(f"s_lshl_b32 s{s_tm}, s{s_tm}, 2")
    k.e(f"s_bfe_u32 s{s_t}, s{s_id}, 0x20003")
    k.e(f"s_add_u32 s{s_tm}, s{s_tm}, s{s_t}")
    k.e(f"s_bfe_u32 s{s_tn}, s{s_id}, 0x10002")
    k.e(f"s_lshl_b32 s{s_tn}, s{s_tn}, 2")
    k.e(f"s_lshr_b32 s{s_t}, s{s_id}, 5")
    k.e(f"s_add_u32 s{s_tn}, s{s_tn}, s{s_t}")
    k.e("s_waitcnt lgkmcnt(0)")
    make_srd(k, sP, pWS, WS_PART, 8 * MB)
    make_srd(k, sD, pDBG, 0, 256)
    G.prof = Prof(k, 6)
    G.prof.start()
    G.prof.tot_start()

    def j_in(wsoff, xsz, pw_, wsz, nt, sh):
        def f():
            make_srd(k, G.sX, pWS, wsoff, xsz)
            make_srd(k, G.sW, pw_, 0, wsz)
            k.e(f"s_mov_b32 s{G.ldx}, 128")
            k.e(f"s_mov_b32 s{G.ldw}, 2048")
            k.e(f"s_mov_b32 s{G.nt}, {nt}")
            k.e(f"s_lshl_b32 s{G.tm_off}, s{s_tm}, {sh}")
            k.e(f"s_lshl_b32 s{G.tn_off}, s{s_tn}, 8")
        return f

    def j_out(col):
        def f():
            make_srd(k, G.sO, pOUT, 0, 2048 * 2048 * 2)
            k.e(f"s_mov_b32 s{G.scale}, 1.0")
            k.e(f"s_mov_b32 s{G.ldo}, 4096")
            k.e(f"s_lshl_b32 s{G.obase}, s{s_tm}, 19")
            k.e(f"s_lshl_b32 s{s_t}, s{s_tn}, 8")
            k.e(f"s_add_u32 s{G.obase}, s{G.obase}, s{s_t}")
            if col:
                k.e(f"s_add_u32 s{G.obase}, s{G.obase}, {col}")
        return f

    def part_addr(k, G):
        vo = k.v()
        k.e(f"v_lshlrev_b32 v{vo}, 4, v{G.v_lane}")
        k.e(f"s_lshl_b32 s{G.s_t0}, s{s_id}, 16")
        k.e(f"s_lshl_b32 s{G.s_t1}, s{G.s_wave}, 14")
        k.e(f"s_add_u32 s{G.s_t0}, s{G.s_t0}, s{G.s_t1}")
        return vo

    def flag_regs(k):
        vf, vb = k.v(), k.v()
        k.e(f"s_lshr_b32 s{G.s_t1}, s{s_id}, 1")
        k.e(f"s_lshl_b32 s{G.s_t1}, s{G.s_t1}, 2")
        k.e(f"v_mov_b32 v{vf}, s{G.s_t1}")
        k.e(f"s_and_b32 s{G.s_t1}, s{s_id}, 1")
        k.e(f"s_lshl_b32 s{G.s_t1}, s{G.s_t1}, 4")
        k.e(f"s_lshl_b32 s{G.s_t1}, 1, s{G.s_t1}")
        k.e(f"v_mov_b32 v{vb}, s{G.s_t1}")
        return vf, vb

    def epi_partial(k, G, g):
        vo = part_addr(k, G)
        n = 0
        for i in range(g.TM):
            for f in range(g.TN):
                for q in range(4):
                    k.e(f"buffer_store_dwordx4 {vr(g.acc[i][f] + 4 * q, 4)}, v{vo}, {sr(sP, 4)}, s{G.s_t0} offen offset:{q * 1024} sc1")
                k.e(f"s_add_u32 s{G.s_t0}, s{G.s_t0}, 4096")
        k.e("s_waitcnt vmcnt(0)")
        k.e("s_barrier")
        vf, vb = flag_regs(k)
        Ls = k.label("noflag")
        k.e(f"s_cmp_lg_u32 s{G.s_wave}, 0")
        k.e(f"s_cbranch_scc1 {Ls}")
        k.e("s_mov_b64 exec, 1")
        k.e(f"buffer_atomic_or v{vb}, v{vf}, {sr(sD, 4)}, 0 offen")
        k.e("s_mov_b64 exec, -1")
        k.place(Ls)

    def epi_final(k, G, g):
        vf, vb = flag_regs(k)
        vr_ = k.v()
        Lp, Lok = k.label("poll"), k.label("ok")
        k.e(f"s_mov_b32 s{G.s_t0}, 0x400000")
        k.place(Lp)
        k.e(f"buffer_load_dword v{vr_}, v{vf}, {sr(sD, 4)}, 0 offen sc1")
        k.e("s_waitcnt vmcnt(0)")
        k.e(f"v_and_b32 v{vr_}, v{vr_}, v{vb}")
        k.e(f"v_cmp_ne_u32 vcc, 0, v{vr_}")
        k.e(f"s_cbranch_vccnz {Lok}")
        k.e("s_sleep 2")
        k.e(f"s_sub_u32 s{G.s_t0}, s{G.s_t0}, 1")
        k.e(f"s_cmp_lg_u32 s{G.s_t0}, 0")
        k.e(f"s_cbranch_scc1 {Lp}")
        k.place(Lok)
        k.e("s_barrier")
        vo = part_addr(k, G)
        tmp = g.fx[0][0]
        frag = [r for st in g.fx for r in st] + [r for st in g.fw for r in st]
        idx = 0
        loads = []
        for i in range(g.TM):
            for f in range(g.TN):
                for q in range(4):
                    d = frag[idx]
                    idx += 1
                    k.e(f"buffer_load_dwordx4 {vr(d, 4)}, v{vo}, {sr(sP, 4)}, s{G.s_t0} offen offset:{q * 1024} sc1")
                    loads.append((g.acc[i][f] + 4 * q, d))
                k.e(f"s_add_u32 s{G.s_t0}, s{G.s_t0}, 4096")
        for n, (a, d) in enumerate(loads):
            k.e(f"s_waitcnt vmcnt({len(loads) - 1 - n})")
            for r in range(4):
                k.e(f"v_add_f32 v{a + r}, v{a + r}, v{d + r}")
        epi_rowmajor(k, G, g)

    CFG = (2, 2, 2, 2, 64, 5, 2)
    k.e("s_cmp_ge_u32 s2, 128")
    k.e(f"s_cbranch_scc1 {Lc}")
    g1 = Gemm(G, *CFG, "T", epi_partial)
    g1.kx0, g1.kw0 = N1_OUT * 16384, N1_OUT * 64 * 2048
    g1.nstores = 0
    last = run_chain(k, G, [
        (j_in(WS_CTX, 16 * MB, pBWO, 4096 * 1024 * 2, 64 - N1_OUT, 20), lambda: None, g1),
        (j_in(WS_OA, 4 * MB, pAWO, 1024 * 1024 * 2, 16, 18), j_out(0), Gemm(G, *CFG, "T", epi_rowmajor)),
    ])
    last.epilogue()
    G.prof.tot_end()
    G.prof.dump(pWS, G.sX, G.vt[0], G.vt[1])
    k.e(f"s_branch {Lend}")
    k.place(Lc)
    last = run_chain(k, G, [
        (j_in(WS_CTX, 16 * MB, pBWO, 4096 * 1024 * 2, N1_OUT, 20), j_out(2048), Gemm(G, *CFG, "T", epi_final)),
    ])
    last.epilogue()
    G.prof.tot_end()
    G.prof.dump(pWS, G.sX, G.vt[0], G.vt[1])
    k.place(Lend)
    k.e("s_endpgm")
    return k


def kern_out_full(nw):
    k = K("outp_kernel")
    G = GemmCtx(k)
    G.epi_base = 120 * 1024
    G.kxstep = 16384
    pWS, pOUT, pBWO, pAWO = [k.s(2) for _ in range(4)]
    s_tm, s_tn, s_t = k.s(), k.s(), k.s()
    Lend = k.label("end")
    k.e("s_cmp_ge_u32 s2, 256")
    k.e(f"s_cbranch_scc1 {Lend}")
    for p, off in ((pWS, KA_WS), (pOUT, KA_OUT), (pBWO, KA_BWO), (pAWO, KA_AWO)):
        load_ptr(k, p, off)
    G.init_ids()
    k.e(f"s_and_b32 s{s_tm}, s2, 3")
    k.e(f"s_lshl_b32 s{s_tm}, s{s_tm}, 2")
    k.e(f"s_bfe_u32 s{s_t}, s2, 0x20003")
    k.e(f"s_add_u32 s{s_tm}, s{s_tm}, s{s_t}")
    k.e(f"s_bfe_u32 s{s_tn}, s2, 0x10002")
    k.e(f"s_lshl_b32 s{s_tn}, s{s_tn}, 3")
    k.e(f"s_lshr_b32 s{s_t}, s2, 5")
    k.e(f"s_add_u32 s{s_tn}, s{s_tn}, s{s_t}")
    k.e("s_waitcnt lgkmcnt(0)")
    G.prof = Prof(k, 6)
    G.prof.start()
    G.prof.tot_start()

    def j_in(wsoff, xsz, pw_, wsz, ldx, nt, sh):
        def f():
            make_srd(k, G.sX, pWS, wsoff, xsz)
            make_srd(k, G.sW, pw_, 0, wsz)
            k.e(f"s_mov_b32 s{G.ldx}, {ldx}")
            k.e(f"s_mov_b32 s{G.ldw}, 2048")
            k.e(f"s_mov_b32 s{G.nt}, {nt}")
            k.e(f"s_lshl_b32 s{G.tm_off}, s{s_tm}, {sh}")
            k.e(f"s_lshl_b32 s{G.tn_off}, s{s_tn}, 7")
        return f

    def j_out(col):
        def f():
            make_srd(k, G.sO, pOUT, 0, 2048 * 2048 * 2)
            k.e(f"s_mov_b32 s{G.scale}, 1.0")
            k.e(f"s_mov_b32 s{G.ldo}, 4096")
            k.e(f"s_lshl_b32 s{G.obase}, s{s_tm}, 19")
            k.e(f"s_lshl_b32 s{s_t}, s{s_tn}, 7")
            k.e(f"s_add_u32 s{G.obase}, s{G.obase}, s{s_t}")
            if col:
                k.e(f"s_add_u32 s{G.obase}, s{G.obase}, {col}")
        return f

    CFG = (4, 2, 1, 1, 64, 5, 2) if nw == 8 else (2, 2, 2, 1, 64, 5, 2)
    last = run_chain(k, G, [
        (j_in(WS_CTX, 16 * MB, pBWO, 4096 * 1024 * 2, 128, 64, 20), j_out(2048), Gemm(G, *CFG, "T", epi_rowmajor)),
        (j_in(WS_OA, 4 * MB, pAWO, 1024 * 1024 * 2, 128, 16, 18), j_out(0), Gemm(G, *CFG, "T", epi_rowmajor)),
    ])
    last.epilogue()
    G.prof.tot_end()
    G.prof.dump(pWS, G.sX, G.vt[0], G.vt[1])
    k.place(Lend)
    k.e("s_endpgm")
    return k


NEG_INF = "0xff800000"
NWG_A = 512
CB = math.log2(math.e) / math.sqrt(128.0)
CA = math.log2(math.e) / math.sqrt(32.0)
THR = float(os.environ.get("THR", "32"))


def f32hex(x):
    import struct

    return "0x%08x" % struct.unpack("<I", struct.pack("<f", x))[0]


def weave(k, main, fills):
    for ln in fills.get(-1, []):
        k.e(ln)
    for i, m in enumerate(main):
        k.e(m)
        for ln in fills.get(i, []):
            k.e(ln)


def max_tree(S, n, vt):
    out = [f"v_max3_f32 v{vt}, v{S}, v{S + 1}, v{S + 2}"]
    i = 3
    while i + 1 < n:
        out.append(f"v_max3_f32 v{vt}, v{vt}, v{S + i}, v{S + i + 1}")
        i += 2
    if i < n:
        out.append(f"v_max_f32 v{vt}, v{vt}, v{S + i}")
    return out


def xhalf_max(k, vt0, vt1):
    k.e(f"v_mov_b32 v{vt1}, v{vt0}")
    k.e("s_nop 1")
    k.e(f"v_permlane32_swap_b32 v{vt0}, v{vt1}")
    k.e("s_nop 1")
    k.e(f"v_max_f32 v{vt0}, v{vt0}, v{vt1}")


def first_tile_norm(k, S, CI, vt0, vt1):
    for ln in max_tree(S, 32, vt0):
        k.e(ln)
    xhalf_max(k, vt0, vt1)
    for r in range(32):
        k.e(f"v_sub_f32 v{S + r}, v{S + r}, v{vt0}")
    k.e(f"v_sub_f32 v{vt1}, 0, v{vt0}")
    for r in range(16):
        k.e(f"v_mov_b32 v{CI + r}, v{vt1}")


def check_rescale(k, Sn, CI, O, nO, lacc, vt0, vt1, lsum_mfma=False):
    xhalf_max(k, vt0, vt1)
    k.e(f"v_cmp_lt_f32 vcc, {THR}, v{vt0}") if THR in (0.5, 1.0, 2.0, 4.0) else k.e(
        f"v_cmp_lt_f32 vcc, {f32hex(THR)}, v{vt0}")
    Ls = k.label("nors")
    k.e(f"s_cbranch_vccz {Ls}")
    k.e(f"v_max_f32 v{vt0}, 0, v{vt0}")
    k.e(f"v_sub_f32 v{vt1}, 0, v{vt0}")
    k.e(f"v_exp_f32 v{vt1}, v{vt1}")
    for r in range(32):
        k.e(f"v_sub_f32 v{Sn + r}, v{Sn + r}, v{vt0}")
    for r in range(16):
        k.e(f"v_sub_f32 v{CI + r}, v{CI + r}, v{vt0}")
    k.e("s_nop 7")
    k.e(f"v_mul_f32 v{lacc}, v{lacc}, v{vt1}")
    if not lsum_mfma:
        k.e(f"v_mul_f32 v{lacc + 1}, v{lacc + 1}, v{vt1}")
    for r in range(nO):
        k.e(f"v_mul_f32 v{O + r}, v{O + r}, v{vt1}")
    k.e("s_nop 1")
    k.place(Ls)


def finish_store(k, O, ntile, lacc, vt0, vt1, vo, srd, soff, lsum_mfma=False, s_bad=None, lowchk=False, soff2=None):
    def chk(v):
        if s_bad is None:
            return
        k.e(f"v_mov_b32 v{vt1}, {f32hex(LSAFE)}")
        k.e(f"v_cmp_nlt_f32 vcc, v{v}, v{vt1}")
        k.e("s_nop 1")
        k.e(f"s_or_b32 s{s_bad}, s{s_bad}, vcc_lo")
        k.e(f"s_or_b32 s{s_bad}, s{s_bad}, vcc_hi")
        if lowchk:
            k.e(f"v_mov_b32 v{vt1}, {f32hex(2.0 ** -60)}")
            k.e(f"v_cmp_ngt_f32 vcc, v{v}, v{vt1}")
            k.e("s_nop 1")
            k.e(f"s_or_b32 s{s_bad}, s{s_bad}, vcc_lo")
            k.e(f"s_or_b32 s{s_bad}, s{s_bad}, vcc_hi")

    if lsum_mfma:
        chk(lacc)
        k.e(f"v_rcp_f32 v{vt0}, v{lacc}")
    else:
        k.e(f"v_add_f32 v{vt0}, v{lacc}, v{lacc + 1}")
        k.e(f"v_mov_b32 v{vt1}, v{vt0}")
        k.e("s_nop 1")
        k.e(f"v_permlane32_swap_b32 v{vt0}, v{vt1}")
        k.e("s_nop 1")
        k.e(f"v_add_f32 v{vt0}, v{vt0}, v{vt1}")
        chk(vt0)
        k.e(f"v_rcp_f32 v{vt0}, v{vt0}")
    k.e("s_nop 0")
    for dt in range(ntile):
        a = O + 16 * dt
        tt = a
        for r in range(16):
            k.e(f"v_mul_f32 v{a + r}, v{a + r}, v{vt0}")
        for j in range(8):
            k.e(f"v_cvt_pk_bf16_f32 v{tt + j}, v{a + 2 * j}, v{a + 2 * j + 1}")
        k.e("s_nop 1")
        k.e(f"v_permlane32_swap_b32 v{tt}, v{tt + 2}")
        k.e(f"v_permlane32_swap_b32 v{tt + 1}, v{tt + 3}")
        k.e(f"v_permlane32_swap_b32 v{tt + 4}, v{tt + 6}")
        k.e(f"v_permlane32_swap_b32 v{tt + 5}, v{tt + 7}")
        k.e("s_nop 1")
        so = soff if dt < 2 else soff2
        k.e(f"buffer_store_dwordx4 {vr(tt, 4)}, v{vo}, {sr(srd, 4)}, s{so} offen offset:{(dt & 1) * 64}")
        k.e(f"buffer_store_dwordx4 {vr(tt + 4, 4)}, v{vo}, {sr(srd, 4)}, s{so} offen offset:{(dt & 1) * 64 + 32}")
    k.e("s_nop 1")


KT = 16640
ABASE = 4 * KT
VOTE_OFF = 0
ATTN_LDS = ABASE + 3 * 16384
FASTMAX = int(os.environ.get("FASTMAX", "1"))
AONES = int(os.environ.get("AONES", "0"))
PREFETCH = int(os.environ.get("PREFETCH", "1"))
LSAFE = float(os.environ.get("LSAFE", str(2.0 ** 100)))


def kern_attn():
    k = K("attn_kernel")
    Lend = k.label("end")
    k.e("s_cmp_ge_u32 s2, 256")
    k.e(f"s_cbranch_scc1 {Lend}")
    pw = k.s(2)
    load_ptr(k, pw, KA_WS)
    pf0, pf1 = k.s(2), k.s(2)
    load_ptr(k, pf0, KA_BWO)
    load_ptr(k, pf1, KA_AWO)
    sQ, sK, sV, sO = k.s(4), k.s(4), k.s(4), k.s(4)
    s_wave = k.s()
    s_t0, s_t1 = k.s(), k.s()
    s_pass = k.s()
    s_wave0, s_bad = k.s(), k.s()
    v_lane, vt0, vt1, vt2 = k.v(), k.v(), k.v(), k.v()
    k.e(f"v_and_b32 v{v_lane}, 63, v0")
    k.e(f"v_lshrrev_b32 v{vt0}, 6, v0")
    k.e("s_nop 0")
    k.e(f"v_readfirstlane_b32 s{s_wave0}, v{vt0}")
    k.e(f"s_mov_b32 s{s_bad}, 0")
    k.e("s_waitcnt lgkmcnt(0)")
    save_v, save_s = k.vn, k.sn
    AST = 16384

    def role_b(fast, Ldone):
        if PRIO < 0:
            k.e(f"s_setprio {-PRIO}")
        k.e(f"s_mov_b32 s{s_wave}, s{s_wave0}")
        make_srd(k, sQ, pw, WS_QB, 16 * MB)
        make_srd(k, sK, pw, WS_KB, 16 * MB)
        make_srd(k, sV, pw, WS_VB, 16 * MB)
        make_srd(k, sO, pw, WS_CTX, 16 * MB)
        s_head, s_qb, s_q0, s_nt, s_kt, s_koff, s_voff, s_mdst = [k.s() for _ in range(8)]
        sm = [k.s(2) for _ in range(4)]
        pr = Prof(k, 6)
        pr.tot_start()
        k.e(f"s_and_b32 s{s_head}, s2, 31")
        k.e(f"s_lshr_b32 s{s_qb}, s2, 5")
        k.e(f"s_sub_u32 s{s_qb}, 15, s{s_qb}")
        Q = k.v(32, 4)
        O = k.v(64, 4)
        SS = [k.v(32, 4), k.v(32, 4)]
        P = k.v(16, 4)
        CI = k.v(16, 4)
        F = [k.v(4, 4) for _ in range(8)]
        lacc = k.v(2, 2)
        vq, vh4, vdiff = k.v(), k.v(), k.v()
        vdk, vdv, ak, avh = k.v(), k.v(), k.v(), k.v()
        k.e(f"v_lshrrev_b32 v{vt2}, 5, v{v_lane}")
        k.e(f"v_lshlrev_b32 v{vh4}, 2, v{vt2}")
        k.e(f"v_lshrrev_b32 v{vt0}, 4, v{v_lane}")
        k.e(f"v_lshlrev_b32 v{vt0}, 12, v{vt0}")
        k.e(f"v_and_b32 v{vt1}, 15, v{v_lane}")
        k.e(f"v_lshl_add_u32 v{vt0}, v{vt1}, 4, v{vt0}")
        k.e(f"s_lshl_b32 s{s_t0}, s{s_wave}, 10")
        k.e(f"v_add_u32 v{vdk}, s{s_t0}, v{vt0}")
        k.e(f"v_lshrrev_b32 v{vt0}, 4, v{v_lane}")
        k.e(f"v_lshlrev_b32 v{vt0}, 4, v{vt0}")
        k.e(f"v_bfe_u32 v{vt1}, v{v_lane}, 3, 1")
        k.e(f"v_lshl_add_u32 v{vt0}, v{vt1}, 6, v{vt0}")
        k.e(f"s_lshl_b32 s{s_t0}, s{s_wave}, 2")
        k.e(f"v_lshlrev_b32 v{vt1}, 3, v{vt1}")
        k.e(f"v_add_u32 v{vt1}, s{s_t0}, v{vt1}")
        k.e(f"v_and_b32 v{vt1}, 15, v{vt1}")
        k.e(f"v_add_u32 v{vt0}, v{vt0}, v{vt1}")
        k.e(f"v_lshlrev_b32 v{vt0}, 7, v{vt0}")
        k.e(f"v_and_b32 v{vt1}, 7, v{v_lane}")
        k.e(f"v_lshl_add_u32 v{vdv}, v{vt1}, 4, v{vt0}")
        k.e(f"v_and_b32 v{vt0}, 15, v{v_lane}")
        k.e(f"v_mul_u32_u24 v{vt1}, 1040, v{vt0}")
        k.e(f"v_bfe_u32 v{vt2}, v{v_lane}, 4, 1")
        k.e(f"v_lshlrev_b32 v{vt2}, 8, v{vt2}")
        k.e(f"v_lshl_add_u32 v{vt2}, v{vh4}, 2, v{vt2}")
        k.e(f"v_add_u32 v{ak}, v{vt1}, v{vt2}")
        k.e(f"v_add_u32 v{vt0}, 8, v{vt0}")
        k.e(f"v_and_b32 v{vt0}, 15, v{vt0}")
        k.e(f"v_mul_u32_u24 v{vt1}, 1040, v{vt0}")
        k.e(f"v_add_u32 v{vt1}, {2 * KT + 128}, v{vt1}")
        k.e(f"v_add_u32 v{avh}, v{vt1}, v{vt2}")
        k.e(f"s_mul_i32 s{s_mdst}, s{s_wave}, {4 * 1040}")

        def dmaK(st):
            out = []
            for jj in range(4):
                out.append([f"s_add_u32 m0, s{s_mdst}, {st * KT + jj * 1040 - jj * 256}", "s_nop 0",
                            f"buffer_load_dwordx4 v{vdk}, {sr(sK, 4)}, s{s_koff} offen offset:{jj * 256} lds"])
            out[-1].append(f"s_add_u32 s{s_koff}, s{s_koff}, 16384")
            return out

        def dmaV(st):
            out = []
            for jj in range(4):
                out.append([f"s_add_u32 m0, s{s_mdst}, {(2 + st) * KT + jj * 1040 - jj * 128}", "s_nop 0",
                            f"buffer_load_dwordx4 v{vdv}, {sr(sV, 4)}, s{s_voff} offen offset:{jj * 128} lds"])
            out[-1].append(f"s_add_u32 s{s_voff}, s{s_voff}, 16384")
            return out

        def block_loads():
            k.e(f"s_lshl_b32 s{s_q0}, s{s_qb}, 7")
            k.e(f"s_lshl_b32 s{s_t0}, s{s_wave}, 5")
            k.e(f"s_add_u32 s{s_q0}, s{s_q0}, s{s_t0}")
            k.e(f"s_lshl_b32 s{s_koff}, s{s_head}, 19")
            k.e(f"s_mov_b32 s{s_voff}, s{s_koff}")
            k.e(f"v_and_b32 v{vt0}, 31, v{v_lane}")
            k.e(f"v_add_u32 v{vt0}, s{s_q0}, v{vt0}")
            k.e(f"v_lshlrev_b32 v{vt1}, 8, v{vt0}")
            k.e(f"v_lshl_add_u32 v{vt1}, v{vh4}, 2, v{vt1}")
            for ds in range(8):
                k.e(f"buffer_load_dwordx4 {vr(Q + 4 * ds, 4)}, v{vt1}, {sr(sQ, 4)}, s{s_koff} offen offset:{ds * 32}")
            for g in dmaK(0) + dmaK(1) + dmaV(0):
                for ln in g:
                    k.e(ln)

        def kread(n, st):
            kk, ds = n // 8, n % 8
            return f"ds_read_b128 {vr(F[n % 8], 4)}, v{ak} offset:{st * KT + kk * 512 + ds * 32}"

        vseq = [(dt, g) for g in range(4) for dt in range(4)]

        def vread(n, st):
            dt, g = vseq[n]
            if dt < 2:
                return f"ds_read_b128 {vr(F[n % 8], 4)}, v{ak} offset:{(2 + st) * KT + dt * 512 + g * 32}"
            return f"ds_read_b128 {vr(F[n % 8], 4)}, v{avh} offset:{st * KT + (dt - 2) * 512 + g * 32}"

        def qk_mfma(n, Sd, cinit):
            kk, ds = n // 8, n % 8
            cin = cinit if ds == 0 else vr(Sd + 16 * kk, 16)
            return f"v_mfma_f32_32x32x16_bf16 {vr(Sd + 16 * kk, 16)}, {vr(F[n % 8], 4)}, {vr(Q + 4 * ds, 4)}, {cin}"

        def pv_mfma(n):
            dt, g = vseq[n]
            return f"v_mfma_f32_32x32x16_bf16 {vr(O + 16 * dt, 16)}, {vr(F[n % 8], 4)}, {vr(P + 4 * g, 4)}, {vr(O + 16 * dt, 16)}"

        def mask_ops(Sn):
            out = [f"v_subrev_u32 v{vdiff}, s{s_t1}, v{vq}", f"v_sub_u32 v{vdiff}, v{vdiff}, v{vh4}",
                   f"v_mov_b32 v{vt2}, {NEG_INF}"]
            for q in range(8):
                for j in range(4):
                    r = 4 * q + j
                    cst = 32 * (r >> 4) + 8 * ((r & 15) >> 2) + (r & 3)
                    out.append(f"v_cmp_gt_i32 {sr(sm[j], 2)}, {cst}, v{vdiff}")
                for j in range(4):
                    r = 4 * q + j
                    out.append(f"v_cndmask_b32 v{Sn + r}, v{Sn + r}, v{vt2}, {sr(sm[j], 2)}")
            return out

        def phase_qk(Sn, stK, Sc, cinit, dm=()):
            dm = list(dm)
            for n in range(8):
                k.e(kread(n, stK))
            for n in range(16):
                if n % 4 == 0:
                    k.e("s_waitcnt lgkmcnt(4)" if n < 12 else "s_waitcnt lgkmcnt(0)")
                k.e(qk_mfma(n, Sn, cinit))
                if n % 4 == 3 and n + 5 < 16:
                    for m in range(n + 5, n + 9):
                        k.e(kread(m, stK))
                if n % 4 != 3 and dm:
                    for ln in dm.pop(0):
                        k.e(ln)
                if Sc is not None:
                    k.e(f"v_exp_f32 v{Sc + 2 * n}, v{Sc + 2 * n}")
                    k.e(f"v_exp_f32 v{Sc + 2 * n + 1}, v{Sc + 2 * n + 1}")
                    if n > 0:
                        k.e(f"v_cvt_pk_bf16_f32 v{P + n - 1}, v{Sc + 2 * n - 2}, v{Sc + 2 * n - 1}")
            if Sc is not None:
                k.e(f"v_cvt_pk_bf16_f32 v{P + 15}, v{Sc + 30}, v{Sc + 31}")

        def phase_pv(Sc, stV, Sn, masked):
            for n in range(8):
                k.e(vread(n, stV))
            mt = max_tree(Sn, 32, vt0) if (Sn is not None and not fast) else []
            mk = mask_ops(Sn) if masked else []
            for n in range(16):
                if n % 4 == 0:
                    k.e("s_waitcnt lgkmcnt(4)" if n < 12 else "s_waitcnt lgkmcnt(0)")
                k.e(pv_mfma(n))
                if n % 4 == 3 and n + 5 < 16:
                    for m in range(n + 5, n + 9):
                        k.e(vread(m, stV))
                k.e(f"v_add_f32 v{lacc}, v{lacc}, v{Sc + 2 * n}")
                k.e(f"v_add_f32 v{lacc + 1}, v{lacc + 1}, v{Sc + 2 * n + 1}")
                if masked:
                    if n == 6:
                        for ln in mk:
                            k.e(ln)
                    if n >= 7:
                        for _ in range(2):
                            if mt:
                                k.e(mt.pop(0))
                elif n >= 4:
                    for _ in range(2 if n < 8 else 1):
                        if mt:
                            k.e(mt.pop(0))
            for ln in mt:
                k.e(ln)

        def full(par):
            Sc, Sn = SS[par], SS[par ^ 1]
            phase_qk(Sn, par ^ 1, Sc, vr(CI, 16), dmaK(par) + dmaV(par ^ 1))
            pr.stamp(0)
            Lm, Lj = k.label("msk"), k.label("join")
            k.e(f"s_add_u32 s{s_t0}, s{s_kt}, 3")
            k.e(f"s_cmp_ge_u32 s{s_t0}, s{s_nt}")
            k.e(f"s_cbranch_scc1 {Lm}")
            phase_pv(Sc, par, Sn, False)
            k.e(f"s_branch {Lj}")
            k.place(Lm)
            k.e(f"s_lshl_b32 s{s_t1}, s{s_kt}, 6")
            k.e(f"s_add_u32 s{s_t1}, s{s_t1}, 64")
            phase_pv(Sc, par, Sn, True)
            k.place(Lj)
            pr.stamp(1)
            if not fast:
                check_rescale(k, Sn, CI, O, 64, lacc, vt0, vt1)
            k.e(f"s_add_u32 s{s_kt}, s{s_kt}, 1")
            pr.stamp(2)
            k.e("s_waitcnt vmcnt(0)")
            pr.stamp(3)
            k.e("s_barrier")
            pr.stamp(4)

        block_loads()
        LBtop = k.label("btop")
        k.place(LBtop)
        k.e(f"v_and_b32 v{vt0}, 31, v{v_lane}")
        k.e(f"v_add_u32 v{vq}, s{s_q0}, v{vt0}")
        k.e(f"s_lshl_b32 s{s_nt}, s{s_qb}, 1")
        k.e(f"s_add_u32 s{s_nt}, s{s_nt}, 2")
        for r in range(64):
            k.e(f"v_mov_b32 v{O + r}, 0")
        k.e(f"v_mov_b32 v{lacc}, 0")
        k.e(f"v_mov_b32 v{lacc + 1}, 0")
        k.e(f"s_mov_b32 s{s_kt}, 0")
        k.e("s_waitcnt vmcnt(0)")
        k.e("s_barrier")
        phase_qk(SS[0], 0, None, "0")
        k.e("s_nop 15")
        Lnm = k.label("nm0")
        k.e(f"s_cmp_lg_u32 s{s_nt}, 2")
        k.e(f"s_cbranch_scc1 {Lnm}")
        k.e(f"s_mov_b32 s{s_t1}, 0")
        for ln in mask_ops(SS[0]):
            k.e(ln)
        k.place(Lnm)
        first_tile_norm(k, SS[0], CI, vt0, vt1)
        k.e("s_barrier")
        Lloop, Llast = k.label("bloop"), k.label("blast")
        pr.start()
        k.e(f"s_cmp_eq_u32 s{s_nt}, 2")
        k.e(f"s_cbranch_scc1 {Llast}")
        k.place(Lloop)
        full(0)
        full(1)
        k.e(f"s_add_u32 s{s_t0}, s{s_kt}, 2")
        k.e(f"s_cmp_lt_u32 s{s_t0}, s{s_nt}")
        k.e(f"s_cbranch_scc1 {Lloop}")
        k.place(Llast)
        full(0)
        Lnp = k.label("nopf")
        k.e(f"s_sub_u32 s{s_qb}, 15, s{s_qb}")
        k.e(f"s_cmp_lg_u32 s{s_pass}, 0")
        k.e(f"s_cbranch_scc1 {Lnp}")
        block_loads()
        k.place(Lnp)
        Sc = SS[1]
        for n in range(16):
            k.e(f"v_exp_f32 v{Sc + 2 * n}, v{Sc + 2 * n}")
            k.e(f"v_exp_f32 v{Sc + 2 * n + 1}, v{Sc + 2 * n + 1}")
            if n > 0:
                k.e(f"v_cvt_pk_bf16_f32 v{P + n - 1}, v{Sc + 2 * n - 2}, v{Sc + 2 * n - 1}")
        k.e("s_nop 0")
        k.e(f"v_cvt_pk_bf16_f32 v{P + 15}, v{Sc + 30}, v{Sc + 31}")
        phase_pv(Sc, 1, None, False)
        k.e("s_nop 15")
        k.e(f"v_lshrrev_b32 v{vt0}, 7, v{vq}")
        k.e(f"v_lshlrev_b32 v{vdiff}, 20, v{vt0}")
        k.e(f"v_and_b32 v{vt0}, 127, v{vq}")
        k.e(f"v_lshl_add_u32 v{vdiff}, v{vt0}, 7, v{vdiff}")
        k.e(f"v_lshl_add_u32 v{vdiff}, v{vh4}, 2, v{vdiff}")
        k.e(f"s_lshl_b32 s{s_t0}, s{s_head}, 15")
        k.e(f"s_add_u32 s{s_t1}, s{s_t0}, 16384")
        finish_store(k, O, 4, lacc, vt0, vt1, vdiff, sO, s_t0, s_bad=s_bad if fast else None, soff2=s_t1)
        k.e(f"s_add_u32 s{s_pass}, s{s_pass}, 1")
        k.e(f"s_cmp_lt_u32 s{s_pass}, 2")
        k.e(f"s_cbranch_scc1 {LBtop}")
        pr.tot_end()
        pr.dump(pw, sQ, vt0, vt1)
        k.e(f"s_branch {Ldone}")
        k.vn, k.sn = save_v, save_s

    def role_a(fast, Ldone):
        if PRIO > 0:
            k.e(f"s_setprio {PRIO}")
        k.e(f"s_sub_u32 s{s_wave}, s{s_wave0}, 4")
        make_srd(k, sQ, pw, WS_QA, 4 * MB)
        make_srd(k, sK, pw, WS_KA, 2048 * 64)
        make_srd(k, sV, pw, WS_VA, 2048 * 64)
        make_srd(k, sO, pw, WS_OA, 4 * MB)
        s_hg, s_q0, s_kb, s_go, s_ho, s_dst, s_cur, s_nxt, s_wdst = [k.s() for _ in range(9)]
        pa = Prof(k, 6)
        pa.tot_start()
        NH = 2 if fast else 1
        Q = [k.v(8, 4) for _ in range(NH)]
        O = [k.v(16, 4) for _ in range(NH)]
        LS = [k.v(16, 4) for _ in range(NH)]
        SS = [k.v(32, 4), k.v(32, 4)]
        P2 = [k.v(16, 4) for _ in range(NH)]
        CI = k.v(16, 4)
        KF = k.v(16, 4)
        VF = k.v(16, 4)
        ONES = k.v(4, 4)
        vqo, vdm = k.v(), k.v()
        ba = [k.v(), k.v()]
        ac = [k.v(), k.v()]
        an = [k.v(), k.v()]
        LAtop = k.label("atop")
        k.place(LAtop)
        k.e(f"s_and_b32 s{s_q0}, s2, 15")
        k.e(f"s_lshr_b32 s{s_hg}, s2, 4")
        k.e(f"s_lshl_b32 s{s_hg}, s{s_hg}, 1")
        k.e(f"s_add_u32 s{s_hg}, s{s_hg}, s{s_pass}")
        k.e(f"s_lshl_b32 s{s_q0}, s{s_q0}, 7")
        k.e(f"s_lshl_b32 s{s_t0}, s{s_wave}, 5")
        k.e(f"s_add_u32 s{s_q0}, s{s_q0}, s{s_t0}")
        k.e(f"s_lshl_b32 s{s_ho}, s{s_hg}, 6")
        k.e(f"v_and_b32 v{vt0}, 31, v{v_lane}")
        k.e(f"v_lshrrev_b32 v{vt2}, 5, v{v_lane}")
        k.e(f"v_add_u32 v{vt1}, s{s_q0}, v{vt0}")
        k.e(f"v_lshlrev_b32 v{vt1}, 11, v{vt1}")
        k.e(f"v_lshl_add_u32 v{vqo}, v{vt2}, 4, v{vt1}")
        for h in range(NH):
            for ks in range(2):
                k.e(f"buffer_load_dwordx4 {vr(Q[h] + 4 * ks, 4)}, v{vqo}, {sr(sQ, 4)}, s{s_ho} offen offset:{h * 64 + ks * 32}")
        k.e(f"v_bfe_u32 v{vt1}, v{v_lane}, 2, 2")
        k.e(f"v_xor_b32 v{vt1}, v{vt1}, v{vt2}")
        k.e(f"v_lshlrev_b32 v{vt0}, 6, v{vt0}")
        for x in range(2):
            k.e(f"v_xor_b32 v{vt2}, {2 * x}, v{vt1}")
            k.e(f"v_lshl_add_u32 v{ba[x]}, v{vt2}, 4, v{vt0}")
        k.e(f"v_lshrrev_b32 v{vt0}, 2, v{v_lane}")
        k.e(f"v_lshrrev_b32 v{vt1}, 4, v{v_lane}")
        k.e(f"v_xor_b32 v{vt1}, v{vt1}, v{v_lane}")
        k.e(f"v_and_b32 v{vt1}, 3, v{vt1}")
        k.e(f"v_lshlrev_b32 v{vt0}, 6, v{vt0}")
        k.e(f"v_lshl_add_u32 v{vt0}, v{vt1}, 4, v{vt0}")
        k.e(f"s_lshl_b32 s{s_wdst}, s{s_wave}, 11")
        k.e(f"v_add_u32 v{vdm}, s{s_wdst}, v{vt0}")
        k.e(f"s_mov_b32 s{s_kb}, 0")
        k.e(f"s_mov_b32 s{s_go}, 0")
        k.e(f"s_mov_b32 s{s_dst}, {ABASE}")
        k.e(f"s_mov_b32 s{s_cur}, {ABASE}")
        k.e(f"s_mov_b32 s{s_nxt}, {ABASE + AST}")

        def dmaA():
            out = [[f"s_add_u32 s{s_t0}, s{s_dst}, s{s_wdst}"]]
            for j in range(2):
                out.append([f"s_mov_b32 m0, s{s_t0}", "s_nop 0",
                            f"buffer_load_dwordx4 v{vdm}, {sr(sK, 4)}, s{s_go} offen offset:{j * 1024} lds"])
            for j in range(2):
                out.append([f"s_add_u32 m0, s{s_t0}, 8192", "s_nop 0",
                            f"buffer_load_dwordx4 v{vdm}, {sr(sV, 4)}, s{s_go} offen offset:{j * 1024} lds"])
            out.append([f"s_add_u32 s{s_go}, s{s_go}, 8192", f"s_add_u32 s{s_dst}, s{s_dst}, {AST}",
                        f"s_cmp_eq_u32 s{s_dst}, {ABASE + 3 * AST}", f"s_cselect_b32 s{s_dst}, {ABASE}, s{s_dst}"])
            return out

        for _ in range(2):
            for g in dmaA():
                for ln in g:
                    k.e(ln)
        for h in range(NH):
            for r in range(16):
                k.e(f"v_mov_b32 v{O[h] + r}, 0")
                k.e(f"v_mov_b32 v{LS[h] + r}, 0")
        for r in range(4):
            k.e(f"v_mov_b32 v{ONES + r}, 0x3f803f80")

        def kreads_l(adr, half):
            return [f"ds_read_b128 {vr(KF + 8 * kk + 4 * ks, 4)}, v{adr[ks]} offset:{half * 4096 + kk * 2048}"
                    for kk in range(2) for ks in range(2)]

        def vreads_l(adr, half):
            return [f"ds_read_b128 {vr(VF + 4 * g, 4)}, v{adr[g & 1]} offset:{8192 + half * 4096 + (g >> 1) * 2048}"
                    for g in range(4)]

        def pv_l(h, Pp):
            out = []
            for g in range(4):
                out.append(f"v_mfma_f32_32x32x16_bf16 {vr(O[h], 16)}, {vr(VF + 4 * g, 4)}, {vr(Pp + 4 * g, 4)}, {vr(O[h], 16)}")
                if AONES or not fast:
                    out.append(f"v_mfma_f32_32x32x16_bf16 {vr(LS[h], 16)}, {vr(ONES, 4)}, {vr(Pp + 4 * g, 4)}, {vr(LS[h], 16)}")
            return out

        def qk_l(h, Sb, cinit):
            out = []
            for kk in range(2):
                for ks in range(2):
                    cin = cinit if ks == 0 else vr(Sb + 16 * kk, 16)
                    out.append(f"v_mfma_f32_32x32x16_bf16 {vr(Sb + 16 * kk, 16)}, {vr(KF + 8 * kk + 4 * ks, 4)}, {vr(Q[h] + 4 * ks, 4)}, {cin}")
            return out

        def oa_addr():
            k.e(f"v_and_b32 v{vt0}, 31, v{v_lane}")
            k.e(f"v_add_u32 v{vt0}, s{s_q0}, v{vt0}")
            k.e(f"v_lshrrev_b32 v{vt1}, 7, v{vt0}")
            k.e(f"v_lshlrev_b32 v{vdm}, 18, v{vt1}")
            k.e(f"v_and_b32 v{vt0}, 127, v{vt0}")
            k.e(f"v_lshl_add_u32 v{vdm}, v{vt0}, 7, v{vdm}")
            k.e(f"v_lshrrev_b32 v{vt1}, 5, v{v_lane}")
            k.e(f"v_lshl_add_u32 v{vdm}, v{vt1}, 4, v{vdm}")
            k.e(f"s_lshr_b32 s{s_t1}, s{s_hg}, 1")
            k.e(f"s_lshl_b32 s{s_t1}, s{s_t1}, 14")
            k.e(f"s_and_b32 s{s_t0}, s{s_hg}, 1")
            k.e(f"s_lshl_b32 s{s_t0}, s{s_t0}, 6")
            k.e(f"s_add_u32 s{s_t1}, s{s_t1}, s{s_t0}")

        def set_addr():
            for x in range(2):
                k.e(f"v_add_u32 v{ac[x]}, s{s_cur}, v{ba[x]}")
                k.e(f"v_add_u32 v{an[x]}, s{s_nxt}, v{ba[x]}")

        def adv():
            k.e(f"s_mov_b32 s{s_cur}, s{s_nxt}")
            k.e(f"s_add_u32 s{s_nxt}, s{s_nxt}, {AST}")
            k.e(f"s_cmp_eq_u32 s{s_nxt}, {ABASE + 3 * AST}")
            k.e(f"s_cselect_b32 s{s_nxt}, {ABASE}, s{s_nxt}")

        def expcvt(Sc, Pc, slots, dm=(), la=None):
            dm = list(dm)
            for n in range(16):
                k.e(f"v_exp_f32 v{Sc + 2 * n}, v{Sc + 2 * n}")
                k.e(f"v_exp_f32 v{Sc + 2 * n + 1}, v{Sc + 2 * n + 1}")
                if n > 0:
                    k.e(f"v_cvt_pk_bf16_f32 v{Pc + n - 1}, v{Sc + 2 * n - 2}, v{Sc + 2 * n - 1}")
                    if la is not None:
                        k.e(f"v_add_f32 v{la}, v{la}, v{Sc + 2 * n - 2}")
                        k.e(f"v_add_f32 v{la + 1}, v{la + 1}, v{Sc + 2 * n - 1}")
                for ln in slots.get(n, []):
                    k.e(ln)
                if n >= 12 and dm:
                    for ln in dm.pop(0):
                        k.e(ln)
            for g in dm:
                for ln in g:
                    k.e(ln)
            k.e("s_nop 0")
            k.e(f"v_cvt_pk_bf16_f32 v{Pc + 15}, v{Sc + 30}, v{Sc + 31}")
            if la is not None:
                k.e(f"v_add_f32 v{la}, v{la}, v{Sc + 30}")
                k.e(f"v_add_f32 v{la + 1}, v{la + 1}, v{Sc + 31}")

        k.e("s_waitcnt vmcnt(0)")
        k.e("s_barrier")
        set_addr()
        for ln in kreads_l(ac, 0):
            k.e(ln)
        k.e("s_waitcnt lgkmcnt(0)")
        if fast:
            for h in range(2):
                for ln in qk_l(h, SS[h], "0"):
                    k.e(ln)
            k.e("s_nop 15")
            for ln in max_tree(SS[0], 32, vt0):
                k.e(ln)
            for ln in max_tree(SS[1], 32, vt2):
                k.e(ln)
            k.e(f"v_max_f32 v{vt0}, v{vt0}, v{vt2}")
            xhalf_max(k, vt0, vt1)
            for h in range(2):
                for r in range(32):
                    k.e(f"v_sub_f32 v{SS[h] + r}, v{SS[h] + r}, v{vt0}")
            k.e(f"v_sub_f32 v{vt1}, 0, v{vt0}")
            for r in range(16):
                k.e(f"v_mov_b32 v{CI + r}, v{vt1}")

            def it(h, half, do_pv=True, do_qk=True, rd=None, dm=()):
                slots = {}
                if h == 1:
                    k.e("s_waitcnt lgkmcnt(0)")
                if do_pv:
                    for i, ln in enumerate(pv_l(h ^ 1, P2[h ^ 1])):
                        slots.setdefault(i if AONES else 2 * i, []).append(ln)
                if do_qk:
                    for i, ln in enumerate(qk_l(h ^ 1, SS[h ^ 1], vr(CI, 16))):
                        slots.setdefault(8 + i, []).append(ln)
                if rd:
                    slots.setdefault(12, []).extend(rd)
                expcvt(SS[h], P2[h], slots, dm, la=None if AONES else LS[h])

            sPF = k.s(4)
            s_pfo = k.s()
            vpf = LS[0] + 8
            if PREFETCH:
                make_srd(k, sPF, pf0, 0, 4096 * 1024 * 2)
                k.e(f"s_lshl_b32 s{s_pfo}, s2, 15")
                k.e(f"s_lshl_b32 s{s_t0}, s{s_wave}, 10")
                k.e(f"s_add_u32 s{s_pfo}, s{s_pfo}, s{s_t0}")
                k.e(f"v_lshlrev_b32 v{vpf}, 4, v{v_lane}")

            def prefetch():
                if not PREFETCH:
                    return
                Lsw = k.label("pfsw")
                k.e(f"s_cmp_lg_u32 s{s_kb}, 8")
                k.e(f"s_cbranch_scc1 {Lsw}")
                make_srd(k, sPF, pf1, 0, 1024 * 1024 * 2)
                k.e(f"s_lshl_b32 s{s_pfo}, s2, 13")
                k.e(f"s_lshl_b32 s{s_t0}, s{s_wave}, 10")
                k.e(f"s_add_u32 s{s_pfo}, s{s_pfo}, s{s_t0}")
                k.place(Lsw)
                k.e(f"buffer_load_dwordx4 {vr(LS[0] + 4, 4)}, v{vpf}, {sr(sPF, 4)}, s{s_pfo} offen")
                k.e(f"s_add_u32 s{s_pfo}, s{s_pfo}, 4096")

            def stage_iter(first, last):
                if not last:
                    prefetch()
                it(0, 0, do_pv=not first, do_qk=not first, rd=vreads_l(ac, 0) + kreads_l(ac, 1))
                it(1, 0, dm=dmaA() if not last else ())
                k.e("s_barrier")
                it(0, 1, rd=vreads_l(ac, 1) + ([] if last else kreads_l(an, 0)))
                it(1, 1, do_qk=not last)
                if not last:
                    adv()
                    set_addr()
                    k.e(f"s_add_u32 s{s_kb}, s{s_kb}, 1")
                    k.e("s_waitcnt vmcnt(0) lgkmcnt(0)")
                k.e("s_barrier")

            for _ in range(3):
                k.e("s_barrier")
            pa.start()
            stage_iter(True, False)
            Lloop = k.label("aloop")
            k.place(Lloop)
            stage_iter(False, False)
            k.e(f"s_cmp_lt_u32 s{s_kb}, 15")
            k.e(f"s_cbranch_scc1 {Lloop}")
            stage_iter(False, True)
            k.e("s_nop 1")
            for ln in pv_l(1, P2[1]):
                k.e(ln)
            k.e("s_nop 15")
            oa_addr()
            for h in range(2):
                k.e(f"s_add_u32 s{s_t0}, s{s_t1}, {h * 64}")
                finish_store(k, O[h], 1, LS[h], vt0, vt1, vdm, sO, s_t0, lsum_mfma=bool(AONES), s_bad=s_bad, lowchk=True)
        else:
            for ln in qk_l(0, SS[0], "0"):
                k.e(ln)
            k.e("s_nop 15")
            first_tile_norm(k, SS[0], CI, vt0, vt1)
            k.e("s_barrier")
            P = P2[0]

            def a_iter(par, last, dm):
                Sc, Sn = SS[par], SS[par ^ 1]
                if not last:
                    for ln in kreads_l(ac if par == 0 else an, par ^ 1):
                        k.e(ln)
                for ln in vreads_l(ac, par):
                    k.e(ln)
                if not last:
                    k.e("s_waitcnt lgkmcnt(4)")
                    for ln in qk_l(0, Sn, vr(CI, 16)):
                        k.e(ln)
                expcvt(Sc, P, {}, dm)
                k.e("s_waitcnt lgkmcnt(0)")
                k.e("s_nop 0")
                for ln in pv_l(0, P):
                    k.e(ln)
                if not last:
                    for ln in max_tree(Sn, 32, vt0):
                        k.e(ln)
                    check_rescale(k, Sn, CI, O[0], 16, LS[0], vt0, vt1, lsum_mfma=True)

            Lloop = k.label("aloop")
            k.place(Lloop)
            a_iter(0, False, dmaA())
            a_iter(1, False, [])
            adv()
            set_addr()
            k.e(f"s_add_u32 s{s_kb}, s{s_kb}, 1")
            k.e("s_waitcnt vmcnt(0) lgkmcnt(0)")
            k.e("s_barrier")
            k.e(f"s_cmp_lt_u32 s{s_kb}, 15")
            k.e(f"s_cbranch_scc1 {Lloop}")
            a_iter(0, False, [])
            a_iter(1, True, [])
            k.e("s_nop 15")
            oa_addr()
            finish_store(k, O[0], 1, LS[0], vt0, vt1, vdm, sO, s_t1, lsum_mfma=True)
            k.e("s_barrier")
            k.e(f"s_add_u32 s{s_pass}, s{s_pass}, 1")
            k.e(f"s_cmp_lt_u32 s{s_pass}, 2")
            k.e(f"s_cbranch_scc1 {LAtop}")
        pa.tot_end()
        pa.dump(pw, sQ, vt0, vt1)
        k.e(f"s_branch {Ldone}")
        k.vn, k.sn = save_v, save_s

    def emit_mode(fast, Ldone):
        LA = k.label("attnA")
        k.e(f"s_mov_b32 s{s_pass}, 0")
        k.e(f"s_cmp_ge_u32 s{s_wave0}, 4")
        k.e(f"s_cbranch_scc1 {LA}")
        role_b(fast, Ldone)
        k.place(LA)
        role_a(fast, Ldone)

    Lvote = k.label("vote")
    if FASTMAX:
        emit_mode(True, Lvote)
        k.place(Lvote)
        k.e("s_barrier")
        k.e(f"v_mov_b32 v{vt0}, s{s_bad}")
        k.e(f"s_lshl_b32 s{s_t0}, s{s_wave0}, 2")
        k.e(f"v_mov_b32 v{vt1}, s{s_t0}")
        k.e(f"ds_write_b32 v{vt1}, v{vt0} offset:{VOTE_OFF}")
        k.e("s_waitcnt lgkmcnt(0)")
        k.e("s_barrier")
        k.e(f"v_and_b32 v{vt1}, 7, v{v_lane}")
        k.e(f"v_lshlrev_b32 v{vt1}, 2, v{vt1}")
        k.e(f"ds_read_b32 v{vt0}, v{vt1} offset:{VOTE_OFF}")
        k.e("s_waitcnt lgkmcnt(0)")
        k.e(f"v_cmp_ne_u32 vcc, 0, v{vt0}")
        k.e("s_barrier")
        k.e(f"s_cbranch_vccz {Lend}")
    emit_mode(False, Lend)
    k.place(Lend)
    k.e("s_endpgm")
    return k


def main():
    kernels = [
        (kern_proj(), 256, 512, 160 * 1024),
        (kern_attn(), 256, 512, ATTN_LDS),
        {"half": lambda: (kern_out(), 256, 256, 160 * 1024),
         "split": lambda: (kern_out_split(), 256, 256, 160 * 1024),
         "f8": lambda: (kern_out_full(8), 256, 512, 152 * 1024),
         "f4": lambda: (kern_out_full(4), 256, 256, 152 * 1024)}[os.environ.get("OUTMODE", "split")](),
    ]
    out = []
    for kk, g, b, lds in kernels:
        out.append(f"; @launch kernel={kk.name} grid=({g},1,1) block=({b},1,1) lds={lds}")
    out.append('.amdgcn_target "amdgcn-amd-amdhsa--gfx950"')
    out.append(".text")
    for kk, g, b, lds in kernels:
        out.append(f".globl {kk.name}")
        out.append(".p2align 8")
        out.append(f".type {kk.name},@function")
        out.append(f"{kk.name}:")
        out.append(kk.text())
    out.append('.section .rodata,"a"')
    for kk, g, b, lds in kernels:
        nv = (kk.maxv + 7) // 8 * 8
        out.append(".p2align 6")
        out.append(f".amdhsa_kernel {kk.name}")
        out.append(f"  .amdhsa_next_free_vgpr {nv}")
        out.append("  .amdhsa_next_free_sgpr 102")
        out.append(f"  .amdhsa_accum_offset {nv}")
        out.append("  .amdhsa_group_segment_fixed_size 0")
        out.append("  .amdhsa_kernarg_size 112")
        out.append("  .amdhsa_user_sgpr_count 2")
        out.append("  .amdhsa_user_sgpr_kernarg_segment_ptr 1")
        out.append("  .amdhsa_system_sgpr_workgroup_id_x 1")
        out.append(".end_amdhsa_kernel")
    path = sys.argv[1] if len(sys.argv) > 1 else f"cdna_kernels/{NAME}.s"
    open(path, "w").write("\n".join(out) + "\n")
    for kk, g, b, lds in kernels:
        print(kk.name, "vgprs", kk.maxv, "lines", len(kk.lines))


if __name__ == "__main__":
    main()
```
